```python
import torch

def _softmax(x, axis=-1):
    return torch.softmax(x, dim=axis)
def _gelu(x):
    return torch.nn.functional.gelu(x, approximate="tanh")
def _silu(x):
    return torch.nn.functional.silu(x)
def _sigmoid(x):
    return torch.sigmoid(x)
def _layernorm(x, axis=-1, eps=1e-5):
    m = x.mean(dim=axis, keepdim=True)
    v = x.var(dim=axis, keepdim=True, unbiased=False)
    return (x - m) / torch.sqrt(v + eps)
def _scatter_add(tgt, idx, src, axis=0):
    return tgt.clone().index_add_(axis, idx, src)
def _segment_sum(src, seg, n):
    out = torch.zeros((n,) + src.shape[1:], dtype=src.dtype)
    return out.index_add_(0, seg, src)
def _pad(x, pw):
    flat = tuple(v for pair in reversed(pw) for v in pair)
    return torch.nn.functional.pad(x, flat)

kernel_name = 'interleave_layers__sliding_block_cached__glu_gated_glu__decode'

def setup_inputs():

    _w = (lambda a: (lambda t: t.to(torch.bfloat16) if t.is_floating_point() else t)(torch.as_tensor(a)))
    def _A_setup():
        B, Sq, D = 2, 1, 512
        Hq, Hkv, Sk, Dh = 32, 8, 32768, 128
        assert Hq % Hkv == 0, (Hq, Hkv)
        return {
            "x": _w((lambda *s: torch.randn(*s, dtype=torch.bfloat16) * 0.05)(B, Sq, D)),
            "k_cache": _w((lambda *s: torch.randn(*s, dtype=torch.bfloat16) * 1.6)(B, Hkv, Sk, Dh)),
            "v_cache": _w((lambda *s: torch.randn(*s, dtype=torch.bfloat16) * 1.6)(B, Hkv, Sk, Dh)),
            "wq": _w((lambda *s: torch.randn(*s, dtype=torch.bfloat16) * 1.6)(D, Hq * Dh) * (D ** -0.5)),
            "wo": _w((lambda *s: torch.randn(*s, dtype=torch.bfloat16) * 1.6)(Hq * Dh, D) * ((Hq * Dh) ** -0.5)),
        }
    _A_in = _A_setup()

    def _B_setup():
        B, S, D, F = 2, 1, 512, 1792
        return {
            "x": _w((lambda *s: torch.randn(*s, dtype=torch.bfloat16) * 0.05)(B, S, D)),
            "w_gate": _w((lambda *s: torch.randn(*s, dtype=torch.bfloat16) * 0.05)(D, F)),
            "w_up": _w((lambda *s: torch.randn(*s, dtype=torch.bfloat16) * 0.05)(D, F)),
            "w_down": _w((lambda *s: torch.randn(*s, dtype=torch.bfloat16) * 0.05)(F, D)),
        }
    _B_in = _B_setup()

    return {
        "A_x": _A_in["x"],
        "A_k_cache": _A_in["k_cache"],
        "A_v_cache": _A_in["v_cache"],
        "A_wq": _A_in["wq"],
        "A_wo": _A_in["wo"],
        "B_x": _B_in["x"],
        "B_w_gate": _B_in["w_gate"],
        "B_w_up": _B_in["w_up"],
        "B_w_down": _B_in["w_down"],
    }

def reference(A_x, A_k_cache, A_v_cache, A_wq, A_wo, B_x, B_w_gate, B_w_up, B_w_down):
    def _A_ref(x, k_cache, v_cache, wq, wo):
        B, Sq, D = x.shape
        Hq, Dh = 32, 128
        Hkv, Sk = k_cache.shape[1], k_cache.shape[2]
        W = min(4096, max(256, Sk // 4))
        rep = Hq // Hkv
        q = (lambda x, *d: x.permute(*d))((x @ wq).reshape(B, Sq, Hq, Dh), 0, 2, 1, 3)
        k = (lambda x, n, axis: torch.repeat_interleave(x, n, dim=axis))(k_cache[:, :, Sk - W:, :], rep, axis=1)
        v = (lambda x, n, axis: torch.repeat_interleave(x, n, dim=axis))(v_cache[:, :, Sk - W:, :], rep, axis=1)
        scores = torch.einsum("bhqd,bhkd->bhqk", q, k) * (Dh ** -0.5)
        p = _softmax(scores, axis=-1)
        o = torch.einsum("bhqk,bhkd->bhqd", p, v)
        return (lambda x, *d: x.permute(*d))(o, 0, 2, 1, 3).reshape(B, Sq, Hq * Dh) @ wo

    def _B_ref(x, w_gate, w_up, w_down):
        g = torch.einsum("bsd,df->bsf", x, w_gate)
        u = torch.einsum("bsd,df->bsf", x, w_up)
        h = _sigmoid(g) * u
        return torch.einsum("bsf,fd->bsd", h, w_down)

    x = A_x
    x = x + _A_ref(_layernorm(x, axis=-1), A_k_cache, A_v_cache, A_wq, A_wo)
    x = x + _B_ref(_layernorm(x, axis=-1), B_w_gate, B_w_up, B_w_down)
    x = x + _A_ref(_layernorm(x, axis=-1), A_k_cache, A_v_cache, A_wq, A_wo)
    x = x + _B_ref(_layernorm(x, axis=-1), B_w_gate, B_w_up, B_w_down)
    return x
```

```python
NAME='interleave_layers__sliding_block_cached__glu_gated_glu__decode_kernel'
HEADER='''; Kernarg layout (96 bytes): A_x, A_k_cache, A_v_cache, A_wq, A_wo, B_x, B_w_gate, B_w_up, B_w_down, d_out, d_debug, d_ws
;
'''
class Asm:
    def __init__(s):
        s.l=[]
    def __call__(s,*xs):
        for x in xs:
            for ln in x.strip('\n').split('\n'):
                t=ln.strip()
                if not t: continue
                if t.endswith(':') or t.startswith(';'):
                    s.l.append(t)
                else:
                    s.l.append('    '+t)
    def label(s,n): s.l.append(n+':')
    def text(s): return '\n'.join(s.l)+'\n'
def wrap(body, grid, block, lds, nvgpr=256, nsgpr=102, accum=None, extra_head=''):
    if accum is None: accum=min(256,(nvgpr+3)//4*4)
    return f'''{HEADER}{extra_head}; @launch grid=({grid},1,1) block=({block},1,1) lds={lds}
.amdgcn_target "amdgcn-amd-amdhsa--gfx950"
.text
.globl {NAME}
.p2align 8
.type {NAME},@function
{NAME}:
{body}
.section .rodata,"a"
.p2align 6
.amdhsa_kernel {NAME}
  .amdhsa_next_free_vgpr {nvgpr}
  .amdhsa_next_free_sgpr {nsgpr}
  .amdhsa_accum_offset {accum}
  .amdhsa_group_segment_fixed_size 0
  .amdhsa_kernarg_size 96
  .amdhsa_user_sgpr_count 2
  .amdhsa_user_sgpr_kernarg_segment_ptr 1
  .amdhsa_system_sgpr_workgroup_id_x 1
  .amdhsa_float_denorm_mode_32 3
.end_amdhsa_kernel
'''
```

```python
import re
RE_V=re.compile(r'^(-|abs\()?v(\d+)\)?$'); RE_VR=re.compile(r'^(-)?v\[(\d+):(\d+)\]$')
RE_S=re.compile(r'^s(\d+)$'); RE_SR=re.compile(r'^s\[(\d+):(\d+)\]$')
def regs(tok):
    tok=tok.strip()
    m=RE_V.match(tok)
    if m: return {('v',int(m.group(2)))}
    m=RE_VR.match(tok)
    if m: return {('v',i) for i in range(int(m.group(2)),int(m.group(3))+1)}
    m=RE_S.match(tok)
    if m: return {('s',int(m.group(1)))}
    m=RE_SR.match(tok)
    if m: return {('s',i) for i in range(int(m.group(1)),int(m.group(2))+1)}
    if tok=='vcc': return {('s','vcc')}
    if tok in('vcc_lo','vcc_hi'): return {('s','vcc')}
    if tok=='exec' or tok in('exec_lo','exec_hi'): return {('s','exec')}
    if tok=='m0': return {('s','m0')}
    return set()
TRANS=('v_exp_f32','v_log_f32','v_rcp_f32','v_rsq_f32','v_sqrt_f32','v_sin_f32','v_cos_f32')
class I:
    def __init__(s,text):
        s.text=text
        t=text.split(';')[0].strip()
        s.label = t.endswith(':')
        s.mn=''; s.ops=[]
        if not t or s.label or t.startswith('.'):
            s.kind='none'; return
        p=t.split(None,1); s.mn=p[0]
        rest=p[1] if len(p)>1 else ''
        ops=[];d=0;cur=''
        for ch in rest:
            if ch=='[': d+=1
            if ch==']': d-=1
            if ch==',' and d==0: ops.append(cur.strip()); cur=''
            else: cur+=ch
        if cur.strip(): ops.append(cur.strip())
        mods=''
        if ops:
            last=ops[-1].split(None,1)
            ops[-1]=last[0]; mods=last[1] if len(last)>1 else ''
        s.ops=ops; s.mods=mods
        mn=s.mn
        s.dpp = ('_dpp' in mn) or ('row_' in mods) or ('quad_perm' in mods)
        s.vw=set(); s.vr=set(); s.sw=set(); s.sr=set()
        if mn.startswith('v_mfma') or mn.startswith('v_smfmac'):
            s.kind='mfma'; s.vw=regs(ops[0]); s.a=regs(ops[1]); s.b=regs(ops[2]); s.c=regs(ops[3]) if len(ops)>3 else set()
            s.vr=s.a|s.b|s.c
        elif mn.startswith('v_'):
            s.kind='valu'
            if mn.startswith('v_cmp'):
                s.sw=regs(ops[0]); src=ops[1:]
            elif mn.startswith('v_readlane') or mn.startswith('v_readfirstlane'):
                s.sw=regs(ops[0]); src=ops[1:]
            elif mn.startswith('v_permlane') :
                s.vw=regs(ops[0])|regs(ops[1]); src=ops
            elif mn.startswith('v_add_co') or mn.startswith('v_addc_co') or mn.startswith('v_sub_co'):
                s.vw=regs(ops[0]); s.sw=regs(ops[1]); src=ops[2:]
            else:
                s.vw=regs(ops[0]); src=ops[1:]
                if mn.startswith('v_fmac') or mn.startswith('v_writelane') or s.dpp or mn.startswith('v_mac'): src=ops
            for o in src:
                r=regs(o)
                s.vr|={x for x in r if x[0]=='v'}; s.sr|={x for x in r if x[0]=='s'}
            if mn.startswith('v_cndmask') and len(ops)==3: s.sr|={('s','vcc')}
        elif mn.startswith('buffer_') or mn.startswith('global_') or mn.startswith('flat_'):
            s.kind='vmem'
            isload='load' in mn; lds=' lds' in (' '+mods) or 'load_lds' in mn
            s.lds=lds
            allr=set()
            for o in ops: allr|=regs(o)
            if isload and not lds:
                s.vw=regs(ops[0]); rest_=set()
                for o in ops[1:]: rest_|=regs(o)
                s.vr={x for x in rest_ if x[0]=='v'}; s.sr={x for x in rest_ if x[0]=='s'}
            else:
                s.vr={x for x in allr if x[0]=='v'}; s.sr={x for x in allr if x[0]=='s'}
            if lds: s.sr|={('s','m0')}
            s.wide_store = ('store' in mn) and (mn.endswith('x3') or mn.endswith('x4'))
            if s.wide_store:
                s.sdata = regs(ops[0]) if mn.startswith('buffer_') else regs(ops[1])
        elif mn.startswith('ds_'):
            s.kind='ds'
            if 'read' in mn or 'bpermute' in mn or 'swizzle' in mn:
                s.vw=regs(ops[0]); r=set()
                for o in ops[1:]: r|=regs(o)
                s.vr=r
            else:
                r=set()
                for o in ops: r|=regs(o)
                s.vr=r
        elif mn.startswith('s_'):
            s.kind='salu'
            if mn=='s_nop': s.kind='nop'; s.n=int(ops[0],0)+1
            elif ops and not mn.startswith('s_cmp') and not mn.startswith('s_cbranch') and not mn.startswith('s_branch') and not mn.startswith('s_waitcnt') and not mn.startswith('s_bitcmp'):
                s.sw=regs(ops[0])
                if 'saveexec' in mn: s.sw|={('s','exec')}
        else:
            s.kind='other'
def need(prev,cur):
    n=0
    if prev.kind=='valu':
        w=prev.vw
        if cur.kind=='mfma' and (w & cur.vr): n=max(n,2)
        if cur.kind=='valu':
            if cur.dpp and (w & cur.vr): n=max(n,2)
            if cur.mn.startswith('v_permlane') and (w & (cur.vr|cur.vw)): n=max(n,2)
            if (cur.mn.startswith('v_readlane') or cur.mn.startswith('v_readfirstlane')) and (w & cur.vr): n=max(n,1)
            if prev.mn.replace('_e32','').replace('_e64','') in TRANS and (w & cur.vr): n=max(n,1)
            if prev.sw & cur.sr:
                n=max(n,4 if (cur.mn.startswith('v_readlane') or cur.mn.startswith('v_writelane')) else 2)
        if cur.kind=='vmem' and (prev.sw & cur.sr): n=max(n,5)
        if cur.kind=='salu' and prev.sw and any((x in prev.sw) for tok in cur.ops for x in regs(tok)): n=max(n,1)
    if prev.kind=='mfma':
        d=prev.vw
        if cur.kind=='mfma':
            if d & (cur.a|cur.b): n=max(n,8)
            if (d & cur.c) and cur.c!=d: n=max(n,6)
            if (d & cur.vw) and not (cur.c==d and cur.vw==d): n=max(n,8)
        elif cur.kind in('valu','vmem','ds'):
            if d & (cur.vr|cur.vw): n=max(n,8)
        if cur.kind=='valu' and (prev.c & cur.vw): n=max(n,3)
    if prev.kind=='vmem' and getattr(prev,'wide_store',False):
        if cur.kind in('valu','mfma') and (prev.sdata & cur.vw): n=max(n,2)
        if cur.kind in('ds','vmem') and (prev.sdata & cur.vw): n=max(n,1)
    if prev.kind=='salu' and ('s','m0') in prev.sw and cur.kind=='vmem' and getattr(cur,'lds',False): n=max(n,1)
    return n
def fix(lines, verbose=False):
    out=[]; hist=[]
    added=0
    for ln in lines:
        c=I(ln)
        if c.kind=='none':
            out.append(ln); continue
        dist=0; req=0
        for p in reversed(hist):
            r=need(p,c)
            if r>dist: req=max(req,r-dist)
            dist+= p.n if p.kind=='nop' else 1
            if dist>=12: break
        if req>0 and c.kind!='nop':
            k=req
            while k>0:
                m=min(k,16); t=f'    s_nop {m-1}    ; auto'
                out.append(t); hist.append(I(t)); k-=m
            added+=req
        out.append(ln); hist.append(c)
        if len(hist)>40: hist=hist[-20:]
    return out, added
```

```python
import sys
from asmlib import *
import haz
opt=dict(a.split('=') for a in sys.argv[2:])
STAMPS=int(opt.get('stamps',0))
NT=opt.get('nt','nt'); NTW=opt.get('ntw','nt')
ROLE=opt.get('role','xcd')
FORCESLOW=int(opt.get('slow',0))
SPIN=int(opt.get('spin',1<<17))
a=Asm()
QB=0x00000; GUB=0x08000; MLB=0x10000; D1B=0x14000; OB=0x40000
CLEAN_PER_WG=3072
STAMP_OFF=0x10000000
LV=0; LW=65536; SB=131072
LX=SB; LONES=SB+1024; LPART=SB+2048; LPL=SB+4864; LML=SB+6912; LP3=SB+7168; LHB=SB+8704; LP5=SB+9216; LFAST=SB+10752
LDS_BYTES=SB+11264
sW,sC,sR,sB,sS=3,4,5,6,7
SRD_K,SRD_V,SRD_WQ,SRD_WO,SRD_WGU,SRD_WD,SRD_WS,SRD_DBG,SRD_OUT,SRD_X=32,36,40,44,48,52,56,60,64,68
sL,sFAST,sOQ,sOML,sOD1,sOD2,sOO,sSPIN,s4096,sCS=72,73,76,77,78,79,80,81,82,83
sT0,sT1=84,85
mI4,mEVEN,mI0=86,88,90
sT2,sT3=92,93
sNL2E=94; sGRP=95; sT4,sT5=96,97; sSTP=98
def srd(n): return f's[{n}:{n+3}]'
vTID,vL,vI,vG=0,1,2,3
(vXw,vXr,vPw,vPr,vDrd,vDwr,vQrd,vQwr,vGUwr,vGUrd,vOwr,vOrd,vMLwr,vMLrd,vPLw,vPLr,vMLw,vMLr,vP3w,vP3r,vHw,vHr,vP5w,vP5r,vSh,vX,vSTAMP,vWN0,vWN1,vVr)=range(4,34)
vKo,vVoE,vVoO,vWqo,vWoo,vWguo,vWdo=range(34,41)
T=44
RK,RV,RWQ,RWO,RWG,RWD=128,160,192,208,224,240
def v(n): return f'v{n}'
def vr(n,k): return f'v[{n}:{n+k-1}]'
nstamp=[0]; stamp_names=[]
def stamp(name):
    if not STAMPS: return
    i=nstamp[0]; nstamp[0]+=1; stamp_names.append(name)
    a(f's_memtime s[{sSTP}:{sSTP+1}]\ns_mul_i32 m0, s{sL}, 30\ns_add_u32 m0, m0, {i+2}\ns_waitcnt lgkmcnt(0)\nv_writelane_b32 {v(vSTAMP)}, s{sSTP}, m0')
uid=[0]
def lbl(p):
    uid[0]+=1; return f'L_{p}_{uid[0]}'
def spin_check(retry):
    a(f's_add_u32 s{sSPIN}, s{sSPIN}, 1\ns_cmp_lt_u32 s{sSPIN}, {SPIN}\ns_cbranch_scc1 {retry}\ns_branch L_bail')
def check_valid(regs_, ok, tmp):
    rs=list(regs_)
    if len(rs)==2:
        a(f'v_max_u32 {v(tmp)}, {v(rs[0])}, {v(rs[1])}')
    else:
        a(f'v_max3_u32 {v(tmp)}, {v(rs[0])}, {v(rs[1])}, {v(rs[2])}')
        k=3; alt=[tmp,tmp+1]; used2=False
        if len(rs)>=8:
            a(f'v_max3_u32 {v(tmp+1)}, {v(rs[3])}, {v(rs[4])}, {v(rs[5])}'); k=6; used2=True
        tog=0
        while k<len(rs):
            d=alt[tog%2] if used2 else tmp
            if k+1<len(rs):
                a(f'v_max3_u32 {v(d)}, {v(d)}, {v(rs[k])}, {v(rs[k+1])}'); k+=2
            else:
                a(f'v_max_u32 {v(d)}, {v(d)}, {v(rs[k])}'); k+=1
            tog+=1
        if used2: a(f'v_max_u32 {v(tmp)}, {v(tmp)}, {v(tmp+1)}')
    a(f'v_cmp_eq_u32 vcc, -1, {v(tmp)}')
    a(f's_cbranch_vccz {ok}')
def exec_all(): a('s_mov_b64 exec, -1')
def exec_mask(m): a(f's_mov_b64 exec, s[{m}:{m+1}]')
def pub_store(instr):
    l1=lbl('pubs'); l2=lbl('pubd')
    a(f's_cmp_eq_u32 s{sFAST}, 0\ns_cbranch_scc1 {l1}')
    a(instr); a(f's_branch {l2}'); a(f'{l1}:'); a(instr+' sc1'); a(f'{l2}:')

a(f'''
s_cmp_ge_u32 s2, 256
s_cbranch_scc1 L_end
s_load_dwordx16 s[8:23], s[0:1], 0
s_load_dwordx8 s[24:31], s[0:1], 64
''')
if STAMPS:
    a(f's_memrealtime s[{sT4}:{sT5}]\ns_memtime s[{sSTP}:{sSTP+1}]')
a(f'''
v_lshrrev_b32 {v(T)}, 6, v0
v_and_b32 {v(vL)}, 63, v0
v_and_b32 {v(vI)}, 15, v0
v_readfirstlane_b32 s{sW}, {v(T)}
v_lshrrev_b32 {v(vG)}, 4, {v(vL)}
''')
if ROLE=='xcd':
    a(f's_and_b32 s{sC}, s2, 7\ns_lshr_b32 s{sR}, s2, 3')
else:
    a(f's_lshr_b32 s{sC}, s2, 3\ns_and_b32 s{sC}, s{sC}, 7\ns_and_b32 s{sR}, s2, 7\ns_lshr_b32 s{sT0}, s2, 6\ns_lshl_b32 s{sT0}, s{sT0}, 3\ns_or_b32 s{sR}, s{sR}, s{sT0}')
a(f'''
s_lshr_b32 s{sB}, s{sR}, 4
s_and_b32 s{sS}, s{sR}, 15
s_lshl_b32 s{sGRP}, s{sB}, 3
s_add_u32 s{sGRP}, s{sGRP}, s{sC}       ; grp = b*8+c
s_mov_b32 s{s4096}, 4096
s_mov_b32 s{sL}, 0
''')
a(f'''
v_lshrrev_b32 {v(T)}, 2, {v(vL)}
v_and_b32 {v(T+1)}, 3, {v(vL)}
v_lshrrev_b32 {v(T+2)}, 5, {v(vL)}
v_lshlrev_b32 {v(T+2)}, 1, {v(T+2)}
v_xor_b32 {v(T+1)}, {v(T+1)}, {v(T+2)}
v_lshlrev_b32 {v(T+1)}, 4, {v(T+1)}          ; chunk*16
s_lshl_b32 s{sT0}, s{sW}, 6
v_add_u32 {v(T+2)}, s{sT0}, {v(T)}           ; row = 64w + l/4
v_lshl_add_u32 {v(vWqo)}, {v(T+2)}, 13, {v(T+1)}
v_lshl_add_u32 {v(vWoo)}, {v(T+2)}, 10, {v(T+1)}
s_mov_b32 s{sT1}, 3584
v_mul_lo_u32 {v(T+3)}, {v(T+2)}, s{sT1}
v_add_u32 {v(vWguo)}, {v(T+3)}, {v(T+1)}
s_lshl_b32 s{sT0}, s{sW}, 5
v_add_u32 {v(T+2)}, s{sT0}, {v(T)}           ; row = 32w + l/4
v_lshl_add_u32 {v(vWdo)}, {v(T+2)}, 10, {v(T+1)}
v_lshlrev_b32 {v(T+4)}, 1, v0
''')
if STAMPS:
    a(f's_waitcnt lgkmcnt(0)\nv_mov_b32 {v(vSTAMP)}, 0\nv_writelane_b32 {v(vSTAMP)}, s{sT4}, 0\nv_writelane_b32 {v(vSTAMP)}, s{sSTP}, 1')
a('s_waitcnt lgkmcnt(0)')
a(f'''
s_lshl_b32 s{sT0}, s{sB}, 10
s_add_u32 s{SRD_X}, s8, s{sT0}
s_addc_u32 s{SRD_X+1}, s9, 0
s_mov_b32 s{SRD_X+2}, 1024
s_mov_b32 s{SRD_X+3}, 0x20000
s_lshl_b32 s{sT0}, s{sC}, 10
s_lshl_b32 s{sT1}, s{sS}, 6
s_add_u32 s{sT0}, s{sT0}, s{sT1}
s_add_u32 s{SRD_WQ}, s14, s{sT0}
s_addc_u32 s{SRD_WQ+1}, s15, 0
s_sub_u32 s{SRD_WQ+2}, 4194304, s{sT0}
s_mov_b32 s{SRD_WQ+3}, 0x20000
buffer_load_ushort {v(vX)}, {v(T+4)}, {srd(SRD_X)}, 0 offen
''')
def w_dma(srd_, voff, slot, nins, rowstride, nt):
    a(f's_lshl_b32 s{sT0}, s{sW}, 13\ns_add_u32 m0, s{sT0}, {LW+slot*4096}')
    for n in range(nins):
        if n==0:
            a('s_nop 0'); so='0'
        else:
            a(f's_mov_b32 s{sT1}, {n*(16*rowstride-1024)}'); so=f's{sT1}'
        a(f'buffer_load_dwordx4 {v(voff)}, {srd(srd_)}, {so} offen offset:{n*1024} {nt} lds')
def w_tr(dst, slot, nkk):
    for kk in range(nkk):
        for nt_ in range(2):
            for hh in range(2):
                r=dst+(kk*2+nt_)*4+hh*2
                a(f'ds_read_b64_tr_b16 {vr(r,2)}, {v(vWN0 if nt_==0 else vWN1)} offset:{slot*4096+kk*2048+hh*256}')
w_dma(SRD_WQ, vWqo, 0, 4, 8192, NTW)
a(f'''
s_lshl_b32 s{sT0}, s{sGRP}, 23
s_lshl_b32 s{sT1}, s{sS}, 16
s_add_u32 s{sT0}, s{sT0}, s{sT1}
s_add_u32 s{sT0}, s{sT0}, 7340032
s_add_u32 s{SRD_V}, s12, s{sT0}
s_addc_u32 s{SRD_V+1}, s13, 0
s_mov_b32 s{SRD_V+2}, 65536
s_mov_b32 s{SRD_V+3}, 0x20000
s_add_u32 s{SRD_K}, s10, s{sT0}
s_addc_u32 s{SRD_K+1}, s11, 0
s_mov_b32 s{SRD_K+2}, 65536
s_mov_b32 s{SRD_K+3}, 0x20000
s_mov_b32 s{SRD_WS}, s30
s_mov_b32 s{SRD_WS+1}, s31
s_mov_b32 s{SRD_WS+2}, 0x20000000
s_mov_b32 s{SRD_WS+3}, 0x20000
; K voffset = w*8192 + i*256 + g*16
s_lshl_b32 s{sT0}, s{sW}, 13
v_lshlrev_b32 {v(T)}, 8, {v(vI)}
v_lshl_add_u32 {v(T)}, {v(vG)}, 4, {v(T)}
v_add_u32 {v(vKo)}, s{sT0}, {v(T)}
v_lshlrev_b32 {v(T)}, 1, {v(vG)}
v_xor_b32 {v(T)}, {v(T)}, {v(vI)}
v_lshlrev_b32 {v(T)}, 4, {v(T)}
v_lshl_add_u32 {v(vVoE)}, {v(vG)}, 8, {v(T)}
v_xor_b32 {v(vVoO)}, 128, {v(vVoE)}
''')
def k_tile(t):
    for kk in range(4):
        r=RK+(t*4+kk)*4
        so='0' if t==0 else f's{s4096}'
        a(f'buffer_load_dwordx4 {vr(r,4)}, {v(vKo)}, {srd(SRD_K)}, {so} offen offset:{kk*64} {NT}')
def k_first():
    l1=lbl('kf'); l2=lbl('kfd')
    a(f's_add_u32 s{sT0}, s{sW}, s{sS}\ns_bitcmp1_b32 s{sT0}, 0\ns_cbranch_scc1 {l1}')
    k_tile(0); a(f's_branch {l2}\n{l1}:'); k_tile(1); a(f'{l2}:')
def k_second():
    l1=lbl('ks'); l2=lbl('ksd')
    a(f's_add_u32 s{sT0}, s{sW}, s{sS}\ns_bitcmp1_b32 s{sT0}, 0\ns_cbranch_scc1 {l1}')
    k_tile(1); a(f's_branch {l2}\n{l1}:'); k_tile(0); a(f'{l2}:')
a(f's_cmp_eq_u32 s{sW}, 7\ns_cbranch_scc1 L_proto')
a(f's_cmp_ge_u32 s{sW}, 4\ns_cbranch_scc1 L_k_early')
a(f's_add_u32 s{sT2}, s{sW}, s{sS}\ns_lshl_b32 s{sT2}, s{sT2}, 1\ns_lshl_b32 s{sT3}, s{sW}, 14')
for n in range(16):
    a(f's_add_u32 s{sT0}, s{sT2}, {n}\ns_and_b32 s{sT0}, s{sT0}, 15\ns_lshl_b32 s{sT0}, s{sT0}, 10\ns_add_u32 s{sT0}, s{sT0}, s{sT3}')
    a(f's_add_u32 m0, s{sT0}, {LV}\ns_nop 0')
    a(f'buffer_load_dwordx4 {v(vVoE if n%2==0 else vVoO)}, {srd(SRD_V)}, s{sT0} offen {NT} lds')
a('s_branch L_pre_p1')
a('L_k_early:')
k_first()
a('s_branch L_pre_p1')
a('L_proto:')
a(f'''
s_setprio 3
s_mov_b32 s{SRD_DBG}, s28
s_mov_b32 s{SRD_DBG+1}, s29
s_mov_b32 s{SRD_DBG+2}, 256
s_mov_b32 s{SRD_DBG+3}, 0x20000
s_mul_i32 s{sT0}, s2, {CLEAN_PER_WG}
v_lshl_add_u32 {v(T)}, {v(vL)}, 4, s{sT0}
v_mov_b32 {v(T+4)}, -1
v_mov_b32 {v(T+5)}, -1
v_mov_b32 {v(T+6)}, -1
v_mov_b32 {v(T+7)}, -1
buffer_store_dwordx4 {vr(T+4,4)}, {v(T)}, {srd(SRD_WS)}, 0 offen sc1
buffer_store_dwordx4 {vr(T+4,4)}, {v(T)}, {srd(SRD_WS)}, 0 offen offset:1024 sc1
buffer_store_dwordx4 {vr(T+4,4)}, {v(T)}, {srd(SRD_WS)}, 0 offen offset:2048 sc1
s_getpc_b64 s[74:75]
L_pc:
s_sub_u32 s74, s74, L_pc-{NAME}
s_subb_u32 s75, s75, 0
s_and_b32 s{sT0}, s{sR}, 7
s_lshl_b32 s{sT0}, s{sT0}, 11
v_and_b32 {v(T+1)}, 15, {v(vL)}
v_lshl_add_u32 {v(T+1)}, {v(T+1)}, 7, s{sT0}
v_min_u32 {v(T+1)}, L_end-{NAME}, {v(T+1)}
global_load_dword {v(T+2)}, {v(T+1)}, s[74:75]
s_getreg_b32 s{sT1}, hwreg(HW_REG_XCC_ID, 0, 4)
s_or_b32 s{sT2}, s{sT1}, 0x80
v_mov_b32 {v(T+3)}, s{sT2}
s_lshl_b32 s{sT0}, s{sGRP}, 4
s_add_u32 s{sT0}, s{sT0}, s{sS}
v_mov_b32 {v(T+8)}, s{sT0}
v_lshlrev_b32 {v(T+9)}, 2, {v(vL)}
s_waitcnt vmcnt(0)
s_mov_b64 exec, 1
buffer_store_byte {v(T+3)}, {v(T+8)}, {srd(SRD_DBG)}, 0 offen sc1
s_mov_b64 exec, -1
s_mov_b32 s{sSPIN}, 0
L_flagpoll:
buffer_load_dword {v(T+10)}, {v(T+9)}, {srd(SRD_DBG)}, 0 offen sc1
s_waitcnt vmcnt(0)
v_and_b32 {v(T+11)}, 0x80808080, {v(T+10)}
v_cmp_ne_u32 vcc, 0x80808080, {v(T+11)}
s_cbranch_vccz L_flagok
''')
spin_check('L_flagpoll')
a(f'''
L_flagok:
s_mul_i32 s{sT2}, s{sT2}, 0x01010101
v_cmp_ne_u32 vcc, s{sT2}, {v(T+10)}
s_lshl_b32 s{sT0}, s{sGRP}, 2
s_lshr_b64 s[{sT2}:{sT3}], vcc, s{sT0}
s_and_b32 s{sT2}, s{sT2}, 15
s_cmp_eq_u32 s{sT2}, 0
s_cselect_b32 s{sT0}, 1, 0
''')
if FORCESLOW: a(f's_mov_b32 s{sT0}, 0')
a(f'''
v_mov_b32 {v(T)}, s{sT0}
v_mov_b32 {v(T+1)}, {LFAST}
ds_write_b32 {v(T+1)}, {v(T)}
s_setprio 0
L_pre_p1:
''')
stamp('issued0')
a(f'''
v_lshlrev_b32 {v(vXw)}, 1, v0
v_add_u32 {v(vXw)}, {LX}, {v(vXw)}
s_lshl_b32 s{sT0}, s{sW}, 7
v_lshl_add_u32 {v(vXr)}, {v(vG)}, 4, s{sT0}
v_add_u32 {v(vXr)}, {LX}, {v(vXr)}
v_cmp_eq_u32 vcc, 1, {v(vI)}
v_add_u32 {v(T)}, 1024, {v(vXr)}
s_lshl_b32 s{sT1}, s{sW}, 3
v_cndmask_b32 {v(vXr)}, {v(vXr)}, {v(T)}, vcc
v_mul_u32_u24 {v(T)}, 80, {v(vI)}
v_add_u32 {v(T)}, s{sT1}, {v(T)}
v_add_u32 {v(vPw)}, {LPART}, {v(T)}
v_min_u32 {v(T)}, 32, {v(vL)}
v_mul_u32_u24 {v(T)}, 80, {v(T)}
v_add_u32 {v(vPr)}, {LPART}, {v(T)}
s_lshl_b32 s{sT0}, s{sW}, 8
v_lshlrev_b32 {v(T)}, 6, {v(vI)}
v_lshl_add_u32 {v(T)}, {v(vG)}, 4, {v(T)}
v_add_u32 {v(T)}, s{sT0}, {v(T)}
v_add_u32 {v(vPLw)}, {LPL}, {v(T)}
v_lshrrev_b32 {v(T)}, 2, {v(vI)}
v_lshlrev_b32 {v(T)}, 6, {v(T)}
v_lshl_add_u32 {v(T)}, {v(vG)}, 4, {v(T)}
v_add_u32 {v(vPLr)}, {LPL}, {v(T)}
v_lshlrev_b32 {v(T)}, 6, {v(vI)}
v_add_u32 {v(T)}, s{sT1}, {v(T)}
v_add_u32 {v(vMLw)}, {LML}, {v(T)}
v_lshlrev_b32 {v(T)}, 6, {v(vG)}
v_add_u32 {v(vMLr)}, {LML}, {v(T)}
v_lshrrev_b32 {v(T)}, 5, {v(vL)}
v_lshl_add_u32 {v(T)}, {v(T)}, 4, {v(vI)}
v_mul_u32_u24 {v(T)}, 48, {v(T)}
s_lshl_b32 s{sT0}, s{sW}, 2
v_add_u32 {v(T)}, s{sT0}, {v(T)}
v_add_u32 {v(vP3w)}, {LP3}, {v(T)}
v_and_b32 {v(T+1)}, 31, {v(vL)}
v_mul_u32_u24 {v(T)}, 48, {v(T+1)}
v_add_u32 {v(vP3r)}, {LP3}, {v(T)}
v_add_u32 {v(vP5r)}, {LP5}, {v(T)}
v_mul_u32_u24 {v(T)}, 48, {v(vI)}
v_add_u32 {v(T)}, s{sT0}, {v(T)}
v_add_u32 {v(vP5w)}, {LP5}, {v(T)}
; H bounce: write LHB + w*64 + (l%32)*2 ; read LHB + w*64 + g*16
s_lshl_b32 s{sT0}, s{sW}, 6
v_lshl_add_u32 {v(T)}, {v(T+1)}, 1, s{sT0}
v_add_u32 {v(vHw)}, {LHB}, {v(T)}
v_lshl_add_u32 {v(T)}, {v(vG)}, 4, s{sT0}
v_add_u32 {v(vHr)}, {LHB}, {v(T)}
v_and_b32 {v(T)}, 1, {v(vL)}
v_lshlrev_b32 {v(T)}, 4, {v(T)}
v_sub_u32 {v(vSh)}, 16, {v(T)}
v_lshrrev_b32 {v(T)}, 2, {v(vI)}
v_lshl_add_u32 {v(T)}, {v(vG)}, 3, {v(T)}
v_lshlrev_b32 {v(T)}, 6, {v(T)}
v_and_b32 {v(T+2)}, 3, {v(vI)}
v_lshrrev_b32 {v(T+3)}, 1, {v(T+2)}
v_and_b32 {v(T+4)}, 1, {v(vG)}
v_lshlrev_b32 {v(T+4)}, 1, {v(T+4)}
v_xor_b32 {v(T+3)}, {v(T+3)}, {v(T+4)}
v_lshl_add_u32 {v(T)}, {v(T+3)}, 4, {v(T)}
v_and_b32 {v(T+3)}, 1, {v(T+2)}
v_lshl_add_u32 {v(T)}, {v(T+3)}, 3, {v(T)}
s_lshl_b32 s{sT0}, s{sW}, 13
s_add_u32 s{sT0}, s{sT0}, {LW}
v_add_u32 {v(vWN0)}, s{sT0}, {v(T)}
v_xor_b32 {v(vWN1)}, 32, {v(vWN0)}
v_lshrrev_b32 {v(T)}, 2, {v(vI)}                 ; r
v_lshl_add_u32 {v(T+3)}, {v(vG)}, 2, {v(T)}      ; 4g+r
v_lshlrev_b32 {v(T+3)}, 8, {v(T+3)}
v_and_b32 {v(T+4)}, 1, {v(vG)}
v_lshlrev_b32 {v(T+4)}, 2, {v(T+4)}
v_add_u32 {v(T+4)}, {v(T+4)}, {v(T)}
v_lshlrev_b32 {v(T+4)}, 1, {v(T+4)}              ; 8*(g&1)+2r
v_lshrrev_b32 {v(T+5)}, 1, {v(T+2)}
s_lshl_b32 s{sT0}, s{sW}, 1
v_add_u32 {v(T+5)}, s{sT0}, {v(T+5)}
v_xor_b32 {v(T+5)}, {v(T+5)}, {v(T+4)}
v_lshl_add_u32 {v(T+3)}, {v(T+5)}, 4, {v(T+3)}
v_and_b32 {v(T+5)}, 1, {v(T+2)}
v_lshl_add_u32 {v(vVr)}, {v(T+5)}, 3, {v(T+3)}
; D read: D1B + b*0x4000 + w*2048 + l*4
s_lshl_b32 s{sT0}, s{sB}, 14
s_lshl_b32 s{sT1}, s{sW}, 11
s_add_u32 s{sT1}, s{sT1}, s{sT0}
s_add_u32 s{sT1}, s{sT1}, {D1B}
v_lshl_add_u32 {v(vDrd)}, {v(vL)}, 2, s{sT1}
; D write: D1B + b*0x4000 + (s/2)*2048 + c*256 + (s%2)*128 + n*4
s_lshr_b32 s{sT1}, s{sS}, 1
s_lshl_b32 s{sT1}, s{sT1}, 11
s_add_u32 s{sT0}, s{sT0}, s{sT1}
s_lshl_b32 s{sT1}, s{sC}, 8
s_add_u32 s{sT0}, s{sT0}, s{sT1}
s_and_b32 s{sT1}, s{sS}, 1
s_lshl_b32 s{sT1}, s{sT1}, 7
s_add_u32 s{sT0}, s{sT0}, s{sT1}
s_add_u32 s{sT0}, s{sT0}, {D1B}
v_lshl_add_u32 {v(vDwr)}, {v(vL)}, 2, s{sT0}
s_lshl_b32 s{sT0}, s{sGRP}, 10
v_and_b32 {v(T)}, 3, {v(vI)}
v_lshlrev_b32 {v(T)}, 8, {v(T)}
v_lshl_add_u32 {v(T)}, {v(vG)}, 4, {v(T)}
v_add_u32 {v(vQrd)}, s{sT0}, {v(T)}
s_lshl_b32 s{sT1}, s{sS}, 6
s_add_u32 s{sT1}, s{sT1}, s{sT0}
v_lshl_add_u32 {v(vQwr)}, {v(vL)}, 1, s{sT1}
; GU write: GUB + grp*1024 + (s<7 ? 64s : 512+64(s-7)) + l*2 ; read: GUB + grp*1024 + (16w + (l%32)/2)*4
s_lshl_b32 s{sT1}, s{sS}, 6
s_add_u32 s{sT2}, s{sT1}, 64
s_cmp_lt_u32 s{sS}, 7
s_cselect_b32 s{sT1}, s{sT1}, s{sT2}
s_add_u32 s{sT1}, s{sT1}, s{sT0}
s_add_u32 s{sT1}, s{sT1}, {GUB}
v_lshl_add_u32 {v(vGUwr)}, {v(vL)}, 1, s{sT1}
v_and_b32 {v(T)}, 30, {v(vL)}
v_lshlrev_b32 {v(T)}, 1, {v(T)}
s_lshl_b32 s{sT1}, s{sW}, 6
s_add_u32 s{sT1}, s{sT1}, s{sT0}
s_add_u32 s{sT1}, s{sT1}, {GUB}
v_add_u32 {v(vGUrd)}, s{sT1}, {v(T)}
s_lshl_b32 s{sT0}, s{sGRP}, 14
s_add_u32 s{sT0}, s{sT0}, {OB}
s_lshl_b32 s{sT1}, s{sS}, 10
s_add_u32 s{sT1}, s{sT1}, s{sT0}
s_lshl_b32 s{sT2}, s{sW}, 5
s_add_u32 s{sT1}, s{sT1}, s{sT2}
v_lshlrev_b32 {v(T)}, 8, {v(vG)}
v_lshl_add_u32 {v(T)}, {v(vI)}, 1, {v(T)}
v_add_u32 {v(vOwr)}, s{sT1}, {v(T)}
s_lshl_b32 s{sT2}, s{sW}, 7
s_add_u32 s{sT1}, s{sT0}, s{sT2}
v_lshlrev_b32 {v(T)}, 10, {v(vI)}
v_lshl_add_u32 {v(T)}, {v(vG)}, 4, {v(T)}
v_add_u32 {v(vOrd)}, s{sT1}, {v(T)}
s_lshl_b32 s{sT0}, s{sGRP}, 9
s_add_u32 s{sT0}, s{sT0}, {MLB}
s_lshl_b32 s{sT1}, s{sS}, 3
s_add_u32 s{sT1}, s{sT1}, s{sT0}
v_lshl_add_u32 {v(vMLwr)}, {v(vG)}, 7, s{sT1}
s_lshr_b32 s{sT1}, s{sW}, 1
s_lshl_b32 s{sT1}, s{sT1}, 7
s_add_u32 s{sT1}, s{sT1}, s{sT0}
v_lshl_add_u32 {v(vMLrd)}, {v(vG)}, 5, s{sT1}
s_mov_b32 s{mI4}, 0x000f000f
s_mov_b32 s{mI4+1}, 0x000f000f
s_mov_b32 s{mEVEN}, 0x55555555
s_mov_b32 s{mEVEN+1}, 0x55555555
s_mov_b32 s{mI0}, 0x00010001
s_mov_b32 s{mI0+1}, 0x00010001
s_mov_b32 s{sCS}, 0x3e0293ee          ; 128^-0.5 * log2(e)
s_mov_b32 s{sNL2E}, 0xbfb8aa3b        ; -log2(e)
s_mov_b32 s{sL}, 0
s_mov_b32 s{sOQ}, 0
s_mov_b32 s{sOML}, 0
s_mov_b32 s{sOD1}, 0
s_mov_b32 s{sOD2}, 0x10000
s_mov_b32 s{sOO}, 0
s_mov_b32 s{sSPIN}, 0
s_lshl_b32 s{sT0}, s{sC}, 19
s_lshl_b32 s{sT1}, s{sS}, 6
s_add_u32 s{sT0}, s{sT0}, s{sT1}
s_add_u32 s{SRD_WO}, s16, s{sT0}
s_addc_u32 s{SRD_WO+1}, s17, 0
s_sub_u32 s{SRD_WO+2}, 4194304, s{sT0}
s_mov_b32 s{SRD_WO+3}, 0x20000
s_mul_i32 s{sT0}, s{sC}, 229376
s_add_u32 s{sT0}, s{sT0}, s{sT1}
s_add_u32 s{SRD_WD}, s24, s{sT0}
s_addc_u32 s{SRD_WD+1}, s25, 0
s_sub_u32 s{SRD_WD+2}, 1835008, s{sT0}
s_mov_b32 s{SRD_WD+3}, 0x20000
s_mul_i32 s{sT0}, s{sC}, 448
s_sub_u32 s{sT2}, s{sT1}, 448
s_cmp_lt_u32 s{sS}, 7
s_cselect_b32 s{sT1}, s{sT1}, s{sT2}
s_cselect_b32 s{sT2}, s20, s22
s_cselect_b32 s{sT3}, s21, s23
s_add_u32 s{sT0}, s{sT0}, s{sT1}
s_add_u32 s{SRD_WGU}, s{sT2}, s{sT0}
s_addc_u32 s{SRD_WGU+1}, s{sT3}, 0
s_sub_u32 s{SRD_WGU+2}, 1835008, s{sT0}
s_mov_b32 s{SRD_WGU+3}, 0x20000
s_mov_b32 s{SRD_OUT}, s26
s_mov_b32 s{SRD_OUT+1}, s27
s_mov_b32 s{SRD_OUT+2}, 2048
s_mov_b32 s{SRD_OUT+3}, 0x20000
v_mov_b32 {v(T)}, 0x3f80
ds_write_b16 {v(vXw)}, {v(T)} offset:1024
''')
a(f'''
s_cmp_ge_u32 s{sW}, 4
s_cbranch_scc1 L_wq_w47
s_waitcnt vmcnt(16)
s_branch L_wq_landed
L_wq_w47:
s_waitcnt vmcnt(4)
L_wq_landed:
''')
stamp('wq_landed')
w_tr(RWQ,0,2)
a(f'v_lshlrev_b32 {v(vX)}, 16, {v(vX)}')
a(f'v_lshrrev_b32 {v(T+20)}, 16, {v(vX)}')
def lngemv(W, pub, tag, readfast=False):
    a(f'ds_write_b16 {v(vXw)}, {v(T+20)}')
    a('s_waitcnt lgkmcnt(0)\ns_barrier')
    stamp(tag+'_b1')
    a(f'ds_read_b128 {vr(T,4)}, {v(vXr)}\nds_read_b128 {vr(T+4,4)}, {v(vXr)} offset:64')
    if readfast:
        a(f'v_mov_b32 {v(T+18)}, {LFAST}\nds_read_b32 {v(T+19)}, {v(T+18)}')
    sa,sq=T+16,T+17
    a(f'v_mov_b32 {v(sa)}, {v(vX)}\nv_mul_f32 {v(sq)}, {v(vX)}, {v(vX)}')
    for m in ['quad_perm:[1,0,3,2] row_mask:0xf bank_mask:0xf','quad_perm:[2,3,0,1] row_mask:0xf bank_mask:0xf','row_half_mirror row_mask:0xf bank_mask:0xf','row_mirror row_mask:0xf bank_mask:0xf']:
        a(f'v_add_f32_dpp {v(sa)}, {v(sa)}, {v(sa)} {m}\nv_add_f32_dpp {v(sq)}, {v(sq)}, {v(sq)} {m}')
        if m.startswith('quad_perm:[1'):
            a('s_waitcnt lgkmcnt(0)')
            d0,d1=T+8,T+12
            if readfast: a(f'v_readfirstlane_b32 s{sFAST}, {v(T+19)}')
            a(f'v_mfma_f32_16x16x32_bf16 {vr(d0,4)}, {vr(T,4)}, {vr(W,4)}, 0')
            a(f'v_mfma_f32_16x16x32_bf16 {vr(d1,4)}, {vr(T,4)}, {vr(W+4,4)}, 0')
            a(f'v_mfma_f32_16x16x32_bf16 {vr(d0,4)}, {vr(T+4,4)}, {vr(W+8,4)}, {vr(d0,4)}')
            a(f'v_mfma_f32_16x16x32_bf16 {vr(d1,4)}, {vr(T+4,4)}, {vr(W+12,4)}, {vr(d1,4)}')
    for m in ['row_bcast:15 row_mask:0xa bank_mask:0xf','row_bcast:31 row_mask:0xc bank_mask:0xf']:
        a(f'v_add_f32_dpp {v(sa)}, {v(sa)}, {v(sa)} {m}\nv_add_f32_dpp {v(sq)}, {v(sq)}, {v(sq)} {m}')
    a('s_mov_b64 exec, 0xffff')
    a(f'ds_write_b64 {v(vPw)}, {vr(T+8,2)}\nds_write_b64 {v(vPw)}, {vr(T+12,2)} offset:{16*80}')
    a('s_mov_b32 exec_lo, 0\ns_mov_b32 exec_hi, 0x80000000')
    a(f'ds_write_b64 {v(vPw)}, {vr(sa,2)} offset:{17*80}')
    exec_all()
    a('s_waitcnt lgkmcnt(0)\ns_barrier')
    stamp(tag+'_b2')
    done=lbl('lng_done')
    a(f's_cmp_lg_u32 s{sW}, 0\ns_cbranch_scc1 {done}')
    for k in range(4): a(f'ds_read_b128 {vr(T+4*k,4)}, {v(vPr)} offset:{16*k}')
    a('s_waitcnt lgkmcnt(0)')
    a(f'''v_pk_add_f32 {vr(T,2)}, {vr(T,2)}, {vr(T+2,2)}
v_pk_add_f32 {vr(T+4,2)}, {vr(T+4,2)}, {vr(T+6,2)}
v_pk_add_f32 {vr(T+8,2)}, {vr(T+8,2)}, {vr(T+10,2)}
v_pk_add_f32 {vr(T+12,2)}, {vr(T+12,2)}, {vr(T+14,2)}
v_pk_add_f32 {vr(T,2)}, {vr(T,2)}, {vr(T+4,2)}
v_pk_add_f32 {vr(T+8,2)}, {vr(T+8,2)}, {vr(T+12,2)}
v_pk_add_f32 {vr(T,2)}, {vr(T,2)}, {vr(T+8,2)}
v_mul_f32 {v(T+2)}, 0x3b000000, {v(T)}          ; mean
v_mul_f32 {v(T+3)}, 0x3b000000, {v(T+1)}        ; E[x^2]
v_fma_f32 {v(T+3)}, -{v(T+2)}, {v(T+2)}, {v(T+3)}
v_max_f32 {v(T+3)}, 0, {v(T+3)}
v_add_f32 {v(T+3)}, 0x3727c5ac, {v(T+3)}        ; + 1e-5
v_rsq_f32 {v(T+3)}, {v(T+3)}
v_readlane_b32 s{sT0}, {v(T+2)}, 32
v_readlane_b32 s{sT1}, {v(T+3)}, 32
v_fma_f32 {v(T+4)}, -{v(T+1)}, s{sT0}, {v(T)}
v_mul_f32 {v(T+4)}, s{sT1}, {v(T+4)}
v_mov_b32_dpp {v(T+5)}, {v(T+4)} quad_perm:[1,1,3,3] row_mask:0xf bank_mask:0xf
v_cvt_pk_bf16_f32 {v(T+12)}, {v(T+4)}, {v(T+5)}
v_min_u32 {v(T+12)}, -2, {v(T+12)}
s_mov_b32 exec_lo, 0x55555555
s_mov_b32 exec_hi, 0''')
    pub()
    exec_all()
    a(f'{done}:')
def x_update(srcs):
    s=srcs
    a(f'''v_add_f32 {v(s[0])}, {v(s[0])}, {v(s[1])}
v_add_f32 {v(s[2])}, {v(s[2])}, {v(s[3])}
v_add_f32 {v(s[4])}, {v(s[4])}, {v(s[5])}
v_add_f32 {v(s[6])}, {v(s[6])}, {v(s[7])}
v_add_f32 {v(s[0])}, {v(s[0])}, {v(s[2])}
v_add_f32 {v(s[4])}, {v(s[4])}, {v(s[6])}
v_add_f32 {v(s[0])}, {v(s[0])}, {v(s[4])}
v_cvt_pk_bf16_f32 {v(s[0])}, {v(s[0])}, {v(s[0])}
v_and_b32 {v(s[0])}, 0xffff0000, {v(s[0])}
v_add_f32 {v(vX)}, {v(vX)}, {v(s[0])}
v_cvt_pk_bf16_f32 {v(T+20)}, {v(vX)}, {v(vX)}
v_and_b32 {v(vX)}, 0xffff0000, {v(T+20)}''')
def poll_D(soff, between=None):
    r=lbl('pd_r'); c=lbl('pd_c'); ok=lbl('pd_ok')
    R=list(range(T+24,T+32))
    def issue():
        for p in range(8): a(f'buffer_load_dword {v(R[p])}, {v(vDrd)}, {srd(SRD_WS)}, s{soff} offen offset:{p*256} sc1')
    issue()
    if between: between()
    a(f'{c}:\ns_waitcnt vmcnt(0)')
    check_valid(R, ok, T)
    spin_check(r)
    a(f'{r}:'); issue(); a(f's_branch {c}')
    a(f'{ok}:')
    return R
a('L_layer:')
lngemv(RWQ, lambda: pub_store(f'buffer_store_dword {v(T+12)}, {v(vQwr)}, {srd(SRD_WS)}, s{sOQ} offen'), 'p1', readfast=True)
stamp('p1_done')
a(f's_cmp_lg_u32 s{sL}, 0\ns_cbranch_scc1 L_p2_poll')
a(f's_cmp_ge_u32 s{sW}, 4\ns_cbranch_scc1 L_k47')
k_first(); k_second()
a('s_waitcnt vmcnt(8)')
a('s_branch L_vbar')
a('L_k47:')
a(f's_cmp_eq_u32 s{sW}, 7\ns_cbranch_scc0 L_k46')
k_first()
a('L_k46:')
k_second()
a('L_vbar:')
a('s_barrier')
stamp('v_landed')
for kk in range(8):
    for hh in range(2):
        a(f'ds_read_b64_tr_b16 {vr(RV+kk*4+hh*2,2)}, {v(vVr)} offset:{LV+kk*8192+hh*4096}')
a('L_p2_poll:')
Q=T
def q_issue():
    for kk in range(4): a(f'buffer_load_dwordx4 {vr(Q+4*kk,4)}, {v(vQrd)}, {srd(SRD_WS)}, s{sOQ} offen offset:{kk*64} sc1')
q_issue()
a(f's_cmp_lg_u32 s{sL}, 0\ns_cbranch_scc1 L_q_wait0')
w_dma(SRD_WO, vWoo, 1, 4, 1024, NTW)
a('s_waitcnt vmcnt(4) lgkmcnt(0)')
stamp('k_landed')
a('s_branch L_q_chk')
a('L_q_retry:')
q_issue()
a('L_q_wait0:\ns_waitcnt vmcnt(0)')
a('L_q_chk:')
check_valid(range(Q,Q+16),'L_q_ok',T+16)
spin_check('L_q_retry')
a('L_q_ok:')
stamp('q_ok')
S0,S1=T+16,T+20
for kk in range(4):
    for t,S in ((0,S0),(1,S1)):
        c='0' if kk==0 else vr(S,4)
        a(f'v_mfma_f32_16x16x32_bf16 {vr(S,4)}, {vr(RK+(t*4+kk)*4,4)}, {vr(Q+4*kk,4)}, {c}')
m,m2,tt,ll=T+24,T+25,T+26,T+27
MC,LS=T+28,T+29
a(f'''
v_max3_f32 {v(m)}, {v(S0)}, {v(S0+1)}, {v(S0+2)}
v_max3_f32 {v(m2)}, {v(S1)}, {v(S1+1)}, {v(S1+2)}
v_max3_f32 {v(m)}, {v(m)}, {v(S0+3)}, {v(S1+3)}
v_max_f32 {v(m)}, {v(m)}, {v(m2)}
v_mov_b32 {v(tt)}, {v(m)}
v_permlane16_swap_b32 {v(m)}, {v(tt)}
v_max_f32 {v(m)}, {v(m)}, {v(tt)}
v_mov_b32 {v(tt)}, {v(m)}
v_permlane32_swap_b32 {v(m)}, {v(tt)}
v_max_f32 {v(m)}, {v(m)}, {v(tt)}
v_mul_f32 {v(MC)}, s{sCS}, {v(m)}
''')
P=T+32
for t,S in ((0,S0),(1,S1)):
    for r in range(4): a(f'v_fma_f32 {v(P+4*t+r)}, {v(S+r)}, s{sCS}, -{v(MC)}')
for r in range(8): a(f'v_exp_f32 {v(P+r)}, {v(P+r)}')
PK=T+40
for r in range(4): a(f'v_cvt_pk_bf16_f32 {v(PK+r)}, {v(P+2*r)}, {v(P+2*r+1)}')
exec_mask(mI4)
a(f'ds_write_b128 {v(vPLw)}, {vr(PK,4)}')
exec_all()
a(f'''
v_add_f32 {v(P)}, {v(P)}, {v(P+1)}
v_add_f32 {v(P+2)}, {v(P+2)}, {v(P+3)}
v_add_f32 {v(P+4)}, {v(P+4)}, {v(P+5)}
v_add_f32 {v(P+6)}, {v(P+6)}, {v(P+7)}
v_add_f32 {v(P)}, {v(P)}, {v(P+2)}
v_add_f32 {v(P+4)}, {v(P+4)}, {v(P+6)}
v_add_f32 {v(LS)}, {v(P)}, {v(P+4)}
v_mov_b32 {v(tt)}, {v(LS)}
v_permlane16_swap_b32 {v(LS)}, {v(tt)}
v_add_f32 {v(LS)}, {v(LS)}, {v(tt)}
v_mov_b32 {v(tt)}, {v(LS)}
v_permlane32_swap_b32 {v(LS)}, {v(tt)}
v_add_f32 {v(LS)}, {v(LS)}, {v(tt)}
s_mov_b64 exec, 15
ds_write_b64 {v(vMLw)}, {vr(MC,2)}
s_mov_b64 exec, -1
s_waitcnt lgkmcnt(0)
s_barrier
''')
stamp('p2_bar')
PA=T
MLr=T+32
DO=T+48
for k in range(4): a(f'ds_read_b128 {vr(MLr+4*k,4)}, {v(vMLr)} offset:{16*k}')
for kk in range(8): a(f'ds_read_b128 {vr(PA+4*kk,4)}, {v(vPLr)} offset:{kk*256}')
for kk in range(8):
    a(f's_waitcnt lgkmcnt({7-kk})')
    a(f'v_mfma_f32_16x16x32_bf16 {vr(DO+4*kk,4)}, {vr(PA+4*kk,4)}, {vr(RV+4*kk,4)}, 0')
    if kk==0:
        mc=[MLr+2*k for k in range(8)]
        a(f'''v_max3_f32 {v(T+80)}, {v(mc[0])}, {v(mc[1])}, {v(mc[2])}
v_max3_f32 {v(T+81)}, {v(mc[3])}, {v(mc[4])}, {v(mc[5])}
v_max3_f32 {v(T+80)}, {v(T+80)}, {v(mc[6])}, {v(mc[7])}
v_max_f32 {v(T+80)}, {v(T+80)}, {v(T+81)}''')
    if kk==1:
        for k in range(8): a(f'v_sub_f32 {v(MLr+2*k)}, {v(MLr+2*k)}, {v(T+80)}')
    if kk==3:
        for k in range(8): a(f'v_exp_f32 {v(MLr+2*k)}, {v(MLr+2*k)}')
    if kk==6:
        a(f'v_mul_f32 {v(T+81)}, {v(MLr)}, {v(MLr+1)}')
        for k in range(1,8): a(f'v_fmac_f32 {v(T+81)}, {v(MLr+2*k)}, {v(MLr+2*k+1)}')
OO=T+82
a(f'v_mul_f32 {v(OO)}, {v(MLr)}, {v(DO)}\nv_mul_f32 {v(OO+1)}, {v(MLr+2)}, {v(DO+4)}')
for k in range(2,8,2):
    a(f'v_fmac_f32 {v(OO)}, {v(MLr+2*k)}, {v(DO+4*k)}\nv_fmac_f32 {v(OO+1)}, {v(MLr+2*k+2)}, {v(DO+4*k+4)}')
a(f'''
v_add_f32 {v(OO)}, {v(OO)}, {v(OO+1)}
v_mov_b32_dpp {v(OO+1)}, {v(OO)} quad_perm:[1,1,3,3] row_mask:0xf bank_mask:0xf
v_cvt_pk_bf16_f32 {v(OO)}, {v(OO)}, {v(OO+1)}
v_min_u32 {v(OO)}, -2, {v(OO)}
''')
exec_mask(mEVEN)
pub_store(f'buffer_store_dword {v(OO)}, {v(vOwr)}, {srd(SRD_WS)}, s{sOO} offen')
a(f's_cmp_lg_u32 s{sW}, 0\ns_cbranch_scc1 L_p2_noml')
a(f'v_min_u32 {v(T+80)}, -2, {v(T+80)}\nv_min_u32 {v(T+81)}, -2, {v(T+81)}')
exec_mask(mI0)
pub_store(f'buffer_store_dwordx2 {vr(T+80,2)}, {v(vMLwr)}, {srd(SRD_WS)}, s{sOML} offen')
a('L_p2_noml:')
exec_all()
stamp('p2_done')
A0,A1,ML0=T,T+4,T+8
def o_issue():
    a(f'buffer_load_dwordx4 {vr(A0,4)}, {v(vOrd)}, {srd(SRD_WS)}, s{sOO} offen sc1')
    a(f'buffer_load_dwordx4 {vr(A1,4)}, {v(vOrd)}, {srd(SRD_WS)}, s{sOO} offen offset:64 sc1')
    a(f'buffer_load_dwordx4 {vr(ML0,4)}, {v(vMLrd)}, {srd(SRD_WS)}, s{sOML} offen sc1')
    a(f'buffer_load_dwordx4 {vr(ML0+4,4)}, {v(vMLrd)}, {srd(SRD_WS)}, s{sOML} offen offset:16 sc1')
o_issue()
a(f's_cmp_lg_u32 s{sL}, 0\ns_cbranch_scc1 L_o_wait')
a('s_waitcnt vmcnt(4)')
w_tr(RWO,1,2)
a('s_waitcnt lgkmcnt(0)')
a('s_branch L_o_wait')
a('L_o_retry:')
o_issue()
a('L_o_wait:\ns_waitcnt vmcnt(0)')
check_valid(range(T,T+16),'L_o_ok',T+16)
spin_check('L_o_retry')
a('L_o_ok:')
stamp('o_ok')
a(f's_cmp_lg_u32 s{sL}, 0\ns_cbranch_scc1 L_p3_go\ns_cmp_ge_u32 s{sS}, 14\ns_cbranch_scc1 L_p3_go')
w_dma(SRD_WGU, vWguo, 0, 4, 3584, NTW)
a('L_p3_go:')
E0,E1=T+16,T+20
a(f'v_mfma_f32_16x16x32_bf16 {vr(E0,4)}, {vr(A0,4)}, {vr(RWO,4)}, 0')
a(f'v_mfma_f32_16x16x32_bf16 {vr(E1,4)}, {vr(A0,4)}, {vr(RWO+4,4)}, 0')
a(f'v_mfma_f32_16x16x32_bf16 {vr(E0,4)}, {vr(A1,4)}, {vr(RWO+8,4)}, {vr(E0,4)}')
a(f'v_mfma_f32_16x16x32_bf16 {vr(E1,4)}, {vr(A1,4)}, {vr(RWO+12,4)}, {vr(E1,4)}')
Mx,tt,Lt=T+24,T+25,T+26
M=[ML0,ML0+2,ML0+4,ML0+6]; Lr=[x+1 for x in M]
a(f'''
v_max3_f32 {v(Mx)}, {v(M[0])}, {v(M[1])}, {v(M[2])}
v_max_f32 {v(Mx)}, {v(Mx)}, {v(M[3])}
v_mov_b32 {v(tt)}, {v(Mx)}
v_permlane16_swap_b32 {v(Mx)}, {v(tt)}
v_max_f32 {v(Mx)}, {v(Mx)}, {v(tt)}
v_mov_b32 {v(tt)}, {v(Mx)}
v_permlane32_swap_b32 {v(Mx)}, {v(tt)}
v_max_f32 {v(Mx)}, {v(Mx)}, {v(tt)}
''')
for r in range(4): a(f'v_sub_f32 {v(M[r])}, {v(M[r])}, {v(Mx)}')
for r in range(4): a(f'v_exp_f32 {v(M[r])}, {v(M[r])}')
a(f'v_mul_f32 {v(Lt)}, {v(M[0])}, {v(Lr[0])}')
for r in range(1,4): a(f'v_fmac_f32 {v(Lt)}, {v(M[r])}, {v(Lr[r])}')
Y0,Y1=T+27,T+28
a(f'''
v_mov_b32 {v(tt)}, {v(Lt)}
v_mul_f32 {v(Y0)}, {v(M[0])}, {v(E0)}
v_mul_f32 {v(Y1)}, {v(M[0])}, {v(E1)}
v_permlane16_swap_b32 {v(Lt)}, {v(tt)}
v_add_f32 {v(Lt)}, {v(Lt)}, {v(tt)}
v_fmac_f32 {v(Y0)}, {v(M[1])}, {v(E0+1)}
v_fmac_f32 {v(Y1)}, {v(M[1])}, {v(E1+1)}
v_mov_b32 {v(tt)}, {v(Lt)}
v_fmac_f32 {v(Y0)}, {v(M[2])}, {v(E0+2)}
v_fmac_f32 {v(Y1)}, {v(M[2])}, {v(E1+2)}
v_permlane32_swap_b32 {v(Lt)}, {v(tt)}
v_add_f32 {v(Lt)}, {v(Lt)}, {v(tt)}
v_fmac_f32 {v(Y0)}, {v(M[3])}, {v(E0+3)}
v_fmac_f32 {v(Y1)}, {v(M[3])}, {v(E1+3)}
v_rcp_f32 {v(Lt)}, {v(Lt)}
v_permlane32_swap_b32 {v(Y0)}, {v(Y1)}
v_add_f32 {v(Y0)}, {v(Y0)}, {v(Y1)}
v_mov_b32 {v(tt)}, {v(Y0)}
v_permlane16_swap_b32 {v(Y0)}, {v(tt)}
v_add_f32 {v(Y0)}, {v(Y0)}, {v(tt)}
v_mul_f32 {v(Y0)}, {v(Y0)}, {v(Lt)}
s_mov_b32 exec_lo, 0xffff
s_mov_b32 exec_hi, 0xffff
ds_write_b32 {v(vP3w)}, {v(Y0)}
s_mov_b64 exec, -1
s_waitcnt lgkmcnt(0)
s_barrier
''')
stamp('p3_bar')
def final8(rd, n, soff, lab):
    a(f's_cmp_lg_u32 s{sW}, 0\ns_cbranch_scc1 {lab}')
    a(f'ds_read_b128 {vr(T,4)}, {v(rd)}\nds_read_b128 {vr(T+4,4)}, {v(rd)} offset:16\ns_waitcnt lgkmcnt(0)')
    a(f'''v_add_f32 {v(T)}, {v(T)}, {v(T+1)}
v_add_f32 {v(T+2)}, {v(T+2)}, {v(T+3)}
v_add_f32 {v(T+4)}, {v(T+4)}, {v(T+5)}''')
    if n==8: a(f'v_add_f32 {v(T+6)}, {v(T+6)}, {v(T+7)}')
    a(f'''v_add_f32 {v(T)}, {v(T)}, {v(T+2)}
v_add_f32 {v(T+4)}, {v(T+4)}, {v(T+6)}
v_add_f32 {v(T)}, {v(T)}, {v(T+4)}
v_min_u32 {v(T)}, -2, {v(T)}
s_mov_b32 exec_hi, 0
buffer_store_dword {v(T)}, {v(vDwr)}, {srd(SRD_WS)}, s{soff} offen sc1
s_mov_b64 exec, -1
{lab}:''')
final8(vP3r, 8, sOD1, 'L_p3_done')
stamp('p3_done')
def wgu_tr():
    l=lbl('wgu');
    a(f's_cmp_lg_u32 s{sL}, 0\ns_cbranch_scc1 {l}\ns_cmp_ge_u32 s{sS}, 14\ns_cbranch_scc1 {l}')
    a('s_waitcnt vmcnt(8)')
    w_tr(RWG,0,2)
    a('s_waitcnt lgkmcnt(0)')
    a(f'{l}:')
R=poll_D(sOD1, wgu_tr)
stamp('d1_ok')
a(f's_cmp_lg_u32 s{sL}, 0\ns_cbranch_scc1 L_p4_go\ns_cmp_eq_u32 s{sW}, 7\ns_cbranch_scc1 L_p4_go')
w_dma(SRD_WD, vWdo, 1, 2, 1024, NTW)
a('L_p4_go:')
x_update(R)
a(f's_cmp_ge_u32 s{sS}, 14\ns_cbranch_scc1 L_p4_done')
lngemv(RWG, lambda: pub_store(f'buffer_store_dword {v(T+12)}, {v(vGUwr)}, {srd(SRD_WS)}, s{sOQ} offen'), 'p4')
a('L_p4_done:')
stamp('p4_done')
a(f's_cmp_eq_u32 s{sW}, 7\ns_cbranch_scc1 L_p5_bar')
def gu_issue():
    a(f'buffer_load_dword {v(T)}, {v(vGUrd)}, {srd(SRD_WS)}, s{sOQ} offen sc1')
    a(f'buffer_load_dword {v(T+1)}, {v(vGUrd)}, {srd(SRD_WS)}, s{sOQ} offen offset:512 sc1')
gu_issue()
a(f's_cmp_lg_u32 s{sL}, 0\ns_cbranch_scc1 L_gu_wait')
a('s_waitcnt vmcnt(2)')
w_tr(RWD,1,1)
a('s_waitcnt lgkmcnt(0)')
a('s_branch L_gu_wait')
a('L_gu_retry:')
gu_issue()
a('L_gu_wait:\ns_waitcnt vmcnt(0)')
check_valid([T,T+1],'L_gu_ok',T+2)
spin_check('L_gu_retry')
a('L_gu_ok:')
stamp('gu_ok')
a(f'''
v_lshlrev_b32 {v(T)}, {v(vSh)}, {v(T)}
v_lshlrev_b32 {v(T+1)}, {v(vSh)}, {v(T+1)}
v_and_b32 {v(T)}, 0xffff0000, {v(T)}
v_and_b32 {v(T+1)}, 0xffff0000, {v(T+1)}
v_mul_f32 {v(T)}, s{sNL2E}, {v(T)}
v_exp_f32 {v(T)}, {v(T)}
v_add_f32 {v(T)}, 1.0, {v(T)}
v_rcp_f32 {v(T)}, {v(T)}
v_mul_f32 {v(T)}, {v(T)}, {v(T+1)}
v_cvt_pk_bf16_f32 {v(T)}, {v(T)}, {v(T)}
ds_write_b16 {v(vHw)}, {v(T)}
s_waitcnt lgkmcnt(0)
ds_read_b128 {vr(T+4,4)}, {v(vHr)}
s_waitcnt lgkmcnt(0)
v_mfma_f32_16x16x32_bf16 {vr(T+8,4)}, {vr(T+4,4)}, {vr(RWD,4)}, 0
v_mfma_f32_16x16x32_bf16 {vr(T+12,4)}, {vr(T+4,4)}, {vr(RWD+4,4)}, 0
s_mov_b64 exec, 0xffff
ds_write_b32 {v(vP5w)}, {v(T+8)}
ds_write_b32 {v(vP5w)}, {v(T+12)} offset:{16*48}
s_mov_b64 exec, -1
L_p5_bar:
s_waitcnt lgkmcnt(0)
s_barrier
''')
stamp('p5_bar')
final8(vP5r, 7, sOD2, 'L_p5_done')
stamp('p5_done')
a(f's_cmp_lg_u32 s{sL}, 0\ns_cbranch_scc1 L_final')
R=poll_D(sOD2)
stamp('d2_ok')
x_update(R)
a(f'''
s_mov_b32 s{sL}, 1
s_mov_b32 s{sOQ}, 0x4000
s_mov_b32 s{sOML}, 0x2000
s_mov_b32 s{sOD1}, 0x8000
s_mov_b32 s{sOD2}, 0x18000
s_mov_b32 s{sOO}, 0x40000
s_branch L_layer
''')
a('L_final:')
a(f'''
s_cmp_lg_u32 s{sC}, 0
s_cbranch_scc1 L_fin_stamps
s_lshr_b32 s{sT0}, s{sS}, 1
s_cmp_lg_u32 s{sW}, s{sT0}
s_cbranch_scc1 L_fin_stamps
s_and_b32 s{sT0}, s{sS}, 1
s_cmp_eq_u32 s{sT0}, 0
s_cselect_b32 exec_lo, -1, 0
s_cselect_b32 exec_hi, 0, -1
''')
R=poll_D(sOD2)
x_update(R)
a(f'''
s_lshl_b32 s{sT0}, s{sB}, 10
v_lshl_add_u32 {v(T)}, v0, 1, s{sT0}
buffer_store_short {v(T+20)}, {v(T)}, {srd(SRD_OUT)}, 0 offen
s_mov_b64 exec, -1
L_fin_stamps:
''')
if STAMPS:
    stamp('end')
    a(f'''
s_lshl_b32 s{sT0}, s2, 3
s_add_u32 s{sT0}, s{sT0}, s{sW}
s_lshl_b32 s{sT0}, s{sT0}, 8
s_add_u32 s{sT0}, s{sT0}, {STAMP_OFF}
v_lshl_add_u32 {v(T)}, {v(vL)}, 2, s{sT0}
buffer_store_dword {v(vSTAMP)}, {v(T)}, {srd(SRD_WS)}, 0 offen
''')
a('s_branch L_end')
a('L_bail:')
a('L_end:\ns_endpgm')
lines=a.text().split('\n')
lines,added=haz.fix(lines)
sys.stderr.write(f'auto nops: {added}; stamps: {stamp_names}\n')
open(sys.argv[1],'w').write(wrap('\n'.join(lines),256,512,LDS_BYTES,nvgpr=256,nsgpr=102))
if STAMPS: open(sys.argv[1]+'.stamps','w').write(','.join(stamp_names))
```

```python
import sys
from asmlib import *
import haz
opt=dict(a.split('=') for a in sys.argv[2:])
STAMPS=int(opt.get('stamps',0))
NT=opt.get('nt','nt'); NTW=opt.get('ntw','nt')
ROLE=opt.get('role','xcd')
FORCESLOW=int(opt.get('slow',0))
SPIN=int(opt.get('spin',1<<17))
ACK=int(opt.get('ack',1))
a=Asm()
GRPSZ=0xC000; QB=0x0400; GUB=0x0800; MLB=0x1000; OB=0x2000
D1B=0xC0000
Q0T=0xD0000; FB=0xE0000; EB=0xE1000; EPC=0x9E3779B9
STAMP_OFF=0x10000000
LV=0; LW=65536; SB=131072
LX=SB; LONES=SB+1024; LPART=SB+2048; LPL=SB+4864; LML=SB+6912; LP3=SB+7168; LHB=SB+8704; LP5=SB+9216; LFAST=SB+10752; LQ=SB+11264; LDUM=SB+12288
LDS_BYTES=SB+12288+8192
PF3=opt.get('pf3','q'); ILV=int(opt.get('ilv',0)); PF=int(opt.get('pf',1)); NVA=int(opt.get('nva',4)); NV1=int(opt.get('nv1',0)); PFW=int(opt.get('pfw',0)); QBAR=int(opt.get('qbar',1)); WOLATE=int(opt.get('wolate',1)); WGLATE=int(opt.get('wglate',1)); KBAR=int(opt.get('kbar',1)); NTP=opt.get('ntp','')
sW,sC,sR,sB,sS=3,4,5,6,7
SRD_K,SRD_V,SRD_WQ,SRD_WO,SRD_WGU,SRD_WD,SRD_WS,SRD_OUT,SRD_X=32,36,40,44,48,52,56,64,68
sTAG,sXCC,sOO2=60,61,62
sL,sFAST,sOGU,sOML,sOD1,sOD2,sOO,sSPIN,s4096,sCS=72,73,76,77,78,79,80,81,82,83
sT0,sT1=84,85
mI4,mEVEN,mI0=86,88,90
sT2,sT3=92,93
sNL2E=94; sGRP=95; sT4,sT5=96,97; sSTP=98
def srd(n): return f's[{n}:{n+3}]'
vTID,vL,vI,vG=0,1,2,3
(vXw,vXr,vPw,vPr,vDrd,vDwr,vQrd,vQwr,vGUwr,vGUrd,vOwr,vOrd,vMLwr,vMLrd,vPLw,vPLr,vMLw,vMLr,vP3w,vP3r,vHw,vHr,vP5w,vP5r,vSh,vX,vSTAMP,vWN0,vWN1,vVr)=range(4,34)
vKo,vVoE,vVoO,vWqo,vWoo,vWguo,vWdo,vOst0,vOst1,vQl=range(34,44)
T=44
RK,RV,RWQ,RWO,RWG,RWD,RID=128,160,192,208,224,240,248
def v(n): return f'v{n}'
def vr(n,k): return f'v[{n}:{n+k-1}]'
nstamp=[0]; stamp_names=[]
STSEL=opt.get('stsel','')
def stamp(name):
    if not STAMPS: return
    if STAMPS==2 and name!='end' and name not in STSEL.split(','): return
    i=nstamp[0]; nstamp[0]+=1; stamp_names.append(name)
    a(f's_memtime s[{sSTP}:{sSTP+1}]\ns_mul_i32 m0, s{sL}, 30\ns_add_u32 m0, m0, {i+2}\ns_waitcnt lgkmcnt(0)\nv_writelane_b32 {v(vSTAMP)}, s{sSTP}, m0')
uid=[0]
def lbl(p):
    uid[0]+=1; return f'L_{p}_{uid[0]}'
def spin_check(retry):
    a(f's_add_u32 s{sSPIN}, s{sSPIN}, 1\ns_cmp_lt_u32 s{sSPIN}, {SPIN}\ns_cbranch_scc1 {retry}\ns_branch L_bail')
def check_valid(regs_, ok, tmp):
    rs=list(regs_)
    if len(rs)==2:
        a(f'v_max_u32 {v(tmp)}, {v(rs[0])}, {v(rs[1])}')
    else:
        a(f'v_max3_u32 {v(tmp)}, {v(rs[0])}, {v(rs[1])}, {v(rs[2])}')
        k=3; alt=[tmp,tmp+1]; used2=False
        if len(rs)>=8:
            a(f'v_max3_u32 {v(tmp+1)}, {v(rs[3])}, {v(rs[4])}, {v(rs[5])}'); k=6; used2=True
        tog=0
        while k<len(rs):
            d=alt[tog%2] if used2 else tmp
            if k+1<len(rs):
                a(f'v_max3_u32 {v(d)}, {v(d)}, {v(rs[k])}, {v(rs[k+1])}'); k+=2
            else:
                a(f'v_max_u32 {v(d)}, {v(d)}, {v(rs[k])}'); k+=1
            tog+=1
        if used2: a(f'v_max_u32 {v(tmp)}, {v(tmp)}, {v(tmp+1)}')
    a(f'v_cmp_eq_u32 vcc, -1, {v(tmp)}')
    a(f's_cbranch_vccz {ok}')
def exec_all(): a('s_mov_b64 exec, -1')
def exec_mask(m): a(f's_mov_b64 exec, s[{m}:{m+1}]')
def pub_store(instr):
    l1=lbl('pubs'); l2=lbl('pubd')
    a(f's_cmp_eq_u32 s{sFAST}, 0\ns_cbranch_scc1 {l1}')
    a(instr); a(f's_branch {l2}'); a(f'{l1}:'); a(instr+' sc1'); a(f'{l2}:')
def ack():
    if ACK: a('s_waitcnt vmcnt(0)')

a(f'''
s_cmp_ge_u32 s2, 256
s_cbranch_scc1 L_end
s_load_dwordx16 s[8:23], s[0:1], 0
s_load_dwordx8 s[24:31], s[0:1], 64
''')
if STAMPS:
    a(f's_memrealtime s[{sT4}:{sT5}]\ns_memtime s[{sSTP}:{sSTP+1}]')
a(f'''
v_lshrrev_b32 {v(T)}, 6, v0
v_and_b32 {v(vL)}, 63, v0
v_and_b32 {v(vI)}, 15, v0
v_readfirstlane_b32 s{sW}, {v(T)}
v_lshrrev_b32 {v(vG)}, 4, {v(vL)}
''')
if ROLE=='xcd':
    a(f's_and_b32 s{sC}, s2, 7\ns_lshr_b32 s{sR}, s2, 3')
else:
    a(f's_lshr_b32 s{sC}, s2, 3\ns_and_b32 s{sC}, s{sC}, 7\ns_and_b32 s{sR}, s2, 7\ns_lshr_b32 s{sT0}, s2, 6\ns_lshl_b32 s{sT0}, s{sT0}, 3\ns_or_b32 s{sR}, s{sR}, s{sT0}')
a(f'''
s_lshr_b32 s{sB}, s{sR}, 4
s_and_b32 s{sS}, s{sR}, 15
s_lshl_b32 s{sGRP}, s{sB}, 3
s_add_u32 s{sGRP}, s{sGRP}, s{sC}       ; grp = b*8+c
s_mov_b32 s{s4096}, 4096
s_mov_b32 s{sL}, 0
; weight staging voffsets: row = l/4, chunk = (l%4) ^ (2*(l/32))
v_lshrrev_b32 {v(T)}, 2, {v(vL)}
v_and_b32 {v(T+1)}, 3, {v(vL)}
v_lshrrev_b32 {v(T+2)}, 5, {v(vL)}
v_lshlrev_b32 {v(T+2)}, 1, {v(T+2)}
v_xor_b32 {v(T+1)}, {v(T+1)}, {v(T+2)}
v_lshlrev_b32 {v(T+1)}, 4, {v(T+1)}          ; chunk*16
s_lshl_b32 s{sT0}, s{sW}, 6
v_add_u32 {v(T+2)}, s{sT0}, {v(T)}           ; row = 64w + l/4
v_lshl_add_u32 {v(vWqo)}, {v(T+2)}, 13, {v(T+1)}
v_lshl_add_u32 {v(vWoo)}, {v(T+2)}, 10, {v(T+1)}
s_mov_b32 s{sT1}, 3584
v_mul_lo_u32 {v(T+3)}, {v(T+2)}, s{sT1}
v_add_u32 {v(vWguo)}, {v(T+3)}, {v(T+1)}
s_lshl_b32 s{sT0}, s{sW}, 5
v_add_u32 {v(T+2)}, s{sT0}, {v(T)}           ; row = 32w + l/4
v_lshl_add_u32 {v(vWdo)}, {v(T+2)}, 10, {v(T+1)}
v_lshlrev_b32 {v(T+4)}, 1, v0
''')
if STAMPS:
    a(f's_waitcnt lgkmcnt(0)\nv_mov_b32 {v(vSTAMP)}, 0\nv_writelane_b32 {v(vSTAMP)}, s{sT4}, 0\nv_writelane_b32 {v(vSTAMP)}, s{sSTP}, 1')
a('s_waitcnt lgkmcnt(0)')
a(f'''
s_lshl_b32 s{sT0}, s{sB}, 10
s_add_u32 s{SRD_X}, s8, s{sT0}
s_addc_u32 s{SRD_X+1}, s9, 0
s_mov_b32 s{SRD_X+2}, 1024
s_mov_b32 s{SRD_X+3}, 0x20000
s_lshl_b32 s{sT0}, s{sC}, 10
s_lshl_b32 s{sT1}, s{sS}, 6
s_add_u32 s{sT0}, s{sT0}, s{sT1}
s_add_u32 s{SRD_WQ}, s14, s{sT0}
s_addc_u32 s{SRD_WQ+1}, s15, 0
s_sub_u32 s{SRD_WQ+2}, 4194304, s{sT0}
s_mov_b32 s{SRD_WQ+3}, 0x20000
buffer_load_ushort {v(vX)}, {v(T+4)}, {srd(SRD_X)}, 0 offen
''')
def w_dma(srd_, voff, slot, nins, rowstride, nt):
    a(f's_lshl_b32 s{sT0}, s{sW}, 13\ns_add_u32 m0, s{sT0}, {LW+slot*4096}')
    for n in range(nins):
        if n==0:
            a('s_nop 0'); so='0'
        else:
            a(f's_mov_b32 s{sT1}, {n*(16*rowstride-1024)}'); so=f's{sT1}'
        a(f'buffer_load_dwordx4 {v(voff)}, {srd(srd_)}, {so} offen offset:{n*1024} {nt} lds')
SRD_PF=SRD_X
def pf_setup(ptr_lo, size):
    a(f's_mov_b32 s{SRD_PF}, s{ptr_lo}\ns_mov_b32 s{SRD_PF+1}, s{ptr_lo+1}\ns_mov_b32 s{SRD_PF+2}, {size}\ns_mov_b32 s{SRD_PF+3}, 0x20000')
def pf_m0():
    a(f's_lshl_b32 s{sT0}, s{sW}, 10\ns_add_u32 m0, s{sT0}, {LDUM}')
def pf_load(voff, soff):
    a(f'buffer_load_dwordx4 {v(voff)}, {srd(SRD_PF)}, {soff} offen {NTP} lds')
def pf_wq():
    if not PF: return 0
    pf_setup(14, 4194304); pf_m0()
    a(f's_lshl_b32 s{sT0}, s{sR}, 4\ns_lshl_b32 s{sT1}, s{sW}, 1\ns_add_u32 s{sT0}, s{sT0}, s{sT1}\ns_lshl_b32 s{sT0}, s{sT0}, 13\ns_lshl_b32 s{sT1}, s{sC}, 10\ns_add_u32 s{sT0}, s{sT0}, s{sT1}')
    a(f'v_lshlrev_b32 {v(T+10)}, 4, {v(vL)}')
    pf_load(T+10, f's{sT0}')
    a(f's_add_u32 s{sT0}, s{sT0}, 8192'); pf_load(T+10, f's{sT0}')
    return 2
def pf_wo():
    if not PF: return 0
    pf_setup(16, 4194304); pf_m0()
    a(f's_lshl_b32 s{sT0}, s{sC}, 19\ns_lshl_b32 s{sT1}, s{sR}, 14\ns_add_u32 s{sT0}, s{sT0}, s{sT1}\ns_lshl_b32 s{sT1}, s{sW}, 11\ns_add_u32 s{sT0}, s{sT0}, s{sT1}')
    a(f'v_lshlrev_b32 {v(T+62)}, 4, {v(vL)}')
    pf_load(T+62, f's{sT0}')
    a(f's_add_u32 s{sT0}, s{sT0}, 1024'); pf_load(T+62, f's{sT0}')
    return 2
def pf_wgu():
    if not PF: return 0
    pf_m0()
    a(f's_lshl_b32 s{sT0}, s{sR}, 4\ns_lshl_b32 s{sT1}, s{sW}, 1\ns_add_u32 s{sT0}, s{sT0}, s{sT1}\ns_mul_i32 s{sT0}, s{sT0}, 3584\ns_mul_i32 s{sT1}, s{sC}, 448\ns_add_u32 s{sT2}, s{sT0}, s{sT1}')
    a(f'v_lshrrev_b32 {v(T+62)}, 5, {v(vL)}\nv_mul_u32_u24 {v(T+62)}, 3584, {v(T+62)}\nv_and_b32 {v(T+63)}, 31, {v(vL)}\nv_lshl_add_u32 {v(T+62)}, {v(T+63)}, 4, {v(T+62)}')
    pf_setup(20, 1835008); pf_load(T+62, f's{sT2}')
    pf_setup(22, 1835008); pf_load(T+62, f's{sT2}')
    return 2
def pf_wd():
    if not PF: return 0
    pf_setup(24, 1835008); pf_m0()
    a(f's_mul_i32 s{sT0}, s{sC}, 229376\ns_mul_i32 s{sT1}, s{sR}, 7168\ns_add_u32 s{sT0}, s{sT0}, s{sT1}\ns_lshl_b32 s{sT1}, s{sW}, 10\ns_add_u32 s{sT0}, s{sT0}, s{sT1}')
    a(f'v_lshlrev_b32 {v(T+62)}, 4, {v(vL)}')
    pf_load(T+62, f's{sT0}')
    return 1
def pf3(which, wave, dst):
    if which not in PF3: return
    l=lbl('pf3')
    a(f's_cmp_lg_u32 s{sW}, {wave}\ns_cbranch_scc1 {l}')
    t0,t1=T+60,T+61
    if which=='q':
        pf_setup(14, 4194304)
        a(f'v_and_b32 {v(t0)}, 15, {v(vL)}\ns_lshl_b32 s{sT0}, s{sR}, 4\nv_add_u32 {v(t0)}, s{sT0}, {v(t0)}\nv_lshlrev_b32 {v(t0)}, 13, {v(t0)}\ns_lshl_b32 s{sT0}, s{sC}, 10\ns_add_u32 s{sT0}, s{sT0}, 384')
    elif which=='o':
        pf_setup(16, 4194304)
        a(f'v_and_b32 {v(t0)}, 15, {v(vL)}\ns_lshl_b32 s{sT0}, s{sR}, 4\nv_add_u32 {v(t0)}, s{sT0}, {v(t0)}\nv_lshlrev_b32 {v(t0)}, 10, {v(t0)}\ns_lshl_b32 s{sT0}, s{sC}, 19\ns_add_u32 s{sT0}, s{sT0}, 384')
    elif which=='d':
        pf_setup(24, 1835008)
        a(f'v_and_b32 {v(t0)}, 15, {v(vL)}\nv_min_u32 {v(t0)}, 6, {v(t0)}\ns_mul_i32 s{sT0}, s{sR}, 7\nv_add_u32 {v(t0)}, s{sT0}, {v(t0)}\nv_lshlrev_b32 {v(t0)}, 10, {v(t0)}\ns_mul_i32 s{sT0}, s{sC}, 229376\ns_add_u32 s{sT0}, s{sT0}, 384')
    if which in 'qod':
        a(f'v_lshrrev_b32 {v(t1)}, 4, {v(vL)}\nv_and_b32 {v(t1)}, 1, {v(t1)}\nv_lshl_add_u32 {v(t0)}, {v(t1)}, 6, {v(t0)}')
        a(f's_mov_b32 exec_hi, 0\nbuffer_load_dword {v(dst)}, {v(t0)}, {srd(SRD_PF)}, s{sT0} offen\ns_mov_b32 exec_hi, -1')
    else:
        a(f'''v_and_b32 {v(t0)}, 15, {v(vL)}
s_lshl_b32 s{sT0}, s{sR}, 4
v_add_u32 {v(t0)}, s{sT0}, {v(t0)}
v_mul_u32_u24 {v(t0)}, 28, {v(t0)}
s_mul_i32 s{sT0}, s{sC}, 7
s_lshr_b32 s{sT0}, s{sT0}, 1
v_add_u32 {v(t0)}, s{sT0}, {v(t0)}
v_sub_u32 {v(t1)}, 3, {v(t0)}
v_and_b32 {v(t1)}, 7, {v(t1)}
v_min_u32 {v(t1)}, 4, {v(t1)}
v_add_u32 {v(t0)}, {v(t0)}, {v(t1)}
v_lshlrev_b32 {v(t0)}, 7, {v(t0)}
v_lshrrev_b32 {v(t1)}, 4, {v(vL)}
v_and_b32 {v(t1)}, 1, {v(t1)}
v_lshl_add_u32 {v(t0)}, {v(t1)}, 6, {v(t0)}
s_mov_b32 exec_hi, 0''')
        pf_setup(20, 1835008); a(f'buffer_load_dword {v(dst)}, {v(t0)}, {srd(SRD_PF)}, 0 offen')
        pf_setup(22, 1835008); a(f'buffer_load_dword {v(dst+1)}, {v(t0)}, {srd(SRD_PF)}, 0 offen')
        a('s_mov_b32 exec_hi, -1')
    a(f'{l}:')
def w_tr(dst, slot, nkk):
    for kk in range(nkk):
        for nt_ in range(2):
            for hh in range(2):
                r=dst+(kk*2+nt_)*4+hh*2
                a(f'ds_read_b64_tr_b16 {vr(r,2)}, {v(vWN0 if nt_==0 else vWN1)} offset:{slot*4096+kk*2048+hh*256}')
pf3('q',1,T+41)
NPQ=pf_wq()
if not PFW and not ILV: w_dma(SRD_WQ, vWqo, 0, 4, 8192, NTW)
a(f'''
s_lshl_b32 s{sT0}, s{sGRP}, 23
s_lshl_b32 s{sT1}, s{sS}, 16
s_add_u32 s{sT0}, s{sT0}, s{sT1}
s_add_u32 s{sT0}, s{sT0}, 7340032
s_add_u32 s{SRD_V}, s12, s{sT0}
s_addc_u32 s{SRD_V+1}, s13, 0
s_mov_b32 s{SRD_V+2}, 65536
s_mov_b32 s{SRD_V+3}, 0x20000
s_add_u32 s{SRD_K}, s10, s{sT0}
s_addc_u32 s{SRD_K+1}, s11, 0
s_mov_b32 s{SRD_K+2}, 65536
s_mov_b32 s{SRD_K+3}, 0x20000
s_mov_b32 s{SRD_WS}, s30
s_mov_b32 s{SRD_WS+1}, s31
s_mov_b32 s{SRD_WS+2}, 0x20000000
s_mov_b32 s{SRD_WS+3}, 0x20000
; K voffset = w*8192 + i*256 + g*16
s_lshl_b32 s{sT0}, s{sW}, 13
v_lshlrev_b32 {v(T)}, 8, {v(vI)}
v_lshl_add_u32 {v(T)}, {v(vG)}, 4, {v(T)}
v_add_u32 {v(vKo)}, s{sT0}, {v(T)}
v_lshlrev_b32 {v(T)}, 1, {v(vG)}
v_xor_b32 {v(T)}, {v(T)}, {v(vI)}
v_lshlrev_b32 {v(T)}, 4, {v(T)}
v_lshl_add_u32 {v(vVoE)}, {v(vG)}, 8, {v(T)}
v_xor_b32 {v(vVoO)}, 128, {v(vVoE)}
''')
def k_tile(t):
    for kk in range(4):
        r=RK+(t*4+kk)*4
        so='0' if t==0 else f's{s4096}'
        a(f'buffer_load_dwordx4 {vr(r,4)}, {v(vKo)}, {srd(SRD_K)}, {so} offen offset:{kk*64} {NT}')
def k_first():
    l1=lbl('kf'); l2=lbl('kfd')
    a(f's_add_u32 s{sT0}, s{sW}, s{sS}\ns_bitcmp1_b32 s{sT0}, 0\ns_cbranch_scc1 {l1}')
    k_tile(0); a(f's_branch {l2}\n{l1}:'); k_tile(1); a(f'{l2}:')
def k_second():
    l1=lbl('ks'); l2=lbl('ksd')
    a(f's_add_u32 s{sT0}, s{sW}, s{sS}\ns_bitcmp1_b32 s{sT0}, 0\ns_cbranch_scc1 {l1}')
    k_tile(1); a(f's_branch {l2}\n{l1}:'); k_tile(0); a(f'{l2}:')
def e_load(dst):
    a(f's_lshl_b32 s{sT0}, s{sB}, 7\ns_add_u32 s{sT0}, s{sT0}, {EB}\nv_mov_b32 {v(dst)}, s{sT0}\nbuffer_load_dword {v(dst)}, {v(dst)}, {srd(SRD_WS)}, 0 offen sc1')
vE=T+30
def v_dma(n0,n1):
    a(f's_add_u32 s{sT2}, s{sW}, s{sS}\ns_and_b32 s{sT2}, s{sT2}, 3\ns_lshl_b32 s{sT2}, s{sT2}, 1\ns_lshl_b32 s{sT3}, s{sW}, 13')
    for n in range(n0,n1):
        a(f's_add_u32 s{sT0}, s{sT2}, {n}\ns_and_b32 s{sT0}, s{sT0}, 7\ns_lshl_b32 s{sT0}, s{sT0}, 10\ns_add_u32 s{sT0}, s{sT0}, s{sT3}')
        a(f's_add_u32 m0, s{sT0}, {LV}\ns_nop 0')
        a(f'buffer_load_dwordx4 {v(vVoE if n%2==0 else vVoO)}, {srd(SRD_V)}, s{sT0} offen {NT} lds')
def wq_one(n):
    a(f's_lshl_b32 s{sT0}, s{sW}, 13\ns_add_u32 m0, s{sT0}, {LW}\ns_mov_b32 s{sT1}, {n*(16*8192-1024)}')
    a(f'buffer_load_dwordx4 {v(vWqo)}, {srd(SRD_WQ)}, s{sT1} offen offset:{n*1024} {NTW} lds')
def ilv_issue():
    nv=0
    for n in range(4):
        wq_one(n)
        k=min(ILV, NVA-nv) if n<3 else NVA-nv
        v_dma(nv,nv+k); nv+=k
    return k
if ILV:
    a(f's_cmp_eq_u32 s{sW}, 0\ns_cbranch_scc1 L_proto')
    a(f's_cmp_lg_u32 s{sW}, 7\ns_cbranch_scc1 L_va')
    e_load(vE)
    a('L_va:')
    NTAIL=ilv_issue()
    a('s_branch L_pre_p1')
elif PFW:
    v_dma(0,NV1)
    a(f's_waitcnt vmcnt({NV1})')
    w_dma(SRD_WQ, vWqo, 0, 4, 8192, NTW)
else:
    v_dma(0,NV1)
if not ILV:
    if QBAR: a('s_barrier')
    a(f's_cmp_eq_u32 s{sW}, 0\ns_cbranch_scc1 L_proto')
    a(f's_cmp_lg_u32 s{sW}, 7\ns_cbranch_scc1 L_va')
    e_load(vE)
    a('L_va:')
    v_dma(NV1,NVA)
    a('s_branch L_pre_p1')
    NTAIL=NVA-NV1
a('L_proto:')
e_load(vE)
a(f'''
s_mul_i32 s{sT0}, s{sGRP}, {GRPSZ}
s_mul_i32 s{sT1}, s{sS}, 3072
s_add_u32 s{sT0}, s{sT0}, s{sT1}
v_lshl_add_u32 {v(T)}, {v(vL)}, 4, s{sT0}
v_mov_b32 {v(T+4)}, -1
v_mov_b32 {v(T+5)}, -1
v_mov_b32 {v(T+6)}, -1
v_mov_b32 {v(T+7)}, -1
buffer_store_dwordx4 {vr(T+4,4)}, {v(T)}, {srd(SRD_WS)}, 0 offen sc1
buffer_store_dwordx4 {vr(T+4,4)}, {v(T)}, {srd(SRD_WS)}, 0 offen offset:1024 sc1
buffer_store_dwordx4 {vr(T+4,4)}, {v(T)}, {srd(SRD_WS)}, 0 offen offset:2048 sc1
; my four 64-byte partial-sum pieces: D1B + b*0x2000 + (s/2)*1024 + c*128 + (s%2)*64 + (l>>2)*0x4000 + (l&3)*16
s_lshl_b32 s{sT0}, s{sB}, 13
s_lshr_b32 s{sT1}, s{sS}, 1
s_lshl_b32 s{sT1}, s{sT1}, 10
s_add_u32 s{sT0}, s{sT0}, s{sT1}
s_lshl_b32 s{sT1}, s{sC}, 7
s_add_u32 s{sT0}, s{sT0}, s{sT1}
s_and_b32 s{sT1}, s{sS}, 1
s_lshl_b32 s{sT1}, s{sT1}, 6
s_add_u32 s{sT0}, s{sT0}, s{sT1}
s_add_u32 s{sT0}, s{sT0}, {D1B}
v_lshrrev_b32 {v(T+1)}, 2, {v(vL)}
v_lshlrev_b32 {v(T+1)}, 14, {v(T+1)}
v_and_b32 {v(T+2)}, 3, {v(vL)}
v_lshl_add_u32 {v(T+1)}, {v(T+2)}, 4, {v(T+1)}
v_add_u32 {v(T+1)}, s{sT0}, {v(T+1)}
s_mov_b64 exec, 0xffff
buffer_store_dwordx4 {vr(T+4,4)}, {v(T+1)}, {srd(SRD_WS)}, 0 offen sc1
s_mov_b64 exec, -1
s_getpc_b64 s[74:75]
L_pc:
s_sub_u32 s74, s74, L_pc-{NAME}
s_subb_u32 s75, s75, 0
s_and_b32 s{sT0}, s{sR}, 7
s_lshl_b32 s{sT0}, s{sT0}, 11
v_and_b32 {v(T+1)}, 15, {v(vL)}
v_lshl_add_u32 {v(T+1)}, {v(T+1)}, 7, s{sT0}
v_min_u32 {v(T+1)}, L_end-{NAME}, {v(T+1)}
global_load_dword {v(T+40)}, {v(T+1)}, s[74:75]
''')
if ILV: ilv_issue()
a('L_pre_p1:')
stamp('issued0')
a(f's_getreg_b32 s{sXCC}, hwreg(HW_REG_XCC_ID, 0, 4)')
a(f'''
v_lshlrev_b32 {v(vXw)}, 1, v0
v_add_u32 {v(vXw)}, {LX}, {v(vXw)}
s_lshl_b32 s{sT0}, s{sW}, 7
v_lshl_add_u32 {v(vXr)}, {v(vG)}, 4, s{sT0}
v_add_u32 {v(vXr)}, {LX}, {v(vXr)}
v_cmp_eq_u32 vcc, 1, {v(vI)}
v_add_u32 {v(T)}, 1024, {v(vXr)}
s_lshl_b32 s{sT1}, s{sW}, 3
v_cndmask_b32 {v(vXr)}, {v(vXr)}, {v(T)}, vcc
v_mul_u32_u24 {v(T)}, 80, {v(vI)}
v_add_u32 {v(T)}, s{sT1}, {v(T)}
v_add_u32 {v(vPw)}, {LPART}, {v(T)}
v_min_u32 {v(T)}, 32, {v(vL)}
v_mul_u32_u24 {v(T)}, 80, {v(T)}
v_add_u32 {v(vPr)}, {LPART}, {v(T)}
s_lshl_b32 s{sT0}, s{sW}, 8
v_lshlrev_b32 {v(T)}, 6, {v(vI)}
v_lshl_add_u32 {v(T)}, {v(vG)}, 4, {v(T)}
v_add_u32 {v(T)}, s{sT0}, {v(T)}
v_add_u32 {v(vPLw)}, {LPL}, {v(T)}
v_lshrrev_b32 {v(T)}, 2, {v(vI)}
v_lshlrev_b32 {v(T)}, 6, {v(T)}
v_lshl_add_u32 {v(T)}, {v(vG)}, 4, {v(T)}
v_add_u32 {v(vPLr)}, {LPL}, {v(T)}
v_lshlrev_b32 {v(T)}, 6, {v(vI)}
v_add_u32 {v(T)}, s{sT1}, {v(T)}
v_add_u32 {v(vMLw)}, {LML}, {v(T)}
v_lshlrev_b32 {v(T)}, 6, {v(vG)}
v_add_u32 {v(vMLr)}, {LML}, {v(T)}
v_lshrrev_b32 {v(T)}, 5, {v(vL)}
v_lshl_add_u32 {v(T)}, {v(T)}, 4, {v(vI)}
v_mul_u32_u24 {v(T)}, 48, {v(T)}
s_lshl_b32 s{sT0}, s{sW}, 2
v_add_u32 {v(T)}, s{sT0}, {v(T)}
v_add_u32 {v(vP3w)}, {LP3}, {v(T)}
v_and_b32 {v(T+1)}, 31, {v(vL)}
v_mul_u32_u24 {v(T)}, 48, {v(T+1)}
v_add_u32 {v(vP3r)}, {LP3}, {v(T)}
v_add_u32 {v(vP5r)}, {LP5}, {v(T)}
v_mul_u32_u24 {v(T)}, 48, {v(vI)}
v_add_u32 {v(T)}, s{sT0}, {v(T)}
v_add_u32 {v(vP5w)}, {LP5}, {v(T)}
; H bounce: write LHB + w*64 + (l%32)*2 ; read LHB + w*64 + g*16
s_lshl_b32 s{sT0}, s{sW}, 6
v_lshl_add_u32 {v(T)}, {v(T+1)}, 1, s{sT0}
v_add_u32 {v(vHw)}, {LHB}, {v(T)}
v_lshl_add_u32 {v(T)}, {v(vG)}, 4, s{sT0}
v_add_u32 {v(vHr)}, {LHB}, {v(T)}
v_and_b32 {v(T)}, 1, {v(vL)}
v_lshlrev_b32 {v(T)}, 4, {v(T)}
v_sub_u32 {v(vSh)}, 16, {v(T)}
v_lshrrev_b32 {v(T)}, 2, {v(vI)}
v_lshl_add_u32 {v(T)}, {v(vG)}, 3, {v(T)}
v_lshlrev_b32 {v(T)}, 6, {v(T)}
v_and_b32 {v(T+2)}, 3, {v(vI)}
v_lshrrev_b32 {v(T+3)}, 1, {v(T+2)}
v_and_b32 {v(T+4)}, 1, {v(vG)}
v_lshlrev_b32 {v(T+4)}, 1, {v(T+4)}
v_xor_b32 {v(T+3)}, {v(T+3)}, {v(T+4)}
v_lshl_add_u32 {v(T)}, {v(T+3)}, 4, {v(T)}
v_and_b32 {v(T+3)}, 1, {v(T+2)}
v_lshl_add_u32 {v(T)}, {v(T+3)}, 3, {v(T)}
s_lshl_b32 s{sT0}, s{sW}, 13
s_add_u32 s{sT0}, s{sT0}, {LW}
v_add_u32 {v(vWN0)}, s{sT0}, {v(T)}
v_xor_b32 {v(vWN1)}, 32, {v(vWN0)}
v_lshrrev_b32 {v(T)}, 2, {v(vI)}                 ; r
v_lshl_add_u32 {v(T+3)}, {v(vG)}, 2, {v(T)}      ; 4g+r
v_lshlrev_b32 {v(T+3)}, 8, {v(T+3)}
v_and_b32 {v(T+4)}, 1, {v(vG)}
v_lshlrev_b32 {v(T+4)}, 2, {v(T+4)}
v_add_u32 {v(T+4)}, {v(T+4)}, {v(T)}
v_lshlrev_b32 {v(T+4)}, 1, {v(T+4)}              ; 8*(g&1)+2r
v_lshrrev_b32 {v(T+5)}, 1, {v(T+2)}
s_lshl_b32 s{sT0}, s{sW}, 1
v_add_u32 {v(T+5)}, s{sT0}, {v(T+5)}
v_xor_b32 {v(T+5)}, {v(T+5)}, {v(T+4)}
v_lshl_add_u32 {v(T+3)}, {v(T+5)}, 4, {v(T+3)}
v_and_b32 {v(T+5)}, 1, {v(T+2)}
v_lshl_add_u32 {v(vVr)}, {v(T+5)}, 3, {v(T+3)}
s_lshl_b32 s{sT0}, s{sW}, 11
v_and_b32 {v(T)}, 7, {v(vI)}
v_xor_b32 {v(T)}, {v(T)}, {v(vG)}
v_lshlrev_b32 {v(T)}, 4, {v(T)}
v_lshl_add_u32 {v(T)}, {v(vI)}, 7, {v(T)}
v_add_u32 {v(T)}, s{sT0}, {v(T)}
v_add_u32 {v(vOst0)}, {LV}, {v(T)}
v_xor_b32 {v(vOst1)}, 64, {v(vOst0)}
v_and_b32 {v(T)}, 3, {v(vI)}
v_lshlrev_b32 {v(T)}, 8, {v(T)}
v_lshl_add_u32 {v(T)}, {v(vG)}, 4, {v(T)}
v_add_u32 {v(vQl)}, {LQ}, {v(T)}
; D read: D1B + b*0x2000 + w*1024 + (i&7)*128 + (i>>3)*64 + g*16
s_lshl_b32 s{sT0}, s{sB}, 13
s_lshl_b32 s{sT1}, s{sW}, 10
s_add_u32 s{sT1}, s{sT1}, s{sT0}
s_add_u32 s{sT1}, s{sT1}, {D1B}
v_and_b32 {v(T)}, 7, {v(vI)}
v_lshlrev_b32 {v(T)}, 7, {v(T)}
v_lshrrev_b32 {v(T+1)}, 3, {v(vI)}
v_lshl_add_u32 {v(T)}, {v(T+1)}, 6, {v(T)}
v_lshl_add_u32 {v(T)}, {v(vG)}, 4, {v(T)}
v_add_u32 {v(vDrd)}, s{sT1}, {v(T)}
; D write: D1B + b*0x2000 + (s/2)*1024 + c*128 + (s%2)*64 + l*2
s_lshr_b32 s{sT1}, s{sS}, 1
s_lshl_b32 s{sT1}, s{sT1}, 10
s_add_u32 s{sT0}, s{sT0}, s{sT1}
s_lshl_b32 s{sT1}, s{sC}, 7
s_add_u32 s{sT0}, s{sT0}, s{sT1}
s_and_b32 s{sT1}, s{sS}, 1
s_lshl_b32 s{sT1}, s{sT1}, 6
s_add_u32 s{sT0}, s{sT0}, s{sT1}
s_add_u32 s{sT0}, s{sT0}, {D1B}
v_lshl_add_u32 {v(vDwr)}, {v(vL)}, 1, s{sT0}
s_mul_i32 s{sT0}, s{sGRP}, {GRPSZ}
s_add_u32 s{sT1}, s{sT0}, {QB}
v_lshl_add_u32 {v(vQrd)}, {v(vL)}, 4, s{sT1}
s_lshl_b32 s{sT2}, s{sS}, 6
s_add_u32 s{sT1}, s{sT1}, s{sT2}
v_lshl_add_u32 {v(vQwr)}, {v(vL)}, 1, s{sT1}
s_lshl_b32 s{sT1}, s{sS}, 6
s_add_u32 s{sT2}, s{sT1}, 64
s_cmp_lt_u32 s{sS}, 7
s_cselect_b32 s{sT1}, s{sT1}, s{sT2}
s_add_u32 s{sT1}, s{sT1}, s{sT0}
s_add_u32 s{sT1}, s{sT1}, {GUB}
v_lshl_add_u32 {v(vGUwr)}, {v(vL)}, 1, s{sT1}
v_and_b32 {v(T)}, 30, {v(vL)}
v_lshlrev_b32 {v(T)}, 1, {v(T)}
s_lshl_b32 s{sT1}, s{sW}, 6
s_add_u32 s{sT1}, s{sT1}, s{sT0}
s_add_u32 s{sT1}, s{sT1}, {GUB}
v_add_u32 {v(vGUrd)}, s{sT1}, {v(T)}
; O write: OB + s*1024 + (g*128 + 16w + i)*2 ; DMA read: OB + (l/8)*1024 + w*128 + ((l%8)^(l/8))*16
s_add_u32 s{sT0}, s{sT0}, {OB}
s_lshl_b32 s{sT1}, s{sS}, 10
s_add_u32 s{sT1}, s{sT1}, s{sT0}
s_lshl_b32 s{sT2}, s{sW}, 5
s_add_u32 s{sT1}, s{sT1}, s{sT2}
v_lshlrev_b32 {v(T)}, 8, {v(vG)}
v_lshl_add_u32 {v(T)}, {v(vI)}, 1, {v(T)}
v_add_u32 {v(vOwr)}, s{sT1}, {v(T)}
s_lshl_b32 s{sT2}, s{sW}, 7
s_add_u32 s{sT1}, s{sT0}, s{sT2}
v_lshrrev_b32 {v(T)}, 3, {v(vL)}
v_and_b32 {v(T+1)}, 7, {v(vL)}
v_xor_b32 {v(T+1)}, {v(T+1)}, {v(T)}
v_lshlrev_b32 {v(T)}, 10, {v(T)}
v_lshl_add_u32 {v(T)}, {v(T+1)}, 4, {v(T)}
v_add_u32 {v(vOrd)}, s{sT1}, {v(T)}
s_mul_i32 s{sT0}, s{sGRP}, {GRPSZ}
s_add_u32 s{sT0}, s{sT0}, {MLB}
s_lshl_b32 s{sT1}, s{sS}, 3
s_add_u32 s{sT1}, s{sT1}, s{sT0}
v_lshl_add_u32 {v(vMLwr)}, {v(vG)}, 7, s{sT1}
s_lshr_b32 s{sT1}, s{sW}, 1
s_lshl_b32 s{sT1}, s{sT1}, 7
s_add_u32 s{sT1}, s{sT1}, s{sT0}
v_lshl_add_u32 {v(vMLrd)}, {v(vG)}, 5, s{sT1}
s_mov_b32 s{mI4}, 0x000f000f
s_mov_b32 s{mI4+1}, 0x000f000f
s_mov_b32 s{mEVEN}, 0x55555555
s_mov_b32 s{mEVEN+1}, 0x55555555
s_mov_b32 s{mI0}, 0x00010001
s_mov_b32 s{mI0+1}, 0x00010001
s_mov_b32 s{sCS}, 0x3e0293ee          ; 128^-0.5 * log2(e)
s_mov_b32 s{sNL2E}, 0xbfb8aa3b        ; -log2(e)
s_mov_b32 s{sOGU}, 0
s_mov_b32 s{sOML}, 0
s_mov_b32 s{sOD1}, 0
s_mov_b32 s{sOD2}, 0x8000
s_mov_b32 s{sOO}, 0
s_mov_b32 s{sOO2}, 7168
s_mov_b32 s{sSPIN}, 0
s_mov_b32 s{sFAST}, 0
s_lshl_b32 s{sT0}, s{sC}, 19
s_lshl_b32 s{sT1}, s{sS}, 6
s_add_u32 s{sT0}, s{sT0}, s{sT1}
s_add_u32 s{SRD_WO}, s16, s{sT0}
s_addc_u32 s{SRD_WO+1}, s17, 0
s_sub_u32 s{SRD_WO+2}, 4194304, s{sT0}
s_mov_b32 s{SRD_WO+3}, 0x20000
s_mul_i32 s{sT0}, s{sC}, 229376
s_add_u32 s{sT0}, s{sT0}, s{sT1}
s_add_u32 s{SRD_WD}, s24, s{sT0}
s_addc_u32 s{SRD_WD+1}, s25, 0
s_sub_u32 s{SRD_WD+2}, 1835008, s{sT0}
s_mov_b32 s{SRD_WD+3}, 0x20000
s_mul_i32 s{sT0}, s{sC}, 448
s_sub_u32 s{sT2}, s{sT1}, 448
s_cmp_lt_u32 s{sS}, 7
s_cselect_b32 s{sT1}, s{sT1}, s{sT2}
s_cselect_b32 s{sT2}, s20, s22
s_cselect_b32 s{sT3}, s21, s23
s_add_u32 s{sT0}, s{sT0}, s{sT1}
s_add_u32 s{SRD_WGU}, s{sT2}, s{sT0}
s_addc_u32 s{SRD_WGU+1}, s{sT3}, 0
s_sub_u32 s{SRD_WGU+2}, 1835008, s{sT0}
s_mov_b32 s{SRD_WGU+3}, 0x20000
s_mov_b32 s{SRD_OUT}, s26
s_mov_b32 s{SRD_OUT+1}, s27
s_mov_b32 s{SRD_OUT+2}, 2048
s_mov_b32 s{SRD_OUT+3}, 0x20000
v_mov_b32 {v(T)}, 0x3f80
ds_write_b16 {v(vXw)}, {v(T)} offset:1024
v_lshlrev_b32 {v(T+1)}, 3, {v(vG)}
v_sub_u32 {v(T+1)}, {v(vI)}, {v(T+1)}
v_add_u32 {v(T+2)}, 16, {v(T+1)}
v_mov_b32 {v(T+3)}, 0x3f800000
''')
for blk,src in ((0,T+1),(1,T+2)):
    for r2 in range(4):
        d=RID+blk*4+r2
        a(f'''v_cmp_eq_u32 vcc, {2*r2}, {v(src)}
v_mov_b32 {v(d)}, 0
s_nop 0
v_cndmask_b32 {v(d)}, {v(d)}, {v(T)}, vcc
v_cmp_eq_u32 vcc, {2*r2+1}, {v(src)}
s_nop 1
v_cndmask_b32 {v(d)}, {v(d)}, {v(T+3)}, vcc''')
a(f'''
s_cmp_eq_u32 s{sW}, 0
s_cbranch_scc1 L_wq_w0
s_waitcnt vmcnt({NTAIL})
v_add_u32 {v(vE)}, {EPC}, {v(vE)}
s_nop 0
v_readfirstlane_b32 s{sTAG}, {v(vE)}
s_branch L_wq_landed
L_wq_w0:
s_waitcnt vmcnt({NTAIL if ILV else 0})
v_add_u32 {v(vE)}, {EPC}, {v(vE)}
s_nop 0
v_readfirstlane_b32 s{sTAG}, {v(vE)}
s_lshl_b32 s{sT0}, s{sGRP}, 7
s_lshl_b32 s{sT2}, s{sS}, 2
s_add_u32 s{sT0}, s{sT0}, s{sT2}
s_add_u32 s{sT0}, s{sT0}, {FB}
v_mov_b32 {v(T+8)}, s{sT0}
v_add_u32 {v(T+9)}, s{sXCC}, {v(vE)}
s_mov_b64 exec, 1
buffer_store_dword {v(T+9)}, {v(T+8)}, {srd(SRD_WS)}, 0 offen sc1
s_mov_b64 exec, -1
''')
if not ILV: v_dma(NV1,NVA)
a('L_wq_landed:')
stamp('wq_landed')
w_tr(RWQ,0,2)
a(f'v_lshlrev_b32 {v(vX)}, 16, {v(vX)}')
a(f'v_lshrrev_b32 {v(T+20)}, 16, {v(vX)}')
def lngemv(W, pub, tag):
    a(f'ds_write_b16 {v(vXw)}, {v(T+20)}')
    a('s_waitcnt lgkmcnt(0)\ns_barrier')
    stamp(tag+'_b1')
    a(f'ds_read_b128 {vr(T,4)}, {v(vXr)}\nds_read_b128 {vr(T+4,4)}, {v(vXr)} offset:64')
    sa,sq=T+16,T+17
    a(f'v_mov_b32 {v(sa)}, {v(vX)}\nv_mul_f32 {v(sq)}, {v(vX)}, {v(vX)}')
    for m in ['quad_perm:[1,0,3,2] row_mask:0xf bank_mask:0xf','quad_perm:[2,3,0,1] row_mask:0xf bank_mask:0xf','row_half_mirror row_mask:0xf bank_mask:0xf','row_mirror row_mask:0xf bank_mask:0xf']:
        a(f'v_add_f32_dpp {v(sa)}, {v(sa)}, {v(sa)} {m}\nv_add_f32_dpp {v(sq)}, {v(sq)}, {v(sq)} {m}')
        if m.startswith('quad_perm:[1'):
            a('s_waitcnt lgkmcnt(0)')
            d0,d1=T+8,T+12
            a(f'v_mfma_f32_16x16x32_bf16 {vr(d0,4)}, {vr(T,4)}, {vr(W,4)}, 0')
            a(f'v_mfma_f32_16x16x32_bf16 {vr(d1,4)}, {vr(T,4)}, {vr(W+4,4)}, 0')
            a(f'v_mfma_f32_16x16x32_bf16 {vr(d0,4)}, {vr(T+4,4)}, {vr(W+8,4)}, {vr(d0,4)}')
            a(f'v_mfma_f32_16x16x32_bf16 {vr(d1,4)}, {vr(T+4,4)}, {vr(W+12,4)}, {vr(d1,4)}')
    for m in ['row_bcast:15 row_mask:0xa bank_mask:0xf','row_bcast:31 row_mask:0xc bank_mask:0xf']:
        a(f'v_add_f32_dpp {v(sa)}, {v(sa)}, {v(sa)} {m}\nv_add_f32_dpp {v(sq)}, {v(sq)}, {v(sq)} {m}')
    a('s_mov_b64 exec, 0xffff')
    a(f'ds_write_b64 {v(vPw)}, {vr(T+8,2)}\nds_write_b64 {v(vPw)}, {vr(T+12,2)} offset:{16*80}')
    a('s_mov_b32 exec_lo, 0\ns_mov_b32 exec_hi, 0x80000000')
    a(f'ds_write_b64 {v(vPw)}, {vr(sa,2)} offset:{17*80}')
    exec_all()
    a('s_waitcnt lgkmcnt(0)\ns_barrier')
    stamp(tag+'_b2')
    done=lbl('lng_done')
    a(f's_cmp_lg_u32 s{sW}, 0\ns_cbranch_scc1 {done}')
    for k in range(4): a(f'ds_read_b128 {vr(T+4*k,4)}, {v(vPr)} offset:{16*k}')
    a('s_waitcnt lgkmcnt(0)')
    a(f'''v_pk_add_f32 {vr(T,2)}, {vr(T,2)}, {vr(T+2,2)}
v_pk_add_f32 {vr(T+4,2)}, {vr(T+4,2)}, {vr(T+6,2)}
v_pk_add_f32 {vr(T+8,2)}, {vr(T+8,2)}, {vr(T+10,2)}
v_pk_add_f32 {vr(T+12,2)}, {vr(T+12,2)}, {vr(T+14,2)}
v_pk_add_f32 {vr(T,2)}, {vr(T,2)}, {vr(T+4,2)}
v_pk_add_f32 {vr(T+8,2)}, {vr(T+8,2)}, {vr(T+12,2)}
v_pk_add_f32 {vr(T,2)}, {vr(T,2)}, {vr(T+8,2)}
v_mul_f32 {v(T+2)}, 0x3b000000, {v(T)}          ; mean
v_mul_f32 {v(T+3)}, 0x3b000000, {v(T+1)}        ; E[x^2]
v_fma_f32 {v(T+3)}, -{v(T+2)}, {v(T+2)}, {v(T+3)}
v_max_f32 {v(T+3)}, 0, {v(T+3)}
v_add_f32 {v(T+3)}, 0x3727c5ac, {v(T+3)}        ; + 1e-5
v_rsq_f32 {v(T+3)}, {v(T+3)}
v_readlane_b32 s{sT0}, {v(T+2)}, 32
v_readlane_b32 s{sT1}, {v(T+3)}, 32
v_fma_f32 {v(T+4)}, -{v(T+1)}, s{sT0}, {v(T)}
v_mul_f32 {v(T+4)}, s{sT1}, {v(T+4)}
v_mov_b32_dpp {v(T+5)}, {v(T+4)} quad_perm:[1,1,3,3] row_mask:0xf bank_mask:0xf
v_cvt_pk_bf16_f32 {v(T+12)}, {v(T+4)}, {v(T+5)}
v_min_u32 {v(T+12)}, -2, {v(T+12)}
s_mov_b32 exec_lo, 0x55555555
s_mov_b32 exec_hi, 0''')
    pub()
    exec_all()
    a(f'{done}:')
def x_update(delta):
    a(f'''v_cvt_pk_bf16_f32 {v(delta)}, {v(delta)}, {v(delta)}
v_and_b32 {v(delta)}, 0xffff0000, {v(delta)}
v_add_f32 {v(vX)}, {v(vX)}, {v(delta)}
v_cvt_pk_bf16_f32 {v(T+20)}, {v(vX)}, {v(vX)}
v_and_b32 {v(vX)}, 0xffff0000, {v(T+20)}''')
def poll_D(soff, between=None, tag=None, after=None):
    r=lbl('pd_r'); c=lbl('pd_c'); ok=lbl('pd_ok')
    R=T+24
    def issue(): a(f'buffer_load_dwordx4 {vr(R,4)}, {v(vDrd)}, {srd(SRD_WS)}, s{soff} offen sc1')
    issue()
    if between: between()
    a(f'{c}:\ns_waitcnt vmcnt(0)')
    check_valid(range(R,R+4), ok, T)
    spin_check(r)
    a(f'{r}:'); issue(); a(f's_branch {c}')
    a(f'{ok}:')
    if tag: stamp(tag)
    if after: after()
    D1,D2=T+28,T+32
    a(f'''v_mfma_f32_16x16x32_bf16 {vr(D1,4)}, {vr(R,4)}, {vr(RID,4)}, 0
v_mfma_f32_16x16x32_bf16 {vr(D2,4)}, {vr(R,4)}, {vr(RID+4,4)}, 0''')
    return D1,D2
def d_sum(D1,D2):
    a(f'''v_add_f32 {v(D1)}, {v(D1)}, {v(D1+1)}
v_add_f32 {v(D1+2)}, {v(D1+2)}, {v(D1+3)}
v_add_f32 {v(D2)}, {v(D2)}, {v(D2+1)}
v_add_f32 {v(D2+2)}, {v(D2+2)}, {v(D2+3)}
v_add_f32 {v(D1)}, {v(D1)}, {v(D1+2)}
v_add_f32 {v(D2)}, {v(D2)}, {v(D2+2)}
v_permlane16_swap_b32 {v(D1)}, {v(D2)}
v_add_f32 {v(D1)}, {v(D1)}, {v(D2)}''')
    return D1
a('L_layer:')
def q_pub():
    l1=lbl('qp1'); l2=lbl('qpd')
    a(f's_cmp_lg_u32 s{sL}, 0\ns_cbranch_scc1 {l1}')
    a(f'''s_lshl_b32 s{sT0}, s{sGRP}, 11
s_lshl_b32 s{sT1}, s{sS}, 7
s_add_u32 s{sT0}, s{sT0}, s{sT1}
s_add_u32 s{sT0}, s{sT0}, {Q0T}
v_lshl_add_u32 {v(T+14)}, {v(vL)}, 2, s{sT0}
s_add_u32 s{sT1}, s{sTAG}, s{sXCC}
v_mov_b32 {v(T+13)}, s{sT1}
buffer_store_dwordx2 {vr(T+12,2)}, {v(T+14)}, {srd(SRD_WS)}, 0 offen sc1
s_branch {l2}
{l1}:''')
    pub_store(f'buffer_store_dword {v(T+12)}, {v(vQwr)}, {srd(SRD_WS)}, 0 offen')
    a(f'{l2}:')
lngemv(RWQ, q_pub, 'p1')
stamp('p1_done')
a(f's_cmp_lg_u32 s{sL}, 0\ns_cbranch_scc1 L_h1_l1')
k_first(); k_second()
if KBAR: a('s_barrier')
stamp('k_issued')
pf3('o',1,T+41); pf3('g',2,T+41); pf3('d',3,T+41)
a(f's_cmp_eq_u32 s{sW}, 0\ns_cbranch_scc1 L_h1_w0\ns_cmp_eq_u32 s{sW}, 7\ns_cbranch_scc1 L_h1_w7')
v_dma(NVA,8)
NPO=pf_wo()
NWO=0 if WOLATE else 4
if not WOLATE: w_dma(SRD_WO, vWoo, 1, 4, 1024, NTW)
stamp('vw_issued')
a(f's_waitcnt vmcnt({8-NVA+NPO+NWO})')
stamp('k_landed')
a('s_branch L_h1_bar')
a(f'''L_h1_w7:
s_lshl_b32 s{sT0}, s{sB}, 10
s_add_u32 s{sT0}, s{sT0}, {FB}
v_lshrrev_b32 {v(T+28)}, 3, {v(vL)}
v_lshlrev_b32 {v(T+28)}, 7, {v(T+28)}
v_and_b32 {v(T+29)}, 7, {v(vL)}
v_lshl_add_u32 {v(T+28)}, {v(T+29)}, 3, {v(T+28)}
v_add_u32 {v(T+28)}, s{sT0}, {v(T+28)}
L_f1_retry:
buffer_load_dwordx2 {vr(T+30,2)}, {v(T+28)}, {srd(SRD_WS)}, 0 offen sc1
s_waitcnt vmcnt(0)
v_subrev_u32 {v(T+30)}, s{sTAG}, {v(T+30)}
v_subrev_u32 {v(T+31)}, s{sTAG}, {v(T+31)}
v_max_u32 {v(T+30)}, {v(T+30)}, {v(T+31)}
v_cmp_lt_u32 vcc, 15, {v(T+30)}
s_cbranch_vccz L_h1_rest
''')
spin_check('L_f1_retry')
a(f'''L_h1_w0:
s_lshl_b32 s{sT0}, s{sGRP}, 11
s_add_u32 s{sT0}, s{sT0}, {Q0T}
v_lshl_add_u32 {v(T+16)}, {v(vL)}, 5, s{sT0}
L_q0_retry:
buffer_load_dwordx4 {vr(T,4)}, {v(T+16)}, {srd(SRD_WS)}, 0 offen sc1
buffer_load_dwordx4 {vr(T+4,4)}, {v(T+16)}, {srd(SRD_WS)}, 0 offen offset:16 sc1
s_waitcnt vmcnt(0)
v_subrev_u32 {v(T+1)}, s{sTAG}, {v(T+1)}
v_subrev_u32 {v(T+3)}, s{sTAG}, {v(T+3)}
v_subrev_u32 {v(T+5)}, s{sTAG}, {v(T+5)}
v_subrev_u32 {v(T+7)}, s{sTAG}, {v(T+7)}
v_max3_u32 {v(T+8)}, {v(T+1)}, {v(T+3)}, {v(T+5)}
v_max_u32 {v(T+8)}, {v(T+8)}, {v(T+7)}
v_cmp_lt_u32 vcc, 15, {v(T+8)}
s_cbranch_vccz L_q0_ok''')
spin_check('L_q0_retry')
a(f'''L_q0_ok:
v_min3_u32 {v(T+9)}, {v(T+1)}, {v(T+3)}, {v(T+5)}
v_min_u32 {v(T+9)}, {v(T+9)}, {v(T+7)}
v_cmp_ne_u32 vcc, s{sXCC}, {v(T+8)}
v_cmp_ne_u32 s[{sT2}:{sT3}], s{sXCC}, {v(T+9)}
s_or_b64 vcc, vcc, s[{sT2}:{sT3}]
s_cmp_eq_u64 vcc, 0
s_cselect_b32 s{sT0}, 1, 0
''')
if FORCESLOW: a(f's_mov_b32 s{sT0}, 0')
a(f'''v_lshlrev_b32 {v(T+10)}, 4, {v(vL)}
v_add_u32 {v(T+10)}, {LQ}, {v(T+10)}
ds_write2_b32 {v(T+10)}, {v(T)}, {v(T+2)} offset0:0 offset1:1
ds_write2_b32 {v(T+10)}, {v(T+4)}, {v(T+6)} offset0:2 offset1:3
v_mov_b32 {v(T+11)}, s{sT0}
v_mov_b32 {v(T+12)}, {LFAST}
ds_write_b32 {v(T+12)}, {v(T+11)}
L_h1_rest:''')
v_dma(NVA,8)
pf_wo()
if not WOLATE: w_dma(SRD_WO, vWoo, 1, 4, 1024, NTW)
a('s_branch L_h1_bar')
a('L_h1_l1:')
a(f's_cmp_lg_u32 s{sW}, 0\ns_cbranch_scc1 L_h1_bar')
ack()
a(f'''L_q1_retry:
buffer_load_dwordx4 {vr(T,4)}, {v(vQrd)}, {srd(SRD_WS)}, 0 offen sc1
s_waitcnt vmcnt(0)''')
check_valid(range(T,T+4),'L_q1_ok',T+4)
spin_check('L_q1_retry')
a(f'''L_q1_ok:
v_lshlrev_b32 {v(T+10)}, 4, {v(vL)}
v_add_u32 {v(T+10)}, {LQ}, {v(T+10)}
ds_write_b128 {v(T+10)}, {vr(T,4)}
L_h1_bar:
s_waitcnt lgkmcnt(0)
s_barrier''')
stamp('q_ok')
Q=T
for kk in range(4): a(f'ds_read_b128 {vr(Q+4*kk,4)}, {v(vQl)} offset:{kk*64}')
a(f'v_mov_b32 {v(T+26)}, {LFAST}\nds_read_b32 {v(T+27)}, {v(T+26)}')
S0,S1=T+16,T+20
for kk in range(4):
    a(f's_waitcnt lgkmcnt({4-kk})')
    for t,S in ((0,S0),(1,S1)):
        c='0' if kk==0 else vr(S,4)
        a(f'v_mfma_f32_16x16x32_bf16 {vr(S,4)}, {vr(RK+(t*4+kk)*4,4)}, {vr(Q+4*kk,4)}, {c}')
a(f's_waitcnt lgkmcnt(0)\nv_readfirstlane_b32 s{sFAST}, {v(T+27)}')
m,m2,tt=T+24,T+25,T+26
MC,LS=T+28,T+29
a(f'''
v_max3_f32 {v(m)}, {v(S0)}, {v(S0+1)}, {v(S0+2)}
v_max3_f32 {v(m2)}, {v(S1)}, {v(S1+1)}, {v(S1+2)}
v_max3_f32 {v(m)}, {v(m)}, {v(S0+3)}, {v(S1+3)}
v_max_f32 {v(m)}, {v(m)}, {v(m2)}
v_mov_b32 {v(tt)}, {v(m)}
v_permlane16_swap_b32 {v(m)}, {v(tt)}
v_max_f32 {v(m)}, {v(m)}, {v(tt)}
v_mov_b32 {v(tt)}, {v(m)}
v_permlane32_swap_b32 {v(m)}, {v(tt)}
v_max_f32 {v(m)}, {v(m)}, {v(tt)}
v_mul_f32 {v(MC)}, s{sCS}, {v(m)}
''')
P=T+32
for t,S in ((0,S0),(1,S1)):
    for r in range(4): a(f'v_fma_f32 {v(P+4*t+r)}, {v(S+r)}, s{sCS}, -{v(MC)}')
for r in range(8): a(f'v_exp_f32 {v(P+r)}, {v(P+r)}')
PK=T+40
for r in range(4): a(f'v_cvt_pk_bf16_f32 {v(PK+r)}, {v(P+2*r)}, {v(P+2*r+1)}')
exec_mask(mI4)
a(f'ds_write_b128 {v(vPLw)}, {vr(PK,4)}')
exec_all()
a(f'''
v_add_f32 {v(P)}, {v(P)}, {v(P+1)}
v_add_f32 {v(P+2)}, {v(P+2)}, {v(P+3)}
v_add_f32 {v(P+4)}, {v(P+4)}, {v(P+5)}
v_add_f32 {v(P+6)}, {v(P+6)}, {v(P+7)}
v_add_f32 {v(P)}, {v(P)}, {v(P+2)}
v_add_f32 {v(P+4)}, {v(P+4)}, {v(P+6)}
v_add_f32 {v(LS)}, {v(P)}, {v(P+4)}
v_mov_b32 {v(tt)}, {v(LS)}
v_permlane16_swap_b32 {v(LS)}, {v(tt)}
v_add_f32 {v(LS)}, {v(LS)}, {v(tt)}
v_mov_b32 {v(tt)}, {v(LS)}
v_permlane32_swap_b32 {v(LS)}, {v(tt)}
v_add_f32 {v(LS)}, {v(LS)}, {v(tt)}
s_mov_b64 exec, 15
ds_write_b64 {v(vMLw)}, {vr(MC,2)}
s_mov_b64 exec, -1
s_cmp_lg_u32 s{sL}, 0
s_cbranch_scc1 L_p2_nov
s_waitcnt vmcnt({NPO+NWO})
L_p2_nov:
s_waitcnt lgkmcnt(0)
s_barrier
''')
stamp('p2_bar')
a(f's_cmp_lg_u32 s{sL}, 0\ns_cbranch_scc1 L_p2_novt')
if WOLATE: w_dma(SRD_WO, vWoo, 1, 4, 1024, NTW)
for kk in range(8):
    for hh in range(2):
        a(f'ds_read_b64_tr_b16 {vr(RV+kk*4+hh*2,2)}, {v(vVr)} offset:{LV+kk*8192+hh*4096}')
a('s_waitcnt lgkmcnt(0)')
a('L_p2_novt:')
PA=T; MLr=T+32; DO=T+48
for k in range(4): a(f'ds_read_b128 {vr(MLr+4*k,4)}, {v(vMLr)} offset:{16*k}')
for kk in range(8): a(f'ds_read_b128 {vr(PA+4*kk,4)}, {v(vPLr)} offset:{kk*256}')
for kk in range(8):
    a(f's_waitcnt lgkmcnt({7-kk})')
    a(f'v_mfma_f32_16x16x32_bf16 {vr(DO+4*kk,4)}, {vr(PA+4*kk,4)}, {vr(RV+4*kk,4)}, 0')
    if kk==0:
        mc=[MLr+2*k for k in range(8)]
        a(f'''v_max3_f32 {v(T+80)}, {v(mc[0])}, {v(mc[1])}, {v(mc[2])}
v_max3_f32 {v(T+81)}, {v(mc[3])}, {v(mc[4])}, {v(mc[5])}
v_max3_f32 {v(T+80)}, {v(T+80)}, {v(mc[6])}, {v(mc[7])}
v_max_f32 {v(T+80)}, {v(T+80)}, {v(T+81)}''')
    if kk==1:
        for k in range(8): a(f'v_sub_f32 {v(MLr+2*k)}, {v(MLr+2*k)}, {v(T+80)}')
    if kk==3:
        for k in range(8): a(f'v_exp_f32 {v(MLr+2*k)}, {v(MLr+2*k)}')
    if kk==6:
        a(f'v_mul_f32 {v(T+81)}, {v(MLr)}, {v(MLr+1)}')
        for k in range(1,8): a(f'v_fmac_f32 {v(T+81)}, {v(MLr+2*k)}, {v(MLr+2*k+1)}')
OO=T+82
a(f'v_mul_f32 {v(OO)}, {v(MLr)}, {v(DO)}\nv_mul_f32 {v(OO+1)}, {v(MLr+2)}, {v(DO+4)}')
for k in range(2,8,2):
    a(f'v_fmac_f32 {v(OO)}, {v(MLr+2*k)}, {v(DO+4*k)}\nv_fmac_f32 {v(OO+1)}, {v(MLr+2*k+2)}, {v(DO+4*k+4)}')
a(f'''
v_add_f32 {v(OO)}, {v(OO)}, {v(OO+1)}
v_mov_b32_dpp {v(OO+1)}, {v(OO)} quad_perm:[1,1,3,3] row_mask:0xf bank_mask:0xf
v_cvt_pk_bf16_f32 {v(OO)}, {v(OO)}, {v(OO+1)}
v_min_u32 {v(OO)}, -2, {v(OO)}
''')
exec_mask(mEVEN)
pub_store(f'buffer_store_dword {v(OO)}, {v(vOwr)}, {srd(SRD_WS)}, s{sOO} offen')
a(f's_cmp_lg_u32 s{sW}, 0\ns_cbranch_scc1 L_p2_noml')
a(f'v_min_u32 {v(T+80)}, -2, {v(T+80)}\nv_min_u32 {v(T+81)}, -2, {v(T+81)}')
exec_mask(mI0)
pub_store(f'buffer_store_dwordx2 {vr(T+80,2)}, {v(vMLwr)}, {srd(SRD_WS)}, s{sOML} offen')
a('L_p2_noml:')
exec_all()
stamp('p2_done')
A0,A1,ML0=T,T+4,T+8
def o_issue():
    a(f's_lshl_b32 s{sT0}, s{sW}, 11\ns_add_u32 m0, s{sT0}, {LV}\ns_nop 0')
    a(f'buffer_load_dwordx4 {v(vOrd)}, {srd(SRD_WS)}, s{sOO} offen sc1 lds')
    a(f'buffer_load_dwordx4 {v(vOrd)}, {srd(SRD_WS)}, s{sOO2} offen offset:1024 sc1 lds')
    a(f'buffer_load_dwordx4 {vr(ML0,4)}, {v(vMLrd)}, {srd(SRD_WS)}, s{sOML} offen sc1')
    a(f'buffer_load_dwordx4 {vr(ML0+4,4)}, {v(vMLrd)}, {srd(SRD_WS)}, s{sOML} offen offset:16 sc1')
a('s_waitcnt vmcnt(0)' if ACK else f's_cmp_lg_u32 s{sL}, 0\ns_cbranch_scc1 L_o_noack\ns_waitcnt vmcnt(0)\nL_o_noack:')
o_issue()
a(f's_cmp_lg_u32 s{sL}, 0\ns_cbranch_scc1 L_o_wait')
w_tr(RWO,1,2)
a('s_branch L_o_wait')
a('L_o_retry:')
o_issue()
a('L_o_wait:\ns_waitcnt vmcnt(0)')
a(f'ds_read_b128 {vr(A0,4)}, {v(vOst0)}\nds_read_b128 {vr(A1,4)}, {v(vOst1)}\ns_waitcnt lgkmcnt(0)')
check_valid(range(T,T+16),'L_o_ok',T+16)
spin_check('L_o_retry')
a('L_o_ok:')
stamp('o_ok')
a(f's_cmp_lg_u32 s{sL}, 0\ns_cbranch_scc1 L_p3_go')
pf_wgu()
if not WGLATE:
    a(f's_cmp_ge_u32 s{sS}, 14\ns_cbranch_scc1 L_p3_go')
    w_dma(SRD_WGU, vWguo, 0, 4, 3584, NTW)
a('L_p3_go:')
E0,E1=T+16,T+20
a(f'v_mfma_f32_16x16x32_bf16 {vr(E0,4)}, {vr(A0,4)}, {vr(RWO,4)}, 0')
a(f'v_mfma_f32_16x16x32_bf16 {vr(E1,4)}, {vr(A0,4)}, {vr(RWO+4,4)}, 0')
a(f'v_mfma_f32_16x16x32_bf16 {vr(E0,4)}, {vr(A1,4)}, {vr(RWO+8,4)}, {vr(E0,4)}')
a(f'v_mfma_f32_16x16x32_bf16 {vr(E1,4)}, {vr(A1,4)}, {vr(RWO+12,4)}, {vr(E1,4)}')
Mx,tt,Lt=T+24,T+25,T+26
M=[ML0,ML0+2,ML0+4,ML0+6]; Lr=[x+1 for x in M]
a(f'''
v_max3_f32 {v(Mx)}, {v(M[0])}, {v(M[1])}, {v(M[2])}
v_max_f32 {v(Mx)}, {v(Mx)}, {v(M[3])}
v_mov_b32 {v(tt)}, {v(Mx)}
v_permlane16_swap_b32 {v(Mx)}, {v(tt)}
v_max_f32 {v(Mx)}, {v(Mx)}, {v(tt)}
v_mov_b32 {v(tt)}, {v(Mx)}
v_permlane32_swap_b32 {v(Mx)}, {v(tt)}
v_max_f32 {v(Mx)}, {v(Mx)}, {v(tt)}
''')
for r in range(4): a(f'v_sub_f32 {v(M[r])}, {v(M[r])}, {v(Mx)}')
for r in range(4): a(f'v_exp_f32 {v(M[r])}, {v(M[r])}')
a(f'v_mul_f32 {v(Lt)}, {v(M[0])}, {v(Lr[0])}')
for r in range(1,4): a(f'v_fmac_f32 {v(Lt)}, {v(M[r])}, {v(Lr[r])}')
Y0,Y1=T+27,T+28
a(f'''
v_mov_b32 {v(tt)}, {v(Lt)}
v_mul_f32 {v(Y0)}, {v(M[0])}, {v(E0)}
v_mul_f32 {v(Y1)}, {v(M[0])}, {v(E1)}
v_permlane16_swap_b32 {v(Lt)}, {v(tt)}
v_add_f32 {v(Lt)}, {v(Lt)}, {v(tt)}
v_fmac_f32 {v(Y0)}, {v(M[1])}, {v(E0+1)}
v_fmac_f32 {v(Y1)}, {v(M[1])}, {v(E1+1)}
v_mov_b32 {v(tt)}, {v(Lt)}
v_fmac_f32 {v(Y0)}, {v(M[2])}, {v(E0+2)}
v_fmac_f32 {v(Y1)}, {v(M[2])}, {v(E1+2)}
v_permlane32_swap_b32 {v(Lt)}, {v(tt)}
v_add_f32 {v(Lt)}, {v(Lt)}, {v(tt)}
v_fmac_f32 {v(Y0)}, {v(M[3])}, {v(E0+3)}
v_fmac_f32 {v(Y1)}, {v(M[3])}, {v(E1+3)}
v_rcp_f32 {v(Lt)}, {v(Lt)}
v_permlane32_swap_b32 {v(Y0)}, {v(Y1)}
v_add_f32 {v(Y0)}, {v(Y0)}, {v(Y1)}
v_mov_b32 {v(tt)}, {v(Y0)}
v_permlane16_swap_b32 {v(Y0)}, {v(tt)}
v_add_f32 {v(Y0)}, {v(Y0)}, {v(tt)}
v_mul_f32 {v(Y0)}, {v(Y0)}, {v(Lt)}
s_mov_b32 exec_lo, 0xffff
s_mov_b32 exec_hi, 0xffff
ds_write_b32 {v(vP3w)}, {v(Y0)}
s_mov_b64 exec, -1
s_waitcnt lgkmcnt(0)
s_barrier
''')
stamp('p3_bar')
def final8(rd, n, soff, lab, extra=None):
    if extra:
        l0=lbl('f8x')
        a(f's_cmp_eq_u32 s{sW}, 0\ns_cbranch_scc1 {l0}')
        extra(); a(f's_branch {lab}\n{l0}:')
    else:
        a(f's_cmp_lg_u32 s{sW}, 0\ns_cbranch_scc1 {lab}')
    a(f'ds_read_b128 {vr(T,4)}, {v(rd)}\nds_read_b128 {vr(T+4,4)}, {v(rd)} offset:16\ns_waitcnt lgkmcnt(0)')
    a(f'''v_add_f32 {v(T)}, {v(T)}, {v(T+1)}
v_add_f32 {v(T+2)}, {v(T+2)}, {v(T+3)}
v_add_f32 {v(T+4)}, {v(T+4)}, {v(T+5)}''')
    if n==8: a(f'v_add_f32 {v(T+6)}, {v(T+6)}, {v(T+7)}')
    a(f'''v_add_f32 {v(T)}, {v(T)}, {v(T+2)}
v_add_f32 {v(T+4)}, {v(T+4)}, {v(T+6)}
v_add_f32 {v(T)}, {v(T)}, {v(T+4)}
v_mov_b32_dpp {v(T+1)}, {v(T)} quad_perm:[1,1,3,3] row_mask:0xf bank_mask:0xf
v_cvt_pk_bf16_f32 {v(T)}, {v(T)}, {v(T+1)}
v_min_u32 {v(T)}, -2, {v(T)}
s_mov_b32 exec_lo, 0x55555555
s_mov_b32 exec_hi, 0
buffer_store_dword {v(T)}, {v(vDwr)}, {srd(SRD_WS)}, s{soff} offen sc1
s_mov_b64 exec, -1''')
    if extra: extra()
    ack()
    a(f'{lab}:')
    if ACK: a('s_barrier')
def wgu_late():
    l=lbl('wgl')
    a(f's_cmp_lg_u32 s{sL}, 0\ns_cbranch_scc1 {l}\ns_cmp_ge_u32 s{sS}, 14\ns_cbranch_scc1 {l}')
    w_dma(SRD_WGU, vWguo, 0, 4, 3584, NTW)
    a(f'{l}:')
final8(vP3r, 8, sOD1, 'L_p3_done', wgu_late if WGLATE else None)
stamp('p3_done')
def p4_l0():
    a(f's_cmp_lg_u32 s{sL}, 0\ns_cbranch_scc1 L_p4_go\ns_cmp_ge_u32 s{sS}, 14\ns_cbranch_scc1 L_p4_nowgu')
    w_tr(RWG,0,2)
    a('L_p4_nowgu:')
    a(f's_cmp_eq_u32 s{sW}, 7\ns_cbranch_scc1 L_p4_go')
    pf_wd()
    w_dma(SRD_WD, vWdo, 1, 2, 1024, NTW)
    a('L_p4_go:')
D1,D2=poll_D(sOD1, None, 'd1_ok', p4_l0)
x_update(d_sum(D1,D2))
if int(opt.get('dump',0)):
    a(f'''s_cmp_lg_u32 s{sL}, 0
s_cbranch_scc1 L_nodump
s_waitcnt lgkmcnt(0)
s_mul_i32 s{sT0}, s2, {512*4*20}
s_add_u32 s{sT0}, s{sT0}, 0x4000000
v_mul_u32_u24 {v(T+62)}, 80, v0
v_add_u32 {v(T+62)}, s{sT0}, {v(T+62)}
buffer_store_dword {v(vX)}, {v(T+62)}, {srd(SRD_WS)}, 0 offen
buffer_store_dwordx4 {vr(RWG,4)}, {v(T+62)}, {srd(SRD_WS)}, 0 offen offset:16
buffer_store_dwordx4 {vr(RWG+4,4)}, {v(T+62)}, {srd(SRD_WS)}, 0 offen offset:32
buffer_store_dwordx4 {vr(RWG+8,4)}, {v(T+62)}, {srd(SRD_WS)}, 0 offen offset:48
buffer_store_dwordx4 {vr(RWG+12,4)}, {v(T+62)}, {srd(SRD_WS)}, 0 offen offset:64
L_nodump:''')
a(f's_cmp_ge_u32 s{sS}, 14\ns_cbranch_scc1 L_p4_done')
def gu_pub():
    pub_store(f'buffer_store_dword {v(T+12)}, {v(vGUwr)}, {srd(SRD_WS)}, s{sOGU} offen')
    if ACK:
        l=lbl('gua')
        a(f's_cmp_eq_u32 s{sL}, 0\ns_cbranch_scc1 {l}\ns_waitcnt vmcnt(0)\n{l}:')
lngemv(RWG, gu_pub, 'p4')
if ACK: a('s_barrier')
a('L_p4_done:')
stamp('p4_done')
a(f's_cmp_eq_u32 s{sW}, 7\ns_cbranch_scc1 L_p5_bar')
def gu_issue():
    a(f'buffer_load_dword {v(T)}, {v(vGUrd)}, {srd(SRD_WS)}, s{sOGU} offen sc1')
    a(f'buffer_load_dword {v(T+1)}, {v(vGUrd)}, {srd(SRD_WS)}, s{sOGU} offen offset:512 sc1')
a('L_gu_retry:')
gu_issue()
a('L_gu_wait:\ns_waitcnt vmcnt(0)')
check_valid([T,T+1],'L_gu_ok',T+2)
spin_check('L_gu_retry')
a('L_gu_ok:')
a(f's_cmp_lg_u32 s{sL}, 0\ns_cbranch_scc1 L_gu_nowd')
w_tr(RWD,1,1)
a('L_gu_nowd:')
stamp('gu_ok')
a(f'''
v_lshlrev_b32 {v(T)}, {v(vSh)}, {v(T)}
v_lshlrev_b32 {v(T+1)}, {v(vSh)}, {v(T+1)}
v_and_b32 {v(T)}, 0xffff0000, {v(T)}
v_and_b32 {v(T+1)}, 0xffff0000, {v(T+1)}
v_mul_f32 {v(T)}, s{sNL2E}, {v(T)}
v_exp_f32 {v(T)}, {v(T)}
v_add_f32 {v(T)}, 1.0, {v(T)}
v_rcp_f32 {v(T)}, {v(T)}
v_mul_f32 {v(T)}, {v(T)}, {v(T+1)}
v_cvt_pk_bf16_f32 {v(T)}, {v(T)}, {v(T)}
ds_write_b16 {v(vHw)}, {v(T)}
s_waitcnt lgkmcnt(0)
ds_read_b128 {vr(T+4,4)}, {v(vHr)}
s_waitcnt lgkmcnt(0)
v_mfma_f32_16x16x32_bf16 {vr(T+8,4)}, {vr(T+4,4)}, {vr(RWD,4)}, 0
v_mfma_f32_16x16x32_bf16 {vr(T+12,4)}, {vr(T+4,4)}, {vr(RWD+4,4)}, 0
s_mov_b64 exec, 0xffff
ds_write_b32 {v(vP5w)}, {v(T+8)}
ds_write_b32 {v(vP5w)}, {v(T+12)} offset:{16*48}
s_mov_b64 exec, -1
L_p5_bar:
s_waitcnt lgkmcnt(0)
s_barrier
''')
stamp('p5_bar')
final8(vP5r, 7, sOD2, 'L_p5_done')
stamp('p5_done')
a(f's_cmp_lg_u32 s{sL}, 0\ns_cbranch_scc1 L_final')
D1,D2=poll_D(sOD2, None, 'd2_ok')
x_update(d_sum(D1,D2))
a(f'''
s_mov_b32 s{sL}, 1
s_mov_b32 s{sOGU}, 0x400
s_mov_b32 s{sOML}, 0x200
s_mov_b32 s{sOD1}, 0x4000
s_mov_b32 s{sOD2}, 0xC000
s_mov_b32 s{sOO}, 0x4000
s_mov_b32 s{sOO2}, {0x4000+7168}
s_branch L_layer
''')
a('L_final:')
a(f'''
s_cmp_lg_u32 s{sC}, 0
s_cbranch_scc1 L_fin_stamps
s_lshr_b32 s{sT0}, s{sS}, 1
s_cmp_lg_u32 s{sW}, s{sT0}
s_cbranch_scc1 L_fin_stamps
''')
D1,D2=poll_D(sOD2)
x_update(d_sum(D1,D2))
a(f'''
s_and_b32 s{sT0}, s{sS}, 1
s_cmp_eq_u32 s{sT0}, 0
s_cselect_b32 exec_lo, -1, 0
s_cselect_b32 exec_hi, 0, -1
s_lshl_b32 s{sT0}, s{sB}, 10
v_lshl_add_u32 {v(T)}, v0, 1, s{sT0}
buffer_store_short {v(T+20)}, {v(T)}, {srd(SRD_OUT)}, 0 offen
s_mov_b64 exec, -1
s_cmp_lg_u32 s{sS}, 0
s_cbranch_scc1 L_fin_stamps
s_lshl_b32 s{sT0}, s{sB}, 7
s_add_u32 s{sT0}, s{sT0}, {EB}
v_mov_b32 {v(T+2)}, s{sT0}
v_mov_b32 {v(T+1)}, s{sTAG}
s_mov_b64 exec, 1
buffer_store_dword {v(T+1)}, {v(T+2)}, {srd(SRD_WS)}, 0 offen sc1
s_mov_b64 exec, -1
L_fin_stamps:
''')
if int(opt.get('dbgfast',0)):
    a(f'''s_cmp_lg_u32 s{sW}, 0
s_cbranch_scc1 L_nodbg
s_lshl_b32 s{sT0}, s2, 2
s_add_u32 s{sT0}, s{sT0}, 0xE2000
v_mov_b32 {v(T+2)}, s{sT0}
s_lshl_b32 s{sT1}, s{sXCC}, 4
s_or_b32 s{sT1}, s{sT1}, s{sFAST}
v_mov_b32 {v(T+1)}, s{sT1}
s_mov_b64 exec, 1
buffer_store_dword {v(T+1)}, {v(T+2)}, {srd(SRD_WS)}, 0 offen
s_mov_b64 exec, -1
L_nodbg:''')
if STAMPS:
    stamp('end')
    a(f'''
s_lshl_b32 s{sT0}, s2, 3
s_add_u32 s{sT0}, s{sT0}, s{sW}
s_lshl_b32 s{sT0}, s{sT0}, 8
s_add_u32 s{sT0}, s{sT0}, {STAMP_OFF}
v_lshl_add_u32 {v(T)}, {v(vL)}, 2, s{sT0}
buffer_store_dword {v(vSTAMP)}, {v(T)}, {srd(SRD_WS)}, 0 offen
''')
a('s_branch L_end')
a('L_bail:')
a('L_end:\ns_endpgm')
lines=a.text().split('\n')
lines,added=haz.fix(lines)
sys.stderr.write(f'auto nops: {added}; stamps: {stamp_names}\n')
open(sys.argv[1],'w').write(wrap('\n'.join(lines),256,512,LDS_BYTES,nvgpr=256,nsgpr=102))
if STAMPS: open(sys.argv[1]+'.stamps','w').write(','.join(stamp_names))
```

```python
import sys
from asmlib import *
import haz
opt=dict(a.split('=') for a in sys.argv[2:])
STAMPS=int(opt.get('stamps',0)); CPF=int(opt.get('cpf',1))
NT=opt.get('nt','nt'); NTW=opt.get('ntw','nt')
ROLE=opt.get('role','xcd')
FORCESLOW=int(opt.get('slow',0))
SPIN=int(opt.get('spin',1<<17))
ACK=int(opt.get('ack',1))
a=Asm()
GRPSZ=0xC000; QB=0x0400; GUB=0x0800; MLB=0x1000; OB=0x2000
D1B=0xC0000
Q0T=0xD0000; FB=0xE0000; EB=0xE1000; EPC=0x9E3779B9
STAMP_OFF=0x10000000
LV=0; LW=65536; SB=131072
LX=SB; LZ=SB+1024; LPARTC=SB+1280; LPART=SB+2816+0; LPL=SB+4864; LML=SB+6912; LP3=SB+7168; LHB=SB+8704; LP5=SB+9216; LFAST=SB+10752; LQ=SB+11264; LDUM=SB+12288; LWD=SB+12288
LDS_BYTES=SB+12288+16384
KDMA=int(opt.get('kdma',0)); KE=int(opt.get('ke',0)); PF3=opt.get('pf3','q'); WGP2=int(opt.get('wgp2',0)); WDO=int(opt.get('wdo',0)); ALLW=int(opt.get('allw',0)); VBAR=int(opt.get('vbar',1)); WGE=int(opt.get('wge',1)); WDE=int(opt.get('wde',1)); ILV=int(opt.get('ilv',0)); PF=int(opt.get('pf',1)); NVA=int(opt.get('nva',4)); NV1=int(opt.get('nv1',0)); PFW=int(opt.get('pfw',0)); QBAR=int(opt.get('qbar',1)); WOLATE=int(opt.get('wolate',1)); WGLATE=int(opt.get('wglate',1)); KBAR=int(opt.get('kbar',1)); NTP=opt.get('ntp','')
sW,sC,sR,sB,sS=3,4,5,6,7
SRD_K,SRD_V,SRD_WQ,SRD_WO,SRD_WGU,SRD_WD,SRD_WS,SRD_OUT,SRD_X=32,36,40,44,48,52,56,64,68
sTAG,sXCC,sOO2,sOD2P=60,61,62,63
sL,sFAST,sOGU,sOML,sOD1,sOD2,sOO,sSPIN,s4096,sCS=72,73,76,77,78,79,80,81,82,83
sT0,sT1=84,85
mI4,mEVEN,mI0=86,88,90
sT2,sT3=92,93
mLO=100; sNL2E=94; sGRP=95; sT4,sT5=96,97; sSTP=98
def srd(n): return f's[{n}:{n+3}]'
vTID,vL,vI,vG=0,1,2,3
(vXw,vXr,vPw,vPr,vDrd,vDwr,vQrd,vQwr,vGUwr,vGUrd,vOwr,vOrd,vMLwr,vMLrd,vPLw,vPLr,vMLw,vMLr,vP3w,vP3r,vHw,vHr,vP5w,vP5r,vSh,vX,vSTAMP,vWN0,vWN1,vVr)=range(4,34)
vKo,vVoE,vVoO,vWqo,vWoo,vWguo,vWdo,vOst0,vOst1,vQl=range(34,44)
T=44
XB=T+36
vCSQ,vCSG=37,34
RK,RV,RWQ,RWO,RWG,RWD,RID=128,160,192,208,224,240,248
def v(n): return f'v{n}'
def vr(n,k): return f'v[{n}:{n+k-1}]'
nstamp=[0]; stamp_names=[]
STSEL=opt.get('stsel','')
def stamp(name):
    if not STAMPS: return
    if STAMPS==2 and name!='end' and name not in STSEL.split(','): return
    i=nstamp[0]; nstamp[0]+=1; stamp_names.append(name)
    a(f's_memtime s[{sSTP}:{sSTP+1}]\ns_mul_i32 m0, s{sL}, 30\ns_add_u32 m0, m0, {i+2}\ns_waitcnt lgkmcnt(0)\nv_writelane_b32 {v(vSTAMP)}, s{sSTP}, m0')
uid=[0]
def lbl(p):
    uid[0]+=1; return f'L_{p}_{uid[0]}'
def spin_check(retry):
    a(f's_add_u32 s{sSPIN}, s{sSPIN}, 1\ns_cmp_lt_u32 s{sSPIN}, {SPIN}\ns_cbranch_scc1 {retry}\ns_branch L_bail')
def check_valid(regs_, ok, tmp):
    rs=list(regs_)
    if len(rs)==2:
        a(f'v_max_u32 {v(tmp)}, {v(rs[0])}, {v(rs[1])}')
    else:
        a(f'v_max3_u32 {v(tmp)}, {v(rs[0])}, {v(rs[1])}, {v(rs[2])}')
        k=3; alt=[tmp,tmp+1]; used2=False
        if len(rs)>=8:
            a(f'v_max3_u32 {v(tmp+1)}, {v(rs[3])}, {v(rs[4])}, {v(rs[5])}'); k=6; used2=True
        tog=0
        while k<len(rs):
            d=alt[tog%2] if used2 else tmp
            if k+1<len(rs):
                a(f'v_max3_u32 {v(d)}, {v(d)}, {v(rs[k])}, {v(rs[k+1])}'); k+=2
            else:
                a(f'v_max_u32 {v(d)}, {v(d)}, {v(rs[k])}'); k+=1
            tog+=1
        if used2: a(f'v_max_u32 {v(tmp)}, {v(tmp)}, {v(tmp+1)}')
    a(f'v_cmp_eq_u32 vcc, -1, {v(tmp)}')
    a(f's_cbranch_vccz {ok}')
def exec_all(): a('s_mov_b64 exec, -1')
def exec_mask(m): a(f's_mov_b64 exec, s[{m}:{m+1}]')
def pub_store(instr):
    l1=lbl('pubs'); l2=lbl('pubd')
    a(f's_cmp_eq_u32 s{sFAST}, 0\ns_cbranch_scc1 {l1}')
    a(instr); a(f's_branch {l2}'); a(f'{l1}:'); a(instr+' sc1'); a(f'{l2}:')
def ack():
    if ACK: a('s_waitcnt vmcnt(0)')

a(f'''
s_cmp_ge_u32 s2, 256
s_cbranch_scc1 L_end
s_load_dwordx16 s[8:23], s[0:1], 0
s_load_dwordx8 s[24:31], s[0:1], 64
''')
if CPF:
    a(f'''s_getpc_b64 s[74:75]
L_pc:
s_sub_u32 s74, s74, L_pc-{NAME}
s_subb_u32 s75, s75, 0
s_lshr_b32 s76, s2, 3
s_and_b32 s76, s76, {CPF if CPF>1 else 1}
s_lshl_b32 s76, s76, 13
v_lshlrev_b32 v126, 7, v0
v_add_u32 v126, s76, v126
v_min_u32 v126, L_end-{NAME}, v126
v_cmp_gt_u32 vcc, 64, v0
s_and_saveexec_b64 s[76:77], vcc
s_cbranch_execz L_cpf_done
global_load_dword v127, v126, s[74:75]
L_cpf_done:
s_mov_b64 exec, s[76:77]''')
if STAMPS:
    a(f's_memrealtime s[{sT4}:{sT5}]\ns_memtime s[{sSTP}:{sSTP+1}]')
a(f'''
v_lshrrev_b32 {v(T)}, 6, v0
v_and_b32 {v(vL)}, 63, v0
v_and_b32 {v(vI)}, 15, v0
v_readfirstlane_b32 s{sW}, {v(T)}
v_lshrrev_b32 {v(vG)}, 4, {v(vL)}
''')
if ROLE=='xcd':
    a(f's_and_b32 s{sC}, s2, 7\ns_lshr_b32 s{sR}, s2, 3')
else:
    a(f's_lshr_b32 s{sC}, s2, 3\ns_and_b32 s{sC}, s{sC}, 7\ns_and_b32 s{sR}, s2, 7\ns_lshr_b32 s{sT0}, s2, 6\ns_lshl_b32 s{sT0}, s{sT0}, 3\ns_or_b32 s{sR}, s{sR}, s{sT0}')
a(f'''
s_lshr_b32 s{sB}, s{sR}, 4
s_and_b32 s{sS}, s{sR}, 15
s_lshl_b32 s{sGRP}, s{sB}, 3
s_add_u32 s{sGRP}, s{sGRP}, s{sC}       ; grp = b*8+c
s_mov_b32 s{s4096}, 4096
s_mov_b32 s{sL}, 0
; weight staging voffsets: row = l/4, chunk = (l%4) ^ (2*(l/32))
v_lshrrev_b32 {v(T)}, 2, {v(vL)}
v_and_b32 {v(T+1)}, 3, {v(vL)}
v_lshrrev_b32 {v(T+2)}, 5, {v(vL)}
v_lshlrev_b32 {v(T+2)}, 1, {v(T+2)}
v_xor_b32 {v(T+1)}, {v(T+1)}, {v(T+2)}
v_lshlrev_b32 {v(T+1)}, 4, {v(T+1)}          ; chunk*16
s_lshl_b32 s{sT0}, s{sW}, 6
v_add_u32 {v(T+2)}, s{sT0}, {v(T)}           ; row = 64w + l/4
v_lshl_add_u32 {v(vWqo)}, {v(T+2)}, 13, {v(T+1)}
v_lshl_add_u32 {v(vWoo)}, {v(T+2)}, 10, {v(T+1)}
s_mov_b32 s{sT1}, 3584
v_mul_lo_u32 {v(T+3)}, {v(T+2)}, s{sT1}
v_add_u32 {v(vWguo)}, {v(T+3)}, {v(T+1)}
s_lshl_b32 s{sT0}, s{sW}, 5
v_add_u32 {v(T+2)}, s{sT0}, {v(T)}           ; row = 32w + l/4
v_lshl_add_u32 {v(vWdo)}, {v(T+2)}, 10, {v(T+1)}
v_lshlrev_b32 {v(T+4)}, 1, v0
''')
if STAMPS:
    a(f's_waitcnt lgkmcnt(0)\nv_mov_b32 {v(vSTAMP)}, 0\nv_writelane_b32 {v(vSTAMP)}, s{sT4}, 0\nv_writelane_b32 {v(vSTAMP)}, s{sSTP}, 1')
a('s_waitcnt lgkmcnt(0)')
a(f'''
s_lshl_b32 s{sT0}, s{sB}, 10
s_add_u32 s{SRD_X}, s8, s{sT0}
s_addc_u32 s{SRD_X+1}, s9, 0
s_mov_b32 s{SRD_X+2}, 1024
s_mov_b32 s{SRD_X+3}, 0x20000
s_lshl_b32 s{sT0}, s{sC}, 10
s_lshl_b32 s{sT1}, s{sS}, 6
s_add_u32 s{sT0}, s{sT0}, s{sT1}
s_add_u32 s{SRD_WQ}, s14, s{sT0}
s_addc_u32 s{SRD_WQ+1}, s15, 0
s_sub_u32 s{SRD_WQ+2}, 4194304, s{sT0}
s_mov_b32 s{SRD_WQ+3}, 0x20000
buffer_load_ushort {v(vX)}, {v(T+4)}, {srd(SRD_X)}, 0 offen
''')
def w_dma(srd_, voff, slot, nins, rowstride, nt):
    if slot==2: a(f's_lshl_b32 s{sT0}, s{sW}, 11\ns_add_u32 m0, s{sT0}, {LWD}')
    else: a(f's_lshl_b32 s{sT0}, s{sW}, 13\ns_add_u32 m0, s{sT0}, {LW+slot*4096}')
    for n in range(nins):
        if n==0:
            a('s_nop 0'); so='0'
        else:
            a(f's_mov_b32 s{sT1}, {n*(16*rowstride-1024)}'); so=f's{sT1}'
        a(f'buffer_load_dwordx4 {v(voff)}, {srd(srd_)}, {so} offen offset:{n*1024} {nt} lds')
SRD_PF=SRD_X
def pf_setup(ptr_lo, size):
    a(f's_mov_b32 s{SRD_PF}, s{ptr_lo}\ns_mov_b32 s{SRD_PF+1}, s{ptr_lo+1}\ns_mov_b32 s{SRD_PF+2}, {size}\ns_mov_b32 s{SRD_PF+3}, 0x20000')
def pf_m0():
    a(f's_lshl_b32 s{sT0}, s{sW}, 10\ns_add_u32 m0, s{sT0}, {LDUM}')
def pf_load(voff, soff):
    a(f'buffer_load_dwordx4 {v(voff)}, {srd(SRD_PF)}, {soff} offen {NTP} lds')
def pf_wq():
    if not PF: return 0
    pf_setup(14, 4194304); pf_m0()
    a(f's_lshl_b32 s{sT0}, s{sR}, 4\ns_lshl_b32 s{sT1}, s{sW}, 1\ns_add_u32 s{sT0}, s{sT0}, s{sT1}\ns_lshl_b32 s{sT0}, s{sT0}, 13\ns_lshl_b32 s{sT1}, s{sC}, 10\ns_add_u32 s{sT0}, s{sT0}, s{sT1}')
    a(f'v_lshlrev_b32 {v(T+10)}, 4, {v(vL)}')
    pf_load(T+10, f's{sT0}')
    a(f's_add_u32 s{sT0}, s{sT0}, 8192'); pf_load(T+10, f's{sT0}')
    return 2
def pf_wo():
    if not PF: return 0
    pf_setup(16, 4194304); pf_m0()
    a(f's_lshl_b32 s{sT0}, s{sC}, 19\ns_lshl_b32 s{sT1}, s{sR}, 14\ns_add_u32 s{sT0}, s{sT0}, s{sT1}\ns_lshl_b32 s{sT1}, s{sW}, 11\ns_add_u32 s{sT0}, s{sT0}, s{sT1}')
    a(f'v_lshlrev_b32 {v(T+62)}, 4, {v(vL)}')
    pf_load(T+62, f's{sT0}')
    a(f's_add_u32 s{sT0}, s{sT0}, 1024'); pf_load(T+62, f's{sT0}')
    return 2
def pf_wgu():
    if not PF: return 0
    pf_m0()
    a(f's_lshl_b32 s{sT0}, s{sR}, 4\ns_lshl_b32 s{sT1}, s{sW}, 1\ns_add_u32 s{sT0}, s{sT0}, s{sT1}\ns_mul_i32 s{sT0}, s{sT0}, 3584\ns_mul_i32 s{sT1}, s{sC}, 448\ns_add_u32 s{sT2}, s{sT0}, s{sT1}')
    a(f'v_lshrrev_b32 {v(T+62)}, 5, {v(vL)}\nv_mul_u32_u24 {v(T+62)}, 3584, {v(T+62)}\nv_and_b32 {v(T+63)}, 31, {v(vL)}\nv_lshl_add_u32 {v(T+62)}, {v(T+63)}, 4, {v(T+62)}')
    pf_setup(20, 1835008); pf_load(T+62, f's{sT2}')
    pf_setup(22, 1835008); pf_load(T+62, f's{sT2}')
    return 2
def pf_wd():
    if not PF: return 0
    pf_setup(24, 1835008); pf_m0()
    a(f's_mul_i32 s{sT0}, s{sC}, 229376\ns_mul_i32 s{sT1}, s{sR}, 7168\ns_add_u32 s{sT0}, s{sT0}, s{sT1}\ns_lshl_b32 s{sT1}, s{sW}, 10\ns_add_u32 s{sT0}, s{sT0}, s{sT1}')
    a(f'v_lshlrev_b32 {v(T+62)}, 4, {v(vL)}')
    pf_load(T+62, f's{sT0}')
    return 1
def pf3(which, wave, dst):
    if which not in PF3: return
    l=lbl('pf3')
    a(f's_cmp_lg_u32 s{sW}, {wave}\ns_cbranch_scc1 {l}')
    t0,t1=T+60,T+61
    if which=='q':
        pf_setup(14, 4194304)
        a(f'v_and_b32 {v(t0)}, 15, {v(vL)}\ns_lshl_b32 s{sT0}, s{sR}, 4\nv_add_u32 {v(t0)}, s{sT0}, {v(t0)}\nv_lshlrev_b32 {v(t0)}, 13, {v(t0)}\ns_lshl_b32 s{sT0}, s{sC}, 10\ns_add_u32 s{sT0}, s{sT0}, 384')
    elif which=='o':
        pf_setup(16, 4194304)
        a(f'v_and_b32 {v(t0)}, 15, {v(vL)}\ns_lshl_b32 s{sT0}, s{sR}, 4\nv_add_u32 {v(t0)}, s{sT0}, {v(t0)}\nv_lshlrev_b32 {v(t0)}, 10, {v(t0)}\ns_lshl_b32 s{sT0}, s{sC}, 19\ns_add_u32 s{sT0}, s{sT0}, 384')
    elif which=='d':
        pf_setup(24, 1835008)
        a(f'v_and_b32 {v(t0)}, 15, {v(vL)}\nv_min_u32 {v(t0)}, 6, {v(t0)}\ns_mul_i32 s{sT0}, s{sR}, 7\nv_add_u32 {v(t0)}, s{sT0}, {v(t0)}\nv_lshlrev_b32 {v(t0)}, 10, {v(t0)}\ns_mul_i32 s{sT0}, s{sC}, 229376\ns_add_u32 s{sT0}, s{sT0}, 384')
    if which in 'qod':
        a(f'v_lshrrev_b32 {v(t1)}, 4, {v(vL)}\nv_and_b32 {v(t1)}, 1, {v(t1)}\nv_lshl_add_u32 {v(t0)}, {v(t1)}, 6, {v(t0)}')
        a(f's_mov_b32 exec_hi, 0\nbuffer_load_dword {v(dst)}, {v(t0)}, {srd(SRD_PF)}, s{sT0} offen\ns_mov_b32 exec_hi, -1')
    else:
        a(f'''v_and_b32 {v(t0)}, 15, {v(vL)}
s_lshl_b32 s{sT0}, s{sR}, 4
v_add_u32 {v(t0)}, s{sT0}, {v(t0)}
v_mul_u32_u24 {v(t0)}, 28, {v(t0)}
s_mul_i32 s{sT0}, s{sC}, 7
s_lshr_b32 s{sT0}, s{sT0}, 1
v_add_u32 {v(t0)}, s{sT0}, {v(t0)}
v_sub_u32 {v(t1)}, 3, {v(t0)}
v_and_b32 {v(t1)}, 7, {v(t1)}
v_min_u32 {v(t1)}, 4, {v(t1)}
v_add_u32 {v(t0)}, {v(t0)}, {v(t1)}
v_lshlrev_b32 {v(t0)}, 7, {v(t0)}
v_lshrrev_b32 {v(t1)}, 4, {v(vL)}
v_and_b32 {v(t1)}, 1, {v(t1)}
v_lshl_add_u32 {v(t0)}, {v(t1)}, 6, {v(t0)}
s_mov_b32 exec_hi, 0''')
        pf_setup(20, 1835008); a(f'buffer_load_dword {v(dst)}, {v(t0)}, {srd(SRD_PF)}, 0 offen')
        pf_setup(22, 1835008); a(f'buffer_load_dword {v(dst+1)}, {v(t0)}, {srd(SRD_PF)}, 0 offen')
        a('s_mov_b32 exec_hi, -1')
    a(f'{l}:')
def w_tr(dst, slot, nkk):
    if slot==2:
        a(f's_mul_i32 s{sT0}, s{sW}, {(2048-8192)&0xffffffff}\ns_add_u32 s{sT0}, s{sT0}, {(LWD-LW)&0xffffffff}\nv_add_u32 {v(T+60)}, s{sT0}, {v(vWN0)}\nv_xor_b32 {v(T+61)}, 32, {v(T+60)}')
        for nt_ in range(2):
            for hh in range(2):
                r=dst+nt_*4+hh*2
                a(f'ds_read_b64_tr_b16 {vr(r,2)}, {v(T+60 if nt_==0 else T+61)} offset:{hh*256}')
        return
    for kk in range(nkk):
        for nt_ in range(2):
            for hh in range(2):
                r=dst+(kk*2+nt_)*4+hh*2
                a(f'ds_read_b64_tr_b16 {vr(r,2)}, {v(vWN0 if nt_==0 else vWN1)} offset:{slot*4096+kk*2048+hh*256}')
if KE:
    a(f'''s_mov_b32 s{SRD_WS}, s30
s_mov_b32 s{SRD_WS+1}, s31
s_mov_b32 s{SRD_WS+2}, 0x20000000
s_mov_b32 s{SRD_WS+3}, 0x20000
s_cmp_eq_u32 s{sW}, 0
s_cbranch_scc1 L_proto
L_proto_ret:''')
pf3('q',1,T+41)
NPQ=pf_wq()
if not PFW and not ILV: w_dma(SRD_WQ, vWqo, 0, 4, 8192, NTW)
a(f'''
s_lshl_b32 s{sT0}, s{sGRP}, 23
s_lshl_b32 s{sT1}, s{sS}, 16
s_add_u32 s{sT0}, s{sT0}, s{sT1}
s_add_u32 s{sT0}, s{sT0}, 7340032
s_add_u32 s{SRD_V}, s12, s{sT0}
s_addc_u32 s{SRD_V+1}, s13, 0
s_mov_b32 s{SRD_V+2}, 65536
s_mov_b32 s{SRD_V+3}, 0x20000
s_add_u32 s{SRD_K}, s10, s{sT0}
s_addc_u32 s{SRD_K+1}, s11, 0
s_mov_b32 s{SRD_K+2}, 65536
s_mov_b32 s{SRD_K+3}, 0x20000
s_mov_b32 s{SRD_WS}, s30
s_mov_b32 s{SRD_WS+1}, s31
s_mov_b32 s{SRD_WS+2}, 0x20000000
s_mov_b32 s{SRD_WS+3}, 0x20000
; K voffset = w*8192 + i*256 + g*16
s_lshl_b32 s{sT0}, s{sW}, 13
v_lshlrev_b32 {v(T)}, 8, {v(vI)}
v_lshl_add_u32 {v(T)}, {v(vG)}, 4, {v(T)}
v_add_u32 {v(vKo)}, s{sT0}, {v(T)}
v_lshlrev_b32 {v(T)}, 1, {v(vG)}
v_xor_b32 {v(T)}, {v(T)}, {v(vI)}
v_lshlrev_b32 {v(T)}, 4, {v(T)}
v_lshl_add_u32 {v(vVoE)}, {v(vG)}, 8, {v(T)}
v_xor_b32 {v(vVoO)}, 128, {v(vVoE)}
''')
def k_tile(t):
    for kk in range(4):
        r=RK+(t*4+kk)*4
        so='0' if t==0 else f's{s4096}'
        a(f'buffer_load_dwordx4 {vr(r,4)}, {v(vKo)}, {srd(SRD_K)}, {so} offen offset:{kk*64} {NT}')
def k_first():
    l1=lbl('kf'); l2=lbl('kfd')
    a(f's_add_u32 s{sT0}, s{sW}, s{sS}\ns_bitcmp1_b32 s{sT0}, 0\ns_cbranch_scc1 {l1}')
    k_tile(0); a(f's_branch {l2}\n{l1}:'); k_tile(1); a(f'{l2}:')
def k_second():
    l1=lbl('ks'); l2=lbl('ksd')
    a(f's_add_u32 s{sT0}, s{sW}, s{sS}\ns_bitcmp1_b32 s{sT0}, 0\ns_cbranch_scc1 {l1}')
    k_tile(1); a(f's_branch {l2}\n{l1}:'); k_tile(0); a(f'{l2}:')
def k_dma():
    a(f'''v_xor_b32 {v(T+62)}, {v(vI)}, {v(vG)}
v_lshlrev_b32 {v(T+62)}, 4, {v(T+62)}
v_lshl_add_u32 {v(T+62)}, {v(vG)}, 8, {v(T+62)}
s_add_u32 s{sT2}, s{sW}, s{sS}
s_lshl_b32 s{sT3}, s{sW}, 13''')
    for n in range(8):
        a(f'''s_add_u32 s{sT0}, s{sT2}, {n}
s_and_b32 s{sT0}, s{sT0}, 7
s_and_b32 s{sT1}, s{sT0}, 3
s_lshl_b32 s{sT1}, s{sT1}, 6
v_xor_b32 {v(T+63)}, s{sT1}, {v(T+62)}
s_lshl_b32 s{sT0}, s{sT0}, 10
s_add_u32 s{sT0}, s{sT0}, s{sT3}
s_add_u32 m0, s{sT0}, {LW}
s_nop 0
buffer_load_dwordx4 {v(T+63)}, {srd(SRD_K)}, s{sT0} offen {NT} lds''')
def k_frags():
    a(f'''v_xor_b32 {v(T+62)}, {v(vI)}, {v(vG)}
v_lshlrev_b32 {v(T+62)}, 4, {v(T+62)}
v_lshl_add_u32 {v(T+62)}, {v(vI)}, 8, {v(T+62)}
s_lshl_b32 s{sT0}, s{sW}, 13
s_add_u32 s{sT0}, s{sT0}, {LW}
v_add_u32 {v(T+62)}, s{sT0}, {v(T+62)}''')
    for kk in range(4):
        if kk: a(f'v_xor_b32 {v(T+63)}, {64*kk}, {v(T+62)}')
        r=T+62 if kk==0 else T+63
        for t in range(2): a(f'ds_read_b128 {vr(RK+(t*4+kk)*4,4)}, {v(r)} offset:{t*4096}')
def e_load(dst):
    a(f's_lshl_b32 s{sT0}, s{sB}, 7\ns_add_u32 s{sT0}, s{sT0}, {EB}\nv_mov_b32 {v(dst)}, s{sT0}\nbuffer_load_dword {v(dst)}, {v(dst)}, {srd(SRD_WS)}, 0 offen sc1')
vE=T+30
def v_dma(n0,n1):
    a(f's_add_u32 s{sT2}, s{sW}, s{sS}\ns_and_b32 s{sT2}, s{sT2}, 3\ns_lshl_b32 s{sT2}, s{sT2}, 1\ns_lshl_b32 s{sT3}, s{sW}, 13')
    for n in range(n0,n1):
        a(f's_add_u32 s{sT0}, s{sT2}, {n}\ns_and_b32 s{sT0}, s{sT0}, 7\ns_lshl_b32 s{sT0}, s{sT0}, 10\ns_add_u32 s{sT0}, s{sT0}, s{sT3}')
        a(f's_add_u32 m0, s{sT0}, {LV}\ns_nop 0')
        a(f'buffer_load_dwordx4 {v(vVoE if n%2==0 else vVoO)}, {srd(SRD_V)}, s{sT0} offen {NT} lds')
def wq_one(n):
    a(f's_lshl_b32 s{sT0}, s{sW}, 13\ns_add_u32 m0, s{sT0}, {LW}\ns_mov_b32 s{sT1}, {n*(16*8192-1024)}')
    a(f'buffer_load_dwordx4 {v(vWqo)}, {srd(SRD_WQ)}, s{sT1} offen offset:{n*1024} {NTW} lds')
def ilv_issue():
    nv=0
    for n in range(4):
        wq_one(n)
        k=min(ILV, NVA-nv) if n<3 else NVA-nv
        v_dma(nv,nv+k); nv+=k
    return k
if ILV:
    a(f's_cmp_eq_u32 s{sW}, 0\ns_cbranch_scc1 L_proto')
    a(f's_cmp_lg_u32 s{sW}, 7\ns_cbranch_scc1 L_va')
    e_load(vE)
    a('L_va:')
    NTAIL=ilv_issue()
    a('s_branch L_pre_p1')
elif PFW:
    v_dma(0,NV1)
    a(f's_waitcnt vmcnt({NV1})')
    w_dma(SRD_WQ, vWqo, 0, 4, 8192, NTW)
else:
    v_dma(0,NV1)
if KE:
    if QBAR: a('s_barrier')
    a(f's_cmp_lg_u32 s{sW}, 7\ns_cbranch_scc1 L_va')
    e_load(vE)
    a('L_va:')
    v_dma(0,NVA)
    k_first(); k_second()
    a('s_branch L_pre_p1')
    NTAIL=NVA+8
elif not ILV:
    if QBAR: a('s_barrier')
    a(f's_cmp_eq_u32 s{sW}, 0\ns_cbranch_scc1 L_proto')
    a(f's_cmp_lg_u32 s{sW}, 7\ns_cbranch_scc1 L_va')
    e_load(vE)
    a('L_va:')
    v_dma(NV1,NVA)
    a('s_branch L_pre_p1')
    NTAIL=NVA-NV1
OLDCPF='' if CPF else '''; code prefetch into L2: (r&7)*2KB + lane*128 (16 lanes), clamped to the code size
s_getpc_b64 s[74:75]
L_pc:
s_sub_u32 s74, s74, L_pc-'''+NAME+'''
s_subb_u32 s75, s75, 0
s_and_b32 s84, s5, 7
s_lshl_b32 s84, s84, 11
v_and_b32 v45, 15, v1
v_lshl_add_u32 v45, v45, 7, s84
v_min_u32 v45, L_end-'''+NAME+''', v45
global_load_dword v84, v45, s[74:75]
'''
a('L_proto:')
e_load(vE)
a(f'''
s_mul_i32 s{sT0}, s{sGRP}, {GRPSZ}
s_mul_i32 s{sT1}, s{sS}, 3072
s_add_u32 s{sT0}, s{sT0}, s{sT1}
v_lshl_add_u32 {v(T)}, {v(vL)}, 4, s{sT0}
v_mov_b32 {v(T+4)}, -1
v_mov_b32 {v(T+5)}, -1
v_mov_b32 {v(T+6)}, -1
v_mov_b32 {v(T+7)}, -1
buffer_store_dwordx4 {vr(T+4,4)}, {v(T)}, {srd(SRD_WS)}, 0 offen sc1
buffer_store_dwordx4 {vr(T+4,4)}, {v(T)}, {srd(SRD_WS)}, 0 offen offset:1024 sc1
buffer_store_dwordx4 {vr(T+4,4)}, {v(T)}, {srd(SRD_WS)}, 0 offen offset:2048 sc1
; my four 64-byte partial-sum pieces: D1B + b*0x2000 + (s/2)*1024 + c*128 + (s%2)*64 + (l>>2)*0x4000 + (l&3)*16
s_lshl_b32 s{sT0}, s{sB}, 13
s_lshr_b32 s{sT1}, s{sS}, 1
s_lshl_b32 s{sT1}, s{sT1}, 10
s_add_u32 s{sT0}, s{sT0}, s{sT1}
s_lshl_b32 s{sT1}, s{sC}, 7
s_add_u32 s{sT0}, s{sT0}, s{sT1}
s_and_b32 s{sT1}, s{sS}, 1
s_lshl_b32 s{sT1}, s{sT1}, 6
s_add_u32 s{sT0}, s{sT0}, s{sT1}
s_add_u32 s{sT0}, s{sT0}, {D1B}
v_lshrrev_b32 {v(T+1)}, 2, {v(vL)}
v_lshlrev_b32 {v(T+1)}, 14, {v(T+1)}
v_and_b32 {v(T+2)}, 3, {v(vL)}
v_lshl_add_u32 {v(T+1)}, {v(T+2)}, 4, {v(T+1)}
v_add_u32 {v(T+1)}, s{sT0}, {v(T+1)}
s_mov_b64 exec, 0xffff
buffer_store_dwordx4 {vr(T+4,4)}, {v(T+1)}, {srd(SRD_WS)}, 0 offen sc1
s_mov_b64 exec, -1
{OLDCPF}
''')
if ILV: ilv_issue()
if KE: a('s_branch L_proto_ret')
a('L_pre_p1:')
stamp('issued0')
a(f's_getreg_b32 s{sXCC}, hwreg(HW_REG_XCC_ID, 0, 4)')
a(f'''
v_lshlrev_b32 {v(vXw)}, 1, v0
v_add_u32 {v(vXw)}, {LX}, {v(vXw)}
s_lshl_b32 s{sT0}, s{sW}, 7
v_lshl_add_u32 {v(vXr)}, {v(vG)}, 4, s{sT0}
v_add_u32 {v(vXr)}, {LX}, {v(vXr)}
v_cmp_eq_u32 vcc, 0, {v(vI)}
v_mov_b32 {v(T)}, {LZ}
s_lshl_b32 s{sT1}, s{sW}, 3
v_cndmask_b32 {v(vXr)}, {v(T)}, {v(vXr)}, vcc
s_lshl_b32 s{sT2}, s{sW}, 2
s_add_u32 s{sT2}, s{sT2}, {LPART+32*48}
v_mov_b32 {v(vPw)}, s{sT2}
v_min_u32 {v(T)}, 33, {v(vL)}
v_mul_u32_u24 {v(T)}, 48, {v(T)}
v_add_u32 {v(vPr)}, {LPART}, {v(T)}
s_lshl_b32 s{sT0}, s{sW}, 8
v_lshlrev_b32 {v(T)}, 6, {v(vI)}
v_lshl_add_u32 {v(T)}, {v(vG)}, 4, {v(T)}
v_add_u32 {v(T)}, s{sT0}, {v(T)}
v_add_u32 {v(vPLw)}, {LPL}, {v(T)}
v_lshrrev_b32 {v(T)}, 2, {v(vI)}
v_lshlrev_b32 {v(T)}, 6, {v(T)}
v_lshl_add_u32 {v(T)}, {v(vG)}, 4, {v(T)}
v_add_u32 {v(vPLr)}, {LPL}, {v(T)}
v_lshlrev_b32 {v(T)}, 6, {v(vI)}
v_add_u32 {v(T)}, s{sT1}, {v(T)}
v_add_u32 {v(vMLw)}, {LML}, {v(T)}
v_lshlrev_b32 {v(T)}, 6, {v(vG)}
v_add_u32 {v(vMLr)}, {LML}, {v(T)}
v_lshrrev_b32 {v(T)}, 5, {v(vL)}
v_lshl_add_u32 {v(T)}, {v(T)}, 4, {v(vI)}
v_mul_u32_u24 {v(T)}, 48, {v(T)}
s_lshl_b32 s{sT0}, s{sW}, 2
v_add_u32 {v(T)}, s{sT0}, {v(T)}
v_add_u32 {v(vP3w)}, {LP3}, {v(T)}
v_and_b32 {v(T+1)}, 31, {v(vL)}
v_mul_u32_u24 {v(T)}, 48, {v(T+1)}
v_add_u32 {v(vP3r)}, {LP3}, {v(T)}
v_add_u32 {v(vP5r)}, {LP5}, {v(T)}
v_mul_u32_u24 {v(T)}, 48, {v(vI)}
v_add_u32 {v(T)}, s{sT0}, {v(T)}
v_add_u32 {v(vP5w)}, {LP5}, {v(T)}
; H bounce: write LHB + w*64 + (l%32)*2 ; read LHB + w*64 + g*16
s_lshl_b32 s{sT0}, s{sW}, 6
v_lshl_add_u32 {v(T)}, {v(T+1)}, 1, s{sT0}
v_add_u32 {v(vHw)}, {LHB}, {v(T)}
v_lshl_add_u32 {v(T)}, {v(vG)}, 4, s{sT0}
v_add_u32 {v(vHr)}, {LHB}, {v(T)}
v_and_b32 {v(T)}, 1, {v(vL)}
v_lshlrev_b32 {v(T)}, 4, {v(T)}
v_sub_u32 {v(vSh)}, 16, {v(T)}
v_lshrrev_b32 {v(T)}, 2, {v(vI)}
v_lshl_add_u32 {v(T)}, {v(vG)}, 3, {v(T)}
v_lshlrev_b32 {v(T)}, 6, {v(T)}
v_and_b32 {v(T+2)}, 3, {v(vI)}
v_lshrrev_b32 {v(T+3)}, 1, {v(T+2)}
v_and_b32 {v(T+4)}, 1, {v(vG)}
v_lshlrev_b32 {v(T+4)}, 1, {v(T+4)}
v_xor_b32 {v(T+3)}, {v(T+3)}, {v(T+4)}
v_lshl_add_u32 {v(T)}, {v(T+3)}, 4, {v(T)}
v_and_b32 {v(T+3)}, 1, {v(T+2)}
v_lshl_add_u32 {v(T)}, {v(T+3)}, 3, {v(T)}
s_lshl_b32 s{sT0}, s{sW}, 13
s_add_u32 s{sT0}, s{sT0}, {LW}
v_add_u32 {v(vWN0)}, s{sT0}, {v(T)}
v_xor_b32 {v(vWN1)}, 32, {v(vWN0)}
v_lshrrev_b32 {v(T)}, 2, {v(vI)}                 ; r
v_lshl_add_u32 {v(T+3)}, {v(vG)}, 2, {v(T)}      ; 4g+r
v_lshlrev_b32 {v(T+3)}, 8, {v(T+3)}
v_and_b32 {v(T+4)}, 1, {v(vG)}
v_lshlrev_b32 {v(T+4)}, 2, {v(T+4)}
v_add_u32 {v(T+4)}, {v(T+4)}, {v(T)}
v_lshlrev_b32 {v(T+4)}, 1, {v(T+4)}              ; 8*(g&1)+2r
v_lshrrev_b32 {v(T+5)}, 1, {v(T+2)}
s_lshl_b32 s{sT0}, s{sW}, 1
v_add_u32 {v(T+5)}, s{sT0}, {v(T+5)}
v_xor_b32 {v(T+5)}, {v(T+5)}, {v(T+4)}
v_lshl_add_u32 {v(T+3)}, {v(T+5)}, 4, {v(T+3)}
v_and_b32 {v(T+5)}, 1, {v(T+2)}
v_lshl_add_u32 {v(vVr)}, {v(T+5)}, 3, {v(T+3)}
s_lshl_b32 s{sT0}, s{sW}, 11
v_and_b32 {v(T)}, 7, {v(vI)}
v_xor_b32 {v(T)}, {v(T)}, {v(vG)}
v_lshlrev_b32 {v(T)}, 4, {v(T)}
v_lshl_add_u32 {v(T)}, {v(vI)}, 7, {v(T)}
v_add_u32 {v(T)}, s{sT0}, {v(T)}
v_add_u32 {v(vOst0)}, {LV}, {v(T)}
v_xor_b32 {v(vOst1)}, 64, {v(vOst0)}
v_and_b32 {v(T)}, 3, {v(vI)}
v_lshlrev_b32 {v(T)}, 8, {v(T)}
v_lshl_add_u32 {v(T)}, {v(vG)}, 4, {v(T)}
v_add_u32 {v(vQl)}, {LQ}, {v(T)}
; D read: D1B + b*0x2000 + w*1024 + (i&7)*128 + (i>>3)*64 + g*16
s_lshl_b32 s{sT0}, s{sB}, 13
s_lshl_b32 s{sT1}, s{sW}, 10
s_add_u32 s{sT1}, s{sT1}, s{sT0}
s_add_u32 s{sT1}, s{sT1}, {D1B}
v_and_b32 {v(T)}, 7, {v(vI)}
v_lshlrev_b32 {v(T)}, 7, {v(T)}
v_lshrrev_b32 {v(T+1)}, 3, {v(vI)}
v_lshl_add_u32 {v(T)}, {v(T+1)}, 6, {v(T)}
v_lshl_add_u32 {v(T)}, {v(vG)}, 4, {v(T)}
v_add_u32 {v(vDrd)}, s{sT1}, {v(T)}
; D write: D1B + b*0x2000 + (s/2)*1024 + c*128 + (s%2)*64 + l*2
s_lshr_b32 s{sT1}, s{sS}, 1
s_lshl_b32 s{sT1}, s{sT1}, 10
s_add_u32 s{sT0}, s{sT0}, s{sT1}
s_lshl_b32 s{sT1}, s{sC}, 7
s_add_u32 s{sT0}, s{sT0}, s{sT1}
s_and_b32 s{sT1}, s{sS}, 1
s_lshl_b32 s{sT1}, s{sT1}, 6
s_add_u32 s{sT0}, s{sT0}, s{sT1}
s_add_u32 s{sT0}, s{sT0}, {D1B}
v_lshl_add_u32 {v(vDwr)}, {v(vL)}, 1, s{sT0}
s_mul_i32 s{sT0}, s{sGRP}, {GRPSZ}
s_add_u32 s{sT1}, s{sT0}, {QB}
v_lshl_add_u32 {v(vQrd)}, {v(vL)}, 4, s{sT1}
s_lshl_b32 s{sT2}, s{sS}, 6
s_add_u32 s{sT1}, s{sT1}, s{sT2}
v_lshl_add_u32 {v(vQwr)}, {v(vL)}, 1, s{sT1}
s_lshl_b32 s{sT1}, s{sS}, 6
s_add_u32 s{sT2}, s{sT1}, 64
s_cmp_lt_u32 s{sS}, 7
s_cselect_b32 s{sT1}, s{sT1}, s{sT2}
s_add_u32 s{sT1}, s{sT1}, s{sT0}
s_add_u32 s{sT1}, s{sT1}, {GUB}
v_lshl_add_u32 {v(vGUwr)}, {v(vL)}, 1, s{sT1}
v_and_b32 {v(T)}, 30, {v(vL)}
v_lshlrev_b32 {v(T)}, 1, {v(T)}
s_lshl_b32 s{sT1}, s{sW}, 6
s_add_u32 s{sT1}, s{sT1}, s{sT0}
s_add_u32 s{sT1}, s{sT1}, {GUB}
v_add_u32 {v(vGUrd)}, s{sT1}, {v(T)}
; O write: OB + s*1024 + (g*128 + 16w + i)*2 ; DMA read: OB + (l/8)*1024 + w*128 + ((l%8)^(l/8))*16
s_add_u32 s{sT0}, s{sT0}, {OB}
s_lshl_b32 s{sT1}, s{sS}, 10
s_add_u32 s{sT1}, s{sT1}, s{sT0}
s_lshl_b32 s{sT2}, s{sW}, 5
s_add_u32 s{sT1}, s{sT1}, s{sT2}
v_lshlrev_b32 {v(T)}, 8, {v(vG)}
v_lshl_add_u32 {v(T)}, {v(vI)}, 1, {v(T)}
v_add_u32 {v(vOwr)}, s{sT1}, {v(T)}
s_lshl_b32 s{sT2}, s{sW}, 7
s_add_u32 s{sT1}, s{sT0}, s{sT2}
v_lshrrev_b32 {v(T)}, 3, {v(vL)}
v_and_b32 {v(T+1)}, 7, {v(vL)}
v_xor_b32 {v(T+1)}, {v(T+1)}, {v(T)}
v_lshlrev_b32 {v(T)}, 10, {v(T)}
v_lshl_add_u32 {v(T)}, {v(T+1)}, 4, {v(T)}
v_add_u32 {v(vOrd)}, s{sT1}, {v(T)}
s_mul_i32 s{sT0}, s{sGRP}, {GRPSZ}
s_add_u32 s{sT0}, s{sT0}, {MLB}
s_lshl_b32 s{sT1}, s{sS}, 3
s_add_u32 s{sT1}, s{sT1}, s{sT0}
v_lshl_add_u32 {v(vMLwr)}, {v(vG)}, 7, s{sT1}
s_lshr_b32 s{sT1}, s{sW}, 1
s_lshl_b32 s{sT1}, s{sT1}, 7
s_add_u32 s{sT1}, s{sT1}, s{sT0}
v_lshl_add_u32 {v(vMLrd)}, {v(vG)}, 5, s{sT1}
s_mov_b32 s{mI4}, 0x000f000f
s_mov_b32 s{mI4+1}, 0x000f000f
s_mov_b32 s{mEVEN}, 0x55555555
s_mov_b32 s{mEVEN+1}, 0x55555555
s_mov_b32 s{mI0}, 0x00010001
s_mov_b32 s{mI0+1}, 0x00010001
s_mov_b32 s{sCS}, 0x3e0293ee          ; 128^-0.5 * log2(e)
s_mov_b32 s{sNL2E}, 0xbfb8aa3b        ; -log2(e)
s_mov_b32 s{sOGU}, 0
s_mov_b32 s{sOML}, 0
s_mov_b32 s{sOD1}, 0
s_mov_b32 s{sOD2}, 0x8000
s_mov_b32 s{sOD2P}, 0x8000
s_mov_b32 s{mLO}, -1
s_mov_b32 s{mLO+1}, 0
s_mov_b32 s{sOO}, 0
s_mov_b32 s{sOO2}, 7168
s_mov_b32 s{sSPIN}, 0
s_mov_b32 s{sFAST}, 0
s_lshl_b32 s{sT0}, s{sC}, 19
s_lshl_b32 s{sT1}, s{sS}, 6
s_add_u32 s{sT0}, s{sT0}, s{sT1}
s_add_u32 s{SRD_WO}, s16, s{sT0}
s_addc_u32 s{SRD_WO+1}, s17, 0
s_sub_u32 s{SRD_WO+2}, 4194304, s{sT0}
s_mov_b32 s{SRD_WO+3}, 0x20000
s_mul_i32 s{sT0}, s{sC}, 229376
s_add_u32 s{sT0}, s{sT0}, s{sT1}
s_add_u32 s{SRD_WD}, s24, s{sT0}
s_addc_u32 s{SRD_WD+1}, s25, 0
s_sub_u32 s{SRD_WD+2}, 1835008, s{sT0}
s_mov_b32 s{SRD_WD+3}, 0x20000
s_mul_i32 s{sT0}, s{sC}, 448
s_sub_u32 s{sT2}, s{sT1}, 448
s_cmp_lt_u32 s{sS}, 7
s_cselect_b32 s{sT1}, s{sT1}, s{sT2}
s_cselect_b32 s{sT2}, s20, s22
s_cselect_b32 s{sT3}, s21, s23
s_add_u32 s{sT0}, s{sT0}, s{sT1}
s_add_u32 s{SRD_WGU}, s{sT2}, s{sT0}
s_addc_u32 s{SRD_WGU+1}, s{sT3}, 0
s_sub_u32 s{SRD_WGU+2}, 1835008, s{sT0}
s_mov_b32 s{SRD_WGU+3}, 0x20000
s_mov_b32 s{SRD_OUT}, s26
s_mov_b32 s{SRD_OUT+1}, s27
s_mov_b32 s{SRD_OUT+2}, 2048
s_mov_b32 s{SRD_OUT+3}, 0x20000
v_mov_b32 {v(T)}, 0
v_and_b32 {v(T+1)}, 31, {v(vL)}
v_lshlrev_b32 {v(T+1)}, 2, {v(T+1)}
v_add_u32 {v(T+1)}, {LZ}, {v(T+1)}
ds_write_b32 {v(T+1)}, {v(T)}
v_mov_b32 {v(T)}, 0x3f80
v_lshlrev_b32 {v(T+1)}, 3, {v(vG)}
v_sub_u32 {v(T+1)}, {v(vI)}, {v(T+1)}
v_add_u32 {v(T+2)}, 16, {v(T+1)}
v_mov_b32 {v(T+3)}, 0x3f800000
''')
for blk,src in ((0,T+1),(1,T+2)):
    for r2 in range(4):
        d=RID+blk*4+r2
        a(f'''v_cmp_eq_u32 vcc, {2*r2}, {v(src)}
v_mov_b32 {v(d)}, 0
s_nop 0
v_cndmask_b32 {v(d)}, {v(d)}, {v(T)}, vcc
v_cmp_eq_u32 vcc, {2*r2+1}, {v(src)}
s_nop 1
v_cndmask_b32 {v(d)}, {v(d)}, {v(T+3)}, vcc''')
a(f'''
s_cmp_eq_u32 s{sW}, 0
s_cbranch_scc1 L_wq_w0
s_waitcnt vmcnt({NTAIL})
v_add_u32 {v(vE)}, {EPC}, {v(vE)}
s_nop 0
v_readfirstlane_b32 s{sTAG}, {v(vE)}
s_branch L_wq_landed
L_wq_w0:
s_waitcnt vmcnt({NTAIL if (ILV or KE) else 0})
v_add_u32 {v(vE)}, {EPC}, {v(vE)}
s_nop 0
v_readfirstlane_b32 s{sTAG}, {v(vE)}
s_lshl_b32 s{sT0}, s{sGRP}, 7
s_lshl_b32 s{sT2}, s{sS}, 2
s_add_u32 s{sT0}, s{sT0}, s{sT2}
s_add_u32 s{sT0}, s{sT0}, {FB}
v_mov_b32 {v(T+8)}, s{sT0}
v_add_u32 {v(T+9)}, s{sXCC}, {v(vE)}
s_mov_b64 exec, 1
buffer_store_dword {v(T+9)}, {v(T+8)}, {srd(SRD_WS)}, 0 offen sc1
s_mov_b64 exec, -1
''')
if not ILV and not KE: v_dma(NV1,NVA)
a('L_wq_landed:')
stamp('wq_landed')
w_tr(RWQ,0,2)
a(f'v_lshlrev_b32 {v(vX)}, 16, {v(vX)}')
a(f'v_lshrrev_b32 {v(XB)}, 16, {v(vX)}')
def x_update(delta):
    a(f'''v_cvt_pk_bf16_f32 {v(delta)}, {v(delta)}, {v(delta)}
v_and_b32 {v(delta)}, 0xffff0000, {v(delta)}
v_add_f32 {v(vX)}, {v(vX)}, {v(delta)}
v_cvt_pk_bf16_f32 {v(XB)}, {v(vX)}, {v(vX)}
v_and_b32 {v(vX)}, 0xffff0000, {v(XB)}''')
R=T+24
def d_issue(soff): a(f'buffer_load_dwordx4 {vr(R,4)}, {v(vDrd)}, {srd(SRD_WS)}, s{soff} offen sc1')
def d_check(soff, tag=None):
    r=lbl('pd_r'); ok=lbl('pd_ok'); c=lbl('pd_c')
    a(f'{c}:')
    check_valid(range(R,R+4), ok, T+40)
    spin_check(r)
    a(f'{r}:'); d_issue(soff); a(f's_waitcnt vmcnt(0)\ns_branch {c}')
    a(f'{ok}:')
    if tag: stamp(tag)
I1,I2=T+28,T+32
def ident_mfma():
    a(f'v_mfma_f32_16x16x32_bf16 {vr(I1,4)}, {vr(R,4)}, {vr(RID,4)}, 0\nv_mfma_f32_16x16x32_bf16 {vr(I2,4)}, {vr(R,4)}, {vr(RID+4,4)}, 0')
def d_sum():
    a(f'''v_add_f32 {v(I1)}, {v(I1)}, {v(I1+1)}
v_add_f32 {v(I1+2)}, {v(I1+2)}, {v(I1+3)}
v_add_f32 {v(I2)}, {v(I2)}, {v(I2+1)}
v_add_f32 {v(I2+2)}, {v(I2+2)}, {v(I2+3)}
v_add_f32 {v(I1)}, {v(I1)}, {v(I1+2)}
v_add_f32 {v(I2)}, {v(I2)}, {v(I2+2)}
v_permlane16_swap_b32 {v(I1)}, {v(I2)}
v_add_f32 {v(I1)}, {v(I1)}, {v(I2)}''')
    return I1
D00,D01,D10,D11=T+8,T+12,T+16,T+20
def ln_prev(W, colsum_if_l0):
    a(f'ds_read_b128 {vr(T,4)}, {v(vXr)}\nds_read_b128 {vr(T+4,4)}, {v(vXr)} offset:64\ns_waitcnt lgkmcnt(0)')
    a(f'v_mfma_f32_16x16x32_bf16 {vr(D00,4)}, {vr(T,4)}, {vr(W,4)}, 0')
    a(f'v_mfma_f32_16x16x32_bf16 {vr(D01,4)}, {vr(T,4)}, {vr(W+4,4)}, 0')
    a(f'v_mfma_f32_16x16x32_bf16 {vr(D00,4)}, {vr(T+4,4)}, {vr(W+8,4)}, {vr(D00,4)}')
    a(f'v_mfma_f32_16x16x32_bf16 {vr(D01,4)}, {vr(T+4,4)}, {vr(W+12,4)}, {vr(D01,4)}')
    l=lbl('cs')
    a(f's_cmp_lg_u32 s{sL}, 0\ns_cbranch_scc1 {l}')
    O1=T+40; C0,C1=T+44,T+48
    for j in range(4): a(f'v_mov_b32 {v(O1+j)}, 0x3f803f80')
    a(f'v_mfma_f32_16x16x32_bf16 {vr(C0,4)}, {vr(O1,4)}, {vr(W,4)}, 0')
    a(f'v_mfma_f32_16x16x32_bf16 {vr(C1,4)}, {vr(O1,4)}, {vr(W+4,4)}, 0')
    a(f'v_mfma_f32_16x16x32_bf16 {vr(C0,4)}, {vr(O1,4)}, {vr(W+8,4)}, {vr(C0,4)}')
    a(f'v_mfma_f32_16x16x32_bf16 {vr(C1,4)}, {vr(O1,4)}, {vr(W+12,4)}, {vr(C1,4)}')
    a(f's_nop 7\nv_cndmask_b32 {v(C0)}, {v(C1)}, {v(C0)}, s[{mLO}:{mLO+1}]')
    a('s_mov_b32 exec_lo, 0xffff\ns_mov_b32 exec_hi, 0xffff')
    a(f'ds_write_b32 {v(vP3w)}, {v(C0)} offset:{LPARTC-LP3 if LPARTC>=LP3 else 0}') if False else None
    a(f'v_add_u32 {v(C0+1)}, {(LPARTC-LP3)&0xffffffff}, {v(vP3w)}\nds_write_b32 {v(C0+1)}, {v(C0)}')
    a('s_mov_b64 exec, -1')
    a(f'{l}:')
def ln_post(W, pub, tag, cs):
    ident_mfma()
    a(f'v_mfma_f32_16x16x32_bf16 {vr(D00,4)}, {vr(R,4)}, {vr(W,4)}, {vr(D00,4)}')
    a(f'v_mfma_f32_16x16x32_bf16 {vr(D01,4)}, {vr(R,4)}, {vr(W+4,4)}, {vr(D01,4)}')
    a(f'v_mfma_f32_16x16x32_bf16 {vr(D10,4)}, {vr(R,4)}, {vr(W+8,4)}, 0')
    a(f'v_mfma_f32_16x16x32_bf16 {vr(D11,4)}, {vr(R,4)}, {vr(W+12,4)}, 0')
    x_update(d_sum())
    a(f'ds_write_b16 {v(vXw)}, {v(XB)}')
    sa,sq=T+38,T+39
    a(f'v_mov_b32 {v(sa)}, {v(vX)}\nv_mul_f32 {v(sq)}, {v(vX)}, {v(vX)}')
    steps=['quad_perm:[1,0,3,2] row_mask:0xf bank_mask:0xf','quad_perm:[2,3,0,1] row_mask:0xf bank_mask:0xf','row_half_mirror row_mask:0xf bank_mask:0xf','row_mirror row_mask:0xf bank_mask:0xf','row_bcast:15 row_mask:0xa bank_mask:0xf','row_bcast:31 row_mask:0xc bank_mask:0xf']
    fill=[f'v_add_f32 {v(D00)}, {v(D00)}, {v(D00+1)}', f'v_add_f32 {v(D00+2)}, {v(D00+2)}, {v(D00+3)}',
          f'v_add_f32 {v(D10)}, {v(D10)}, {v(D10+1)}', f'v_add_f32 {v(D10+2)}, {v(D10+2)}, {v(D10+3)}',
          f'v_add_f32 {v(D01)}, {v(D01)}, {v(D01+1)}', f'v_add_f32 {v(D01+2)}, {v(D01+2)}, {v(D01+3)}',
          f'v_add_f32 {v(D11)}, {v(D11)}, {v(D11+1)}', f'v_add_f32 {v(D11+2)}, {v(D11+2)}, {v(D11+3)}',
          f'v_add_f32 {v(D00)}, {v(D00)}, {v(D00+2)}', f'v_add_f32 {v(D10)}, {v(D10)}, {v(D10+2)}',
          f'v_add_f32 {v(D01)}, {v(D01)}, {v(D01+2)}', f'v_add_f32 {v(D11)}, {v(D11)}, {v(D11+2)}']
    for k,m in enumerate(steps):
        a(fill[2*k]); a(fill[2*k+1])
        a(f'v_add_f32_dpp {v(sa)}, {v(sa)}, {v(sa)} {m}\nv_add_f32_dpp {v(sq)}, {v(sq)}, {v(sq)} {m}')
    a(f'''v_cndmask_b32 {v(D00)}, {v(D10)}, {v(D00)}, s[{mLO}:{mLO+1}]
v_cndmask_b32 {v(D01)}, {v(D11)}, {v(D01)}, s[{mLO}:{mLO+1}]
s_mov_b32 exec_lo, 0
s_mov_b32 exec_hi, 0x80000000
ds_write2_b32 {v(vPw)}, {v(sa)}, {v(sq)} offset0:0 offset1:12
s_mov_b64 exec, -1
v_permlane32_swap_b32 {v(D00)}, {v(D01)}
v_add_f32 {v(D00)}, {v(D00)}, {v(D01)}
v_mov_b32 {v(D01)}, {v(D00)}
v_permlane16_swap_b32 {v(D00)}, {v(D01)}
v_add_f32 {v(D00)}, {v(D00)}, {v(D01)}
v_add_u32 {v(D01)}, {(LPART-LP3)&0xffffffff}, {v(vP3w)}
s_mov_b32 exec_lo, 0xffff
s_mov_b32 exec_hi, 0xffff
ds_write_b32 {v(D01)}, {v(D00)}
s_mov_b64 exec, -1
s_waitcnt lgkmcnt(0)
s_barrier''')
    stamp(tag+'_b2')
    done=lbl('lng_done'); nocs=lbl('nocs')
    a(f's_cmp_lg_u32 s{sW}, 0\ns_cbranch_scc1 {done}')
    a(f'ds_read_b128 {vr(T,4)}, {v(vPr)}\nds_read_b128 {vr(T+4,4)}, {v(vPr)} offset:16')
    a(f's_cmp_lg_u32 s{sL}, 0\ns_cbranch_scc1 {nocs}')
    a(f'''v_add_u32 {v(T+16)}, {(LPARTC-LPART)&0xffffffff}, {v(vPr)}
ds_read_b128 {vr(T+8,4)}, {v(T+16)}
ds_read_b128 {vr(T+12,4)}, {v(T+16)} offset:16
s_waitcnt lgkmcnt(0)
v_add_f32 {v(T+8)}, {v(T+8)}, {v(T+9)}
v_add_f32 {v(T+10)}, {v(T+10)}, {v(T+11)}
v_add_f32 {v(T+12)}, {v(T+12)}, {v(T+13)}
v_add_f32 {v(T+14)}, {v(T+14)}, {v(T+15)}
v_add_f32 {v(T+8)}, {v(T+8)}, {v(T+10)}
v_add_f32 {v(T+12)}, {v(T+12)}, {v(T+14)}
v_add_f32 {v(cs)}, {v(T+8)}, {v(T+12)}
{nocs}:
s_waitcnt lgkmcnt(0)
v_add_f32 {v(T)}, {v(T)}, {v(T+1)}
v_add_f32 {v(T+2)}, {v(T+2)}, {v(T+3)}
v_add_f32 {v(T+4)}, {v(T+4)}, {v(T+5)}
v_add_f32 {v(T+6)}, {v(T+6)}, {v(T+7)}
v_add_f32 {v(T)}, {v(T)}, {v(T+2)}
v_add_f32 {v(T+4)}, {v(T+4)}, {v(T+6)}
v_add_f32 {v(T)}, {v(T)}, {v(T+4)}
s_nop 0
v_readlane_b32 s{sT0}, {v(T)}, 32
v_readlane_b32 s{sT1}, {v(T)}, 33
s_nop 0
v_mov_b32 {v(T+2)}, s{sT0}
v_mov_b32 {v(T+3)}, s{sT1}
v_mul_f32 {v(T+2)}, 0x3b000000, {v(T+2)}          ; mean
v_mul_f32 {v(T+3)}, 0x3b000000, {v(T+3)}          ; E[x^2]
v_fma_f32 {v(T+3)}, -{v(T+2)}, {v(T+2)}, {v(T+3)}
v_fma_f32 {v(T+4)}, -{v(cs)}, {v(T+2)}, {v(T)}
v_max_f32 {v(T+3)}, 0, {v(T+3)}
v_add_f32 {v(T+3)}, 0x3727c5ac, {v(T+3)}          ; + 1e-5
v_rsq_f32 {v(T+3)}, {v(T+3)}
v_mul_f32 {v(T+4)}, {v(T+4)}, {v(T+3)}
v_mov_b32_dpp {v(T+5)}, {v(T+4)} quad_perm:[1,1,3,3] row_mask:0xf bank_mask:0xf
v_cvt_pk_bf16_f32 {v(T+12)}, {v(T+4)}, {v(T+5)}
v_min_u32 {v(T+12)}, -2, {v(T+12)}
s_mov_b32 exec_lo, 0x55555555
s_mov_b32 exec_hi, 0''')
    pub()
    exec_all()
    a(f'{done}:')
a(f'ds_write_b16 {v(vXw)}, {v(XB)}')
for j in range(4): a(f'v_mov_b32 {v(R+j)}, 0')
a('s_waitcnt lgkmcnt(0)')
ln_prev(RWQ, True)
a('s_branch L_p1_post')
a('L_layer:')
d_issue(sOD2P)
ln_prev(RWQ, False)
a('s_waitcnt vmcnt(0)')
d_check(sOD2P,'d2_ok')
a('L_p1_post:')
def q_pub():
    l1=lbl('qp1'); l2=lbl('qpd')
    a(f's_cmp_lg_u32 s{sL}, 0\ns_cbranch_scc1 {l1}')
    a(f'''s_lshl_b32 s{sT0}, s{sGRP}, 11
s_lshl_b32 s{sT1}, s{sS}, 7
s_add_u32 s{sT0}, s{sT0}, s{sT1}
s_add_u32 s{sT0}, s{sT0}, {Q0T}
v_lshl_add_u32 {v(T+14)}, {v(vL)}, 2, s{sT0}
s_add_u32 s{sT1}, s{sTAG}, s{sXCC}
v_mov_b32 {v(T+13)}, s{sT1}
buffer_store_dwordx2 {vr(T+12,2)}, {v(T+14)}, {srd(SRD_WS)}, 0 offen sc1
s_branch {l2}
{l1}:''')
    pub_store(f'buffer_store_dword {v(T+12)}, {v(vQwr)}, {srd(SRD_WS)}, 0 offen')
    a(f'{l2}:')
ln_post(RWQ, q_pub, 'p1', vCSQ)
stamp('p1_done')
a(f's_cmp_lg_u32 s{sL}, 0\ns_cbranch_scc1 L_h1_l1')
if not KE:
    if KDMA: k_dma()
    else:
        k_first(); k_second()
    if KBAR: a('s_barrier')
stamp('k_issued')
pf3('o',1,T+41); pf3('g',2,T+41); pf3('d',3,T+41)
a(f's_cmp_eq_u32 s{sW}, 0\ns_cbranch_scc1 L_h1_w0\ns_cmp_eq_u32 s{sW}, 7\ns_cbranch_scc1 L_h1_w7')
v_dma(NVA,8)
def late_w():
    if VBAR: a('s_barrier')
    w_dma(SRD_WO, vWoo, 1, 4, 1024, NTW)
    l1=lbl('lw1'); l2=lbl('lw2')
    a(f's_cmp_ge_u32 s{sS}, 14\ns_cbranch_scc1 {l1}')
    w_dma(SRD_WGU, vWguo, 0, 4, 3584, NTW)
    a(f'{l1}:\ns_cmp_eq_u32 s{sW}, 7\ns_cbranch_scc1 {l2}')
    w_dma(SRD_WD, vWdo, 2, 2, 1024, NTW)
    a(f'{l2}:')
NPO=0
if ALLW:
    NWO=4
    late_w()
else:
    NPO=pf_wo()
    NWO=0 if WOLATE else 4
    if not WOLATE: w_dma(SRD_WO, vWoo, 1, 4, 1024, NTW)
stamp('vw_issued')
if ALLW:
    l1=lbl('kw1'); l2=lbl('kw2')
    a(f's_cmp_ge_u32 s{sS}, 14\ns_cbranch_scc1 {l1}\ns_waitcnt vmcnt({8-NVA+10})\ns_branch {l2}\n{l1}:\ns_waitcnt vmcnt({8-NVA+6})\n{l2}:')
else:
    a(f's_waitcnt vmcnt({8-NVA+NPO+NWO})')
stamp('k_landed')
if KDMA: k_frags()
a('s_branch L_h1_bar')
a(f'''L_h1_w7:
s_lshl_b32 s{sT0}, s{sB}, 10
s_add_u32 s{sT0}, s{sT0}, {FB}
v_lshrrev_b32 {v(T+28)}, 3, {v(vL)}
v_lshlrev_b32 {v(T+28)}, 7, {v(T+28)}
v_and_b32 {v(T+29)}, 7, {v(vL)}
v_lshl_add_u32 {v(T+28)}, {v(T+29)}, 3, {v(T+28)}
v_add_u32 {v(T+28)}, s{sT0}, {v(T+28)}
L_f1_retry:
buffer_load_dwordx2 {vr(T+30,2)}, {v(T+28)}, {srd(SRD_WS)}, 0 offen sc1
s_waitcnt vmcnt(0)
v_subrev_u32 {v(T+30)}, s{sTAG}, {v(T+30)}
v_subrev_u32 {v(T+31)}, s{sTAG}, {v(T+31)}
v_max_u32 {v(T+30)}, {v(T+30)}, {v(T+31)}
v_cmp_lt_u32 vcc, 15, {v(T+30)}
s_cbranch_vccz L_h1_rest
''')
spin_check('L_f1_retry')
a(f'''L_h1_w0:
s_lshl_b32 s{sT0}, s{sGRP}, 11
s_add_u32 s{sT0}, s{sT0}, {Q0T}
v_lshl_add_u32 {v(T+16)}, {v(vL)}, 5, s{sT0}
L_q0_retry:
buffer_load_dwordx4 {vr(T,4)}, {v(T+16)}, {srd(SRD_WS)}, 0 offen sc1
buffer_load_dwordx4 {vr(T+4,4)}, {v(T+16)}, {srd(SRD_WS)}, 0 offen offset:16 sc1
s_waitcnt vmcnt(0)
v_subrev_u32 {v(T+1)}, s{sTAG}, {v(T+1)}
v_subrev_u32 {v(T+3)}, s{sTAG}, {v(T+3)}
v_subrev_u32 {v(T+5)}, s{sTAG}, {v(T+5)}
v_subrev_u32 {v(T+7)}, s{sTAG}, {v(T+7)}
v_max3_u32 {v(T+8)}, {v(T+1)}, {v(T+3)}, {v(T+5)}
v_max_u32 {v(T+8)}, {v(T+8)}, {v(T+7)}
v_cmp_lt_u32 vcc, 15, {v(T+8)}
s_cbranch_vccz L_q0_ok''')
spin_check('L_q0_retry')
a(f'''L_q0_ok:
v_min3_u32 {v(T+9)}, {v(T+1)}, {v(T+3)}, {v(T+5)}
v_min_u32 {v(T+9)}, {v(T+9)}, {v(T+7)}
v_cmp_ne_u32 vcc, s{sXCC}, {v(T+8)}
v_cmp_ne_u32 s[{sT2}:{sT3}], s{sXCC}, {v(T+9)}
s_or_b64 vcc, vcc, s[{sT2}:{sT3}]
s_cmp_eq_u64 vcc, 0
s_cselect_b32 s{sT0}, 1, 0
''')
if FORCESLOW: a(f's_mov_b32 s{sT0}, 0')
a(f'''v_lshlrev_b32 {v(T+10)}, 4, {v(vL)}
v_add_u32 {v(T+10)}, {LQ}, {v(T+10)}
ds_write2_b32 {v(T+10)}, {v(T)}, {v(T+2)} offset0:0 offset1:1
ds_write2_b32 {v(T+10)}, {v(T+4)}, {v(T+6)} offset0:2 offset1:3
v_mov_b32 {v(T+11)}, s{sT0}
v_mov_b32 {v(T+12)}, {LFAST}
ds_write_b32 {v(T+12)}, {v(T+11)}
L_h1_rest:''')
if KDMA: k_frags()
v_dma(NVA,8)
if ALLW: late_w()
else:
    pf_wo()
    if not WOLATE: w_dma(SRD_WO, vWoo, 1, 4, 1024, NTW)
a('s_branch L_h1_bar')
a('L_h1_l1:')
a(f's_cmp_lg_u32 s{sW}, 0\ns_cbranch_scc1 L_h1_bar')
ack()
a(f'''L_q1_retry:
buffer_load_dwordx4 {vr(T,4)}, {v(vQrd)}, {srd(SRD_WS)}, 0 offen sc1
s_waitcnt vmcnt(0)''')
check_valid(range(T,T+4),'L_q1_ok',T+4)
spin_check('L_q1_retry')
a(f'''L_q1_ok:
v_lshlrev_b32 {v(T+10)}, 4, {v(vL)}
v_add_u32 {v(T+10)}, {LQ}, {v(T+10)}
ds_write_b128 {v(T+10)}, {vr(T,4)}
L_h1_bar:
s_waitcnt lgkmcnt(0)
s_barrier''')
stamp('q_ok')
Q=T
for kk in range(4): a(f'ds_read_b128 {vr(Q+4*kk,4)}, {v(vQl)} offset:{kk*64}')
a(f'v_mov_b32 {v(T+26)}, {LFAST}\nds_read_b32 {v(T+27)}, {v(T+26)}')
S0,S1=T+16,T+20
for kk in range(4):
    a(f's_waitcnt lgkmcnt({4-kk})')
    for t,S in ((0,S0),(1,S1)):
        c='0' if kk==0 else vr(S,4)
        a(f'v_mfma_f32_16x16x32_bf16 {vr(S,4)}, {vr(RK+(t*4+kk)*4,4)}, {vr(Q+4*kk,4)}, {c}')
a(f's_waitcnt lgkmcnt(0)\nv_readfirstlane_b32 s{sFAST}, {v(T+27)}')
m,m2,tt=T+24,T+25,T+26
MC,LS=T+28,T+29
a(f'''
v_max3_f32 {v(m)}, {v(S0)}, {v(S0+1)}, {v(S0+2)}
v_max3_f32 {v(m2)}, {v(S1)}, {v(S1+1)}, {v(S1+2)}
v_max3_f32 {v(m)}, {v(m)}, {v(S0+3)}, {v(S1+3)}
v_max_f32 {v(m)}, {v(m)}, {v(m2)}
v_mov_b32 {v(tt)}, {v(m)}
v_permlane16_swap_b32 {v(m)}, {v(tt)}
v_max_f32 {v(m)}, {v(m)}, {v(tt)}
v_mov_b32 {v(tt)}, {v(m)}
v_permlane32_swap_b32 {v(m)}, {v(tt)}
v_max_f32 {v(m)}, {v(m)}, {v(tt)}
v_mul_f32 {v(MC)}, s{sCS}, {v(m)}
''')
P=T+32
for t,S in ((0,S0),(1,S1)):
    for r in range(4): a(f'v_fma_f32 {v(P+4*t+r)}, {v(S+r)}, s{sCS}, -{v(MC)}')
for r in range(8): a(f'v_exp_f32 {v(P+r)}, {v(P+r)}')
PK=T+40
for r in range(4): a(f'v_cvt_pk_bf16_f32 {v(PK+r)}, {v(P+2*r)}, {v(P+2*r+1)}')
if ALLW:
    VWAIT=f'''s_cmp_ge_u32 s{sS}, 14
s_cbranch_scc1 L_vw_a
s_cmp_eq_u32 s{sW}, 7
s_cbranch_scc1 L_vw_b
s_waitcnt vmcnt(10)
s_branch L_p2_nov
L_vw_b:
s_waitcnt vmcnt(8)
s_branch L_p2_nov
L_vw_a:
s_cmp_eq_u32 s{sW}, 7
s_cbranch_scc1 L_vw_c
s_waitcnt vmcnt(6)
s_branch L_p2_nov
L_vw_c:
s_waitcnt vmcnt(4)'''
else:
    VWAIT=f's_waitcnt vmcnt({NPO+NWO})'
exec_mask(mI4)
a(f'ds_write_b128 {v(vPLw)}, {vr(PK,4)}')
exec_all()
a(f'''
v_add_f32 {v(P)}, {v(P)}, {v(P+1)}
v_add_f32 {v(P+2)}, {v(P+2)}, {v(P+3)}
v_add_f32 {v(P+4)}, {v(P+4)}, {v(P+5)}
v_add_f32 {v(P+6)}, {v(P+6)}, {v(P+7)}
v_add_f32 {v(P)}, {v(P)}, {v(P+2)}
v_add_f32 {v(P+4)}, {v(P+4)}, {v(P+6)}
v_add_f32 {v(LS)}, {v(P)}, {v(P+4)}
v_mov_b32 {v(tt)}, {v(LS)}
v_permlane16_swap_b32 {v(LS)}, {v(tt)}
v_add_f32 {v(LS)}, {v(LS)}, {v(tt)}
v_mov_b32 {v(tt)}, {v(LS)}
v_permlane32_swap_b32 {v(LS)}, {v(tt)}
v_add_f32 {v(LS)}, {v(LS)}, {v(tt)}
s_mov_b64 exec, 15
ds_write_b64 {v(vMLw)}, {vr(MC,2)}
s_mov_b64 exec, -1
s_cmp_lg_u32 s{sL}, 0
s_cbranch_scc1 L_p2_nov
{VWAIT}
L_p2_nov:
s_waitcnt lgkmcnt(0)
s_barrier
''')
stamp('p2_bar')
a(f's_cmp_lg_u32 s{sL}, 0\ns_cbranch_scc1 L_p2_novt')
if WOLATE and not ALLW: w_dma(SRD_WO, vWoo, 1, 4, 1024, NTW)
if WGP2:
    a(f's_cmp_ge_u32 s{sS}, 14\ns_cbranch_scc1 L_p2_nowg')
    w_dma(SRD_WGU, vWguo, 0, 4, 3584, NTW)
    a('L_p2_nowg:')
for kk in range(8):
    for hh in range(2):
        a(f'ds_read_b64_tr_b16 {vr(RV+kk*4+hh*2,2)}, {v(vVr)} offset:{LV+kk*8192+hh*4096}')
a('s_waitcnt lgkmcnt(0)')
a('L_p2_novt:')
PA=T; MLr=T+32; DO=T+48
for k in range(4): a(f'ds_read_b128 {vr(MLr+4*k,4)}, {v(vMLr)} offset:{16*k}')
for kk in range(8): a(f'ds_read_b128 {vr(PA+4*kk,4)}, {v(vPLr)} offset:{kk*256}')
for kk in range(8):
    a(f's_waitcnt lgkmcnt({7-kk})')
    a(f'v_mfma_f32_16x16x32_bf16 {vr(DO+4*kk,4)}, {vr(PA+4*kk,4)}, {vr(RV+4*kk,4)}, 0')
    if kk==0:
        mc=[MLr+2*k for k in range(8)]
        a(f'''v_max3_f32 {v(T+80)}, {v(mc[0])}, {v(mc[1])}, {v(mc[2])}
v_max3_f32 {v(T+81)}, {v(mc[3])}, {v(mc[4])}, {v(mc[5])}
v_max3_f32 {v(T+80)}, {v(T+80)}, {v(mc[6])}, {v(mc[7])}
v_max_f32 {v(T+80)}, {v(T+80)}, {v(T+81)}''')
    if kk==1:
        for k in range(8): a(f'v_sub_f32 {v(MLr+2*k)}, {v(MLr+2*k)}, {v(T+80)}')
    if kk==3:
        for k in range(8): a(f'v_exp_f32 {v(MLr+2*k)}, {v(MLr+2*k)}')
    if kk==6:
        a(f'v_mul_f32 {v(T+81)}, {v(MLr)}, {v(MLr+1)}')
        for k in range(1,8): a(f'v_fmac_f32 {v(T+81)}, {v(MLr+2*k)}, {v(MLr+2*k+1)}')
OO=T+82
a(f'v_mul_f32 {v(OO)}, {v(MLr)}, {v(DO)}\nv_mul_f32 {v(OO+1)}, {v(MLr+2)}, {v(DO+4)}')
for k in range(2,8,2):
    a(f'v_fmac_f32 {v(OO)}, {v(MLr+2*k)}, {v(DO+4*k)}\nv_fmac_f32 {v(OO+1)}, {v(MLr+2*k+2)}, {v(DO+4*k+4)}')
a(f'''
v_add_f32 {v(OO)}, {v(OO)}, {v(OO+1)}
v_mov_b32_dpp {v(OO+1)}, {v(OO)} quad_perm:[1,1,3,3] row_mask:0xf bank_mask:0xf
v_cvt_pk_bf16_f32 {v(OO)}, {v(OO)}, {v(OO+1)}
v_min_u32 {v(OO)}, -2, {v(OO)}
''')
exec_mask(mEVEN)
pub_store(f'buffer_store_dword {v(OO)}, {v(vOwr)}, {srd(SRD_WS)}, s{sOO} offen')
a(f's_cmp_lg_u32 s{sW}, 0\ns_cbranch_scc1 L_p2_noml')
a(f'v_min_u32 {v(T+80)}, -2, {v(T+80)}\nv_min_u32 {v(T+81)}, -2, {v(T+81)}')
exec_mask(mI0)
pub_store(f'buffer_store_dwordx2 {vr(T+80,2)}, {v(vMLwr)}, {srd(SRD_WS)}, s{sOML} offen')
a('L_p2_noml:')
exec_all()
stamp('p2_done')
A0,A1,ML0=T,T+4,T+8
def o_issue():
    a(f's_lshl_b32 s{sT0}, s{sW}, 11\ns_add_u32 m0, s{sT0}, {LV}\ns_nop 0')
    a(f'buffer_load_dwordx4 {v(vOrd)}, {srd(SRD_WS)}, s{sOO} offen sc1 lds')
    a(f'buffer_load_dwordx4 {v(vOrd)}, {srd(SRD_WS)}, s{sOO2} offen offset:1024 sc1 lds')
    a(f'buffer_load_dwordx4 {vr(ML0,4)}, {v(vMLrd)}, {srd(SRD_WS)}, s{sOML} offen sc1')
    a(f'buffer_load_dwordx4 {vr(ML0+4,4)}, {v(vMLrd)}, {srd(SRD_WS)}, s{sOML} offen offset:16 sc1')
a('s_waitcnt vmcnt(0)')
o_issue()
a(f's_cmp_lg_u32 s{sL}, 0\ns_cbranch_scc1 L_o_wait')
w_tr(RWO,1,2)
if WGP2:
    a('s_waitcnt lgkmcnt(4)')
    w_tr(RWG,0,2)
    a('s_branch L_o_wait')
elif ALLW:
    a('s_waitcnt lgkmcnt(4)')
    w_tr(RWG,0,2)
    a('s_waitcnt lgkmcnt(4)')
    w_tr(RWD,2,1)
    a('s_branch L_o_wait')
elif WGE:
    a(f's_cmp_ge_u32 s{sS}, 14\ns_cbranch_scc1 L_o_wait')
    w_dma(SRD_WGU, vWguo, 0, 4, 3584, NTW)
    a('s_waitcnt vmcnt(4)\ns_branch L_o_chk')
else:
    a('s_branch L_o_wait')
a('L_o_retry:')
o_issue()
a('L_o_wait:\ns_waitcnt vmcnt(0)')
a('L_o_chk:')
a(f'ds_read_b128 {vr(A0,4)}, {v(vOst0)}\nds_read_b128 {vr(A1,4)}, {v(vOst1)}\ns_waitcnt lgkmcnt(0)')
check_valid(range(T,T+16),'L_o_ok',T+16)
spin_check('L_o_retry')
a('L_o_ok:')
stamp('o_ok')
if WGP2 and WDO:
    a(f's_cmp_lg_u32 s{sL}, 0\ns_cbranch_scc1 L_p3_go\ns_cmp_eq_u32 s{sW}, 7\ns_cbranch_scc1 L_p3_go')
    w_dma(SRD_WD, vWdo, 2, 2, 1024, NTW)
    a('L_p3_go:')
elif not WGE and not ALLW and not WGP2:
    a(f's_cmp_lg_u32 s{sL}, 0\ns_cbranch_scc1 L_p3_go\ns_cmp_ge_u32 s{sS}, 14\ns_cbranch_scc1 L_p3_go')
    w_dma(SRD_WGU, vWguo, 0, 4, 3584, NTW)
    a('L_p3_go:')
E0,E1=T+16,T+20
a(f'v_mfma_f32_16x16x32_bf16 {vr(E0,4)}, {vr(A0,4)}, {vr(RWO,4)}, 0')
a(f'v_mfma_f32_16x16x32_bf16 {vr(E1,4)}, {vr(A0,4)}, {vr(RWO+4,4)}, 0')
a(f'v_mfma_f32_16x16x32_bf16 {vr(E0,4)}, {vr(A1,4)}, {vr(RWO+8,4)}, {vr(E0,4)}')
a(f'v_mfma_f32_16x16x32_bf16 {vr(E1,4)}, {vr(A1,4)}, {vr(RWO+12,4)}, {vr(E1,4)}')
Mx,tt,Lt=T+24,T+25,T+26
M=[ML0,ML0+2,ML0+4,ML0+6]; Lr=[x+1 for x in M]
a(f'''
v_max3_f32 {v(Mx)}, {v(M[0])}, {v(M[1])}, {v(M[2])}
v_max_f32 {v(Mx)}, {v(Mx)}, {v(M[3])}
v_mov_b32 {v(tt)}, {v(Mx)}
v_permlane16_swap_b32 {v(Mx)}, {v(tt)}
v_max_f32 {v(Mx)}, {v(Mx)}, {v(tt)}
v_mov_b32 {v(tt)}, {v(Mx)}
v_permlane32_swap_b32 {v(Mx)}, {v(tt)}
v_max_f32 {v(Mx)}, {v(Mx)}, {v(tt)}
''')
for r in range(4): a(f'v_sub_f32 {v(M[r])}, {v(M[r])}, {v(Mx)}')
for r in range(4): a(f'v_exp_f32 {v(M[r])}, {v(M[r])}')
a(f'v_mul_f32 {v(Lt)}, {v(M[0])}, {v(Lr[0])}')
for r in range(1,4): a(f'v_fmac_f32 {v(Lt)}, {v(M[r])}, {v(Lr[r])}')
Y0,Y1=T+27,T+28
a(f'''
v_mov_b32 {v(tt)}, {v(Lt)}
v_mul_f32 {v(Y0)}, {v(M[0])}, {v(E0)}
v_mul_f32 {v(Y1)}, {v(M[0])}, {v(E1)}
v_permlane16_swap_b32 {v(Lt)}, {v(tt)}
v_add_f32 {v(Lt)}, {v(Lt)}, {v(tt)}
v_fmac_f32 {v(Y0)}, {v(M[1])}, {v(E0+1)}
v_fmac_f32 {v(Y1)}, {v(M[1])}, {v(E1+1)}
v_mov_b32 {v(tt)}, {v(Lt)}
v_fmac_f32 {v(Y0)}, {v(M[2])}, {v(E0+2)}
v_fmac_f32 {v(Y1)}, {v(M[2])}, {v(E1+2)}
v_permlane32_swap_b32 {v(Lt)}, {v(tt)}
v_add_f32 {v(Lt)}, {v(Lt)}, {v(tt)}
v_fmac_f32 {v(Y0)}, {v(M[3])}, {v(E0+3)}
v_fmac_f32 {v(Y1)}, {v(M[3])}, {v(E1+3)}
v_rcp_f32 {v(Lt)}, {v(Lt)}
v_permlane32_swap_b32 {v(Y0)}, {v(Y1)}
v_add_f32 {v(Y0)}, {v(Y0)}, {v(Y1)}
v_mov_b32 {v(tt)}, {v(Y0)}
v_permlane16_swap_b32 {v(Y0)}, {v(tt)}
v_add_f32 {v(Y0)}, {v(Y0)}, {v(tt)}
v_mul_f32 {v(Y0)}, {v(Y0)}, {v(Lt)}
s_mov_b32 exec_lo, 0xffff
s_mov_b32 exec_hi, 0xffff
ds_write_b32 {v(vP3w)}, {v(Y0)}
s_mov_b64 exec, -1
s_waitcnt lgkmcnt(0)
s_barrier
''')
stamp('p3_bar')
def final8(rd, n, soff, lab, extra=None):
    if extra:
        l0=lbl('f8x')
        a(f's_cmp_eq_u32 s{sW}, 0\ns_cbranch_scc1 {l0}')
        extra(); a(f's_branch {lab}\n{l0}:')
    else:
        a(f's_cmp_lg_u32 s{sW}, 0\ns_cbranch_scc1 {lab}')
    a(f'ds_read_b128 {vr(T,4)}, {v(rd)}\nds_read_b128 {vr(T+4,4)}, {v(rd)} offset:16\ns_waitcnt lgkmcnt(0)')
    a(f'''v_add_f32 {v(T)}, {v(T)}, {v(T+1)}
v_add_f32 {v(T+2)}, {v(T+2)}, {v(T+3)}
v_add_f32 {v(T+4)}, {v(T+4)}, {v(T+5)}''')
    if n==8: a(f'v_add_f32 {v(T+6)}, {v(T+6)}, {v(T+7)}')
    a(f'''v_add_f32 {v(T)}, {v(T)}, {v(T+2)}
v_add_f32 {v(T+4)}, {v(T+4)}, {v(T+6)}
v_add_f32 {v(T)}, {v(T)}, {v(T+4)}
v_mov_b32_dpp {v(T+1)}, {v(T)} quad_perm:[1,1,3,3] row_mask:0xf bank_mask:0xf
v_cvt_pk_bf16_f32 {v(T)}, {v(T)}, {v(T+1)}
v_min_u32 {v(T)}, -2, {v(T)}
s_mov_b32 exec_lo, 0x55555555
s_mov_b32 exec_hi, 0
buffer_store_dword {v(T)}, {v(vDwr)}, {srd(SRD_WS)}, s{soff} offen sc1
s_mov_b64 exec, -1''')
    if extra: extra()
    ack()
    a(f'{lab}:')
    if ACK: a('s_barrier')
final8(vP3r, 8, sOD1, 'L_p3_done')
stamp('p3_done')
d_issue(sOD1)
a(f's_cmp_lg_u32 s{sL}, 0\ns_cbranch_scc1 L_p4_w')
if WDE and not ALLW and not WGP2:
    a(f's_cmp_eq_u32 s{sW}, 7\ns_cbranch_scc1 L_p4_w7')
    w_dma(SRD_WD, vWdo, 1, 2, 1024, NTW)
    a('s_waitcnt vmcnt(2)\ns_branch L_p4_tr\nL_p4_w7:')
if ALLW or WGP2:
    a(f's_cmp_ge_u32 s{sS}, 14\ns_cbranch_scc1 L_p4_idle0')
    ln_prev(RWG, True)
    a('s_waitcnt vmcnt(0)')
else:
    a('s_waitcnt vmcnt(0)\nL_p4_tr:')
    a(f's_cmp_ge_u32 s{sS}, 14\ns_cbranch_scc1 L_p4_idle')
    w_tr(RWG,0,2)
    a('s_waitcnt lgkmcnt(0)')
    ln_prev(RWG, True)
a('s_branch L_p4_chk')
a('L_p4_w:')
a(f's_cmp_ge_u32 s{sS}, 14\ns_cbranch_scc1 L_p4_idle0')
ln_prev(RWG, False)
a('s_waitcnt vmcnt(0)')
a('L_p4_chk:')
d_check(sOD1,'d1_ok')
if (not WDE and not ALLW and not WGP2) or (WGP2 and not WDO):
    a(f's_cmp_lg_u32 s{sL}, 0\ns_cbranch_scc1 L_p4_nowd\ns_cmp_eq_u32 s{sW}, 7\ns_cbranch_scc1 L_p4_nowd')
    w_dma(SRD_WD, vWdo, 2 if WGP2 else 1, 2, 1024, NTW)
    a('L_p4_nowd:')
def gu_pub():
    pub_store(f'buffer_store_dword {v(T+12)}, {v(vGUwr)}, {srd(SRD_WS)}, s{sOGU} offen')
    if ACK:
        l=lbl('gua')
        a(f's_cmp_eq_u32 s{sL}, 0\ns_cbranch_scc1 {l}\ns_waitcnt vmcnt(0)\n{l}:')
ln_post(RWG, gu_pub, 'p4', vCSG)
if ACK: a('s_barrier')
a('s_branch L_p4_done')
a('L_p4_idle0:\ns_waitcnt vmcnt(0)\nL_p4_idle:')
d_check(sOD1)
if (not WDE and not ALLW and not WGP2) or (WGP2 and not WDO):
    a(f's_cmp_lg_u32 s{sL}, 0\ns_cbranch_scc1 L_p4_nowd2\ns_cmp_eq_u32 s{sW}, 7\ns_cbranch_scc1 L_p4_nowd2')
    w_dma(SRD_WD, vWdo, 2 if WGP2 else 1, 2, 1024, NTW)
    a('L_p4_nowd2:')
ident_mfma()
x_update(d_sum())
a(f'ds_write_b16 {v(vXw)}, {v(XB)}')
a('L_p4_done:')
stamp('p4_done')
a(f's_cmp_eq_u32 s{sW}, 7\ns_cbranch_scc1 L_p5_bar')
def gu_issue():
    a(f'buffer_load_dword {v(T)}, {v(vGUrd)}, {srd(SRD_WS)}, s{sOGU} offen sc1')
    a(f'buffer_load_dword {v(T+1)}, {v(vGUrd)}, {srd(SRD_WS)}, s{sOGU} offen offset:512 sc1')
a('L_gu_retry:')
gu_issue()
a('L_gu_wait:\ns_waitcnt vmcnt(0)')
check_valid([T,T+1],'L_gu_ok',T+2)
spin_check('L_gu_retry')
a('L_gu_ok:')
if not ALLW:
    a(f's_cmp_lg_u32 s{sL}, 0\ns_cbranch_scc1 L_gu_nowd')
    w_tr(RWD,2 if WGP2 else 1,1)
    a('L_gu_nowd:')
stamp('gu_ok')
a(f'''
v_lshlrev_b32 {v(T)}, {v(vSh)}, {v(T)}
v_lshlrev_b32 {v(T+1)}, {v(vSh)}, {v(T+1)}
v_and_b32 {v(T)}, 0xffff0000, {v(T)}
v_and_b32 {v(T+1)}, 0xffff0000, {v(T+1)}
v_mul_f32 {v(T)}, s{sNL2E}, {v(T)}
v_exp_f32 {v(T)}, {v(T)}
v_add_f32 {v(T)}, 1.0, {v(T)}
v_rcp_f32 {v(T)}, {v(T)}
v_mul_f32 {v(T)}, {v(T)}, {v(T+1)}
v_cvt_pk_bf16_f32 {v(T)}, {v(T)}, {v(T)}
ds_write_b16 {v(vHw)}, {v(T)}
s_waitcnt lgkmcnt(0)
ds_read_b128 {vr(T+4,4)}, {v(vHr)}
s_waitcnt lgkmcnt(0)
v_mfma_f32_16x16x32_bf16 {vr(T+8,4)}, {vr(T+4,4)}, {vr(RWD,4)}, 0
v_mfma_f32_16x16x32_bf16 {vr(T+12,4)}, {vr(T+4,4)}, {vr(RWD+4,4)}, 0
s_mov_b64 exec, 0xffff
ds_write_b32 {v(vP5w)}, {v(T+8)}
ds_write_b32 {v(vP5w)}, {v(T+12)} offset:{16*48}
s_mov_b64 exec, -1
L_p5_bar:
s_waitcnt lgkmcnt(0)
s_barrier
''')
stamp('p5_bar')
final8(vP5r, 7, sOD2, 'L_p5_done')
stamp('p5_done')
a(f's_cmp_lg_u32 s{sL}, 0\ns_cbranch_scc1 L_final')
a(f'''
s_mov_b32 s{sL}, 1
s_mov_b32 s{sOGU}, 0x400
s_mov_b32 s{sOML}, 0x200
s_mov_b32 s{sOD1}, 0x4000
s_mov_b32 s{sOD2}, 0xC000
s_mov_b32 s{sOO}, 0x4000
s_mov_b32 s{sOO2}, {0x4000+7168}
s_waitcnt lgkmcnt(0)
s_branch L_layer
''')
a('L_final:')
a(f'''
s_cmp_lg_u32 s{sC}, 0
s_cbranch_scc1 L_fin_stamps
s_lshr_b32 s{sT0}, s{sS}, 1
s_cmp_lg_u32 s{sW}, s{sT0}
s_cbranch_scc1 L_fin_stamps
''')
d_issue(sOD2)
a('s_waitcnt vmcnt(0)')
d_check(sOD2)
ident_mfma()
x_update(d_sum())
a(f'''
s_and_b32 s{sT0}, s{sS}, 1
s_cmp_eq_u32 s{sT0}, 0
s_cselect_b32 exec_lo, -1, 0
s_cselect_b32 exec_hi, 0, -1
s_lshl_b32 s{sT0}, s{sB}, 10
v_lshl_add_u32 {v(T)}, v0, 1, s{sT0}
buffer_store_short {v(XB)}, {v(T)}, {srd(SRD_OUT)}, 0 offen
s_mov_b64 exec, -1
s_cmp_lg_u32 s{sS}, 0
s_cbranch_scc1 L_fin_stamps
s_lshl_b32 s{sT0}, s{sB}, 7
s_add_u32 s{sT0}, s{sT0}, {EB}
v_mov_b32 {v(T+2)}, s{sT0}
v_mov_b32 {v(T+1)}, s{sTAG}
s_mov_b64 exec, 1
buffer_store_dword {v(T+1)}, {v(T+2)}, {srd(SRD_WS)}, 0 offen sc1
s_mov_b64 exec, -1
L_fin_stamps:
''')
if int(opt.get('dbgfast',0)):
    a(f'''s_cmp_lg_u32 s{sW}, 0
s_cbranch_scc1 L_nodbg
s_lshl_b32 s{sT0}, s2, 2
s_add_u32 s{sT0}, s{sT0}, 0xE2000
v_mov_b32 {v(T+2)}, s{sT0}
s_lshl_b32 s{sT1}, s{sXCC}, 4
s_or_b32 s{sT1}, s{sT1}, s{sFAST}
v_mov_b32 {v(T+1)}, s{sT1}
s_mov_b64 exec, 1
buffer_store_dword {v(T+1)}, {v(T+2)}, {srd(SRD_WS)}, 0 offen
s_mov_b64 exec, -1
L_nodbg:''')
if STAMPS:
    stamp('end')
    a(f'''
s_lshl_b32 s{sT0}, s2, 3
s_add_u32 s{sT0}, s{sT0}, s{sW}
s_lshl_b32 s{sT0}, s{sT0}, 8
s_add_u32 s{sT0}, s{sT0}, {STAMP_OFF}
v_lshl_add_u32 {v(T)}, {v(vL)}, 2, s{sT0}
buffer_store_dword {v(vSTAMP)}, {v(T)}, {srd(SRD_WS)}, 0 offen
''')
a('s_branch L_end')
a('L_bail:')
a('L_end:\ns_endpgm')
lines=a.text().split('\n')
lines,added=haz.fix(lines)
sys.stderr.write(f'auto nops: {added}; stamps: {stamp_names}\n')
open(sys.argv[1],'w').write(wrap('\n'.join(lines),256,512,LDS_BYTES,nvgpr=256,nsgpr=102))
if STAMPS: open(sys.argv[1]+'.stamps','w').write(','.join(stamp_names))
```

```python
import re
RE_V=re.compile(r'^(-|abs\()?v(\d+)\)?$'); RE_VR=re.compile(r'^(-)?v\[(\d+):(\d+)\]$')
RE_S=re.compile(r'^s(\d+)$'); RE_SR=re.compile(r'^s\[(\d+):(\d+)\]$')
def regs(tok):
    tok=tok.strip()
    m=RE_V.match(tok)
    if m: return {('v',int(m.group(2)))}
    m=RE_VR.match(tok)
    if m: return {('v',i) for i in range(int(m.group(2)),int(m.group(3))+1)}
    m=RE_S.match(tok)
    if m: return {('s',int(m.group(1)))}
    m=RE_SR.match(tok)
    if m: return {('s',i) for i in range(int(m.group(1)),int(m.group(2))+1)}
    if tok=='vcc': return {('s','vcc')}
    if tok in('vcc_lo','vcc_hi'): return {('s','vcc')}
    if tok=='exec' or tok in('exec_lo','exec_hi'): return {('s','exec')}
    if tok=='m0': return {('s','m0')}
    return set()
TRANS=('v_exp_f32','v_log_f32','v_rcp_f32','v_rsq_f32','v_sqrt_f32','v_sin_f32','v_cos_f32')
class I:
    def __init__(s,text):
        s.text=text
        t=text.split(';')[0].strip()
        s.label = t.endswith(':')
        s.mn=''; s.ops=[]
        if not t or s.label or t.startswith('.'):
            s.kind='none'; return
        p=t.split(None,1); s.mn=p[0]
        rest=p[1] if len(p)>1 else ''
        ops=[];d=0;cur=''
        for ch in rest:
            if ch=='[': d+=1
            if ch==']': d-=1
            if ch==',' and d==0: ops.append(cur.strip()); cur=''
            else: cur+=ch
        if cur.strip(): ops.append(cur.strip())
        mods=''
        if ops:
            last=ops[-1].split(None,1)
            ops[-1]=last[0]; mods=last[1] if len(last)>1 else ''
        s.ops=ops; s.mods=mods
        mn=s.mn
        s.dpp = ('_dpp' in mn) or ('row_' in mods) or ('quad_perm' in mods)
        s.vw=set(); s.vr=set(); s.sw=set(); s.sr=set()
        if mn.startswith('v_mfma') or mn.startswith('v_smfmac'):
            s.kind='mfma'; s.vw=regs(ops[0]); s.a=regs(ops[1]); s.b=regs(ops[2]); s.c=regs(ops[3]) if len(ops)>3 else set()
            s.vr=s.a|s.b|s.c
        elif mn.startswith('v_'):
            s.kind='valu'
            if mn.startswith('v_cmp'):
                s.sw=regs(ops[0]); src=ops[1:]
            elif mn.startswith('v_readlane') or mn.startswith('v_readfirstlane'):
                s.sw=regs(ops[0]); src=ops[1:]
            elif mn.startswith('v_permlane') :
                s.vw=regs(ops[0])|regs(ops[1]); src=ops
            elif mn.startswith('v_add_co') or mn.startswith('v_addc_co') or mn.startswith('v_sub_co'):
                s.vw=regs(ops[0]); s.sw=regs(ops[1]); src=ops[2:]
            else:
                s.vw=regs(ops[0]); src=ops[1:]
                if mn.startswith('v_fmac') or mn.startswith('v_writelane') or s.dpp or mn.startswith('v_mac'): src=ops
            for o in src:
                r=regs(o)
                s.vr|={x for x in r if x[0]=='v'}; s.sr|={x for x in r if x[0]=='s'}
            if mn.startswith('v_cndmask') and len(ops)==3: s.sr|={('s','vcc')}
        elif mn.startswith('buffer_') or mn.startswith('global_') or mn.startswith('flat_'):
            s.kind='vmem'
            isload='load' in mn; lds=' lds' in (' '+mods) or 'load_lds' in mn
            s.lds=lds
            allr=set()
            for o in ops: allr|=regs(o)
            if isload and not lds:
                s.vw=regs(ops[0]); rest_=set()
                for o in ops[1:]: rest_|=regs(o)
                s.vr={x for x in rest_ if x[0]=='v'}; s.sr={x for x in rest_ if x[0]=='s'}
            else:
                s.vr={x for x in allr if x[0]=='v'}; s.sr={x for x in allr if x[0]=='s'}
            if lds: s.sr|={('s','m0')}
            s.wide_store = ('store' in mn) and (mn.endswith('x3') or mn.endswith('x4'))
            if s.wide_store:
                s.sdata = regs(ops[0]) if mn.startswith('buffer_') else regs(ops[1])
        elif mn.startswith('ds_'):
            s.kind='ds'
            if 'read' in mn or 'bpermute' in mn or 'swizzle' in mn:
                s.vw=regs(ops[0]); r=set()
                for o in ops[1:]: r|=regs(o)
                s.vr=r
            else:
                r=set()
                for o in ops: r|=regs(o)
                s.vr=r
        elif mn.startswith('s_'):
            s.kind='salu'
            if mn=='s_nop': s.kind='nop'; s.n=int(ops[0],0)+1
            elif ops and not mn.startswith('s_cmp') and not mn.startswith('s_cbranch') and not mn.startswith('s_branch') and not mn.startswith('s_waitcnt') and not mn.startswith('s_bitcmp'):
                s.sw=regs(ops[0])
                if 'saveexec' in mn: s.sw|={('s','exec')}
        else:
            s.kind='other'
def need(prev,cur):
    n=0
    if prev.kind=='valu':
        w=prev.vw
        if cur.kind=='mfma' and (w & cur.vr): n=max(n,2)
        if cur.kind=='valu':
            if cur.dpp and (w & cur.vr): n=max(n,2)
            if cur.mn.startswith('v_permlane') and (w & (cur.vr|cur.vw)): n=max(n,2)
            if (cur.mn.startswith('v_readlane') or cur.mn.startswith('v_readfirstlane')) and (w & cur.vr): n=max(n,1)
            if prev.mn.replace('_e32','').replace('_e64','') in TRANS and (w & cur.vr): n=max(n,1)
            if prev.sw & cur.sr:
                n=max(n,4 if (cur.mn.startswith('v_readlane') or cur.mn.startswith('v_writelane')) else 2)
        if cur.kind=='vmem' and (prev.sw & cur.sr): n=max(n,5)
        if cur.kind=='salu' and prev.sw and any((x in prev.sw) for tok in cur.ops for x in regs(tok)): n=max(n,1)
    if prev.kind=='mfma':
        d=prev.vw
        if cur.kind=='mfma':
            if d & (cur.a|cur.b): n=max(n,8)
            if (d & cur.c) and cur.c!=d: n=max(n,6)
            if (d & cur.vw) and not (cur.c==d and cur.vw==d): n=max(n,8)
        elif cur.kind in('valu','vmem','ds'):
            if d & (cur.vr|cur.vw): n=max(n,8)
        if cur.kind=='valu' and (prev.c & cur.vw): n=max(n,3)
    if prev.kind=='vmem' and getattr(prev,'wide_store',False):
        if cur.kind in('valu','mfma') and (prev.sdata & cur.vw): n=max(n,2)
        if cur.kind in('ds','vmem') and (prev.sdata & cur.vw): n=max(n,1)
    if prev.kind=='salu' and ('s','m0') in prev.sw and cur.kind=='vmem' and getattr(cur,'lds',False): n=max(n,1)
    return n
def _target(c):
    if c.kind in ('salu',) and (c.mn.startswith('s_cbranch') or c.mn=='s_branch'): return c.ops[0]
    return None
def _one_pass(lines, back):
    out=[]; hists=[[]]; added=0; inc={}
    dead=False
    for ln in lines:
        c=I(ln)
        if c.kind=='none':
            t=ln.split(';')[0].strip()
            if t.endswith(':'):
                lab=t[:-1]
                new=[] if dead else hists
                new=new+inc.get(lab,[])+back.get(lab,[])
                seen=set(); hs=[]
                for h in new:
                    k=tuple(x.text for x in h[-13:])
                    if k not in seen: seen.add(k); hs.append(h[-13:])
                hists=hs if hs else [[]]
                dead=False
            out.append(ln); continue
        req=0
        for hist in hists:
            dist=0
            for p in reversed(hist):
                r=need(p,c)
                if r>dist: req=max(req,r-dist)
                dist+= p.n if p.kind=='nop' else 1
                if dist>=12: break
        if req>0 and c.kind!='nop':
            k=req
            while k>0:
                m=min(k,16); t=f'    s_nop {m-1}    ; auto'
                out.append(t); n=I(t); hists=[h+[n] for h in hists]; k-=m
            added+=req
        out.append(ln); hists=[(h+[c])[-16:] for h in hists]
        tg=_target(c)
        if tg:
            inc.setdefault(tg,[]).extend([list(h) for h in hists])
            if c.mn=='s_branch': dead=True; hists=[[]]
        if c.mn=='s_endpgm': dead=True; hists=[[]]
    return out, added, inc
def fix(lines, verbose=False):
    back={}
    out,added,inc=_one_pass(lines,{})
    out2,added2,inc2=_one_pass(lines,inc)
    lines2=[l for l in out2]
    out3,added3,_=_one_pass(lines2,inc2)
    return out3, added2+added3
```

```python
import sys
from asmlib import *
import haz
opt=dict(a.split('=') for a in sys.argv[2:])
STAMPS=int(opt.get('stamps',0)); CPF=int(opt.get('cpf',1))
NT=opt.get('nt','nt'); NTW=opt.get('ntw','nt')
ROLE=opt.get('role','xcd')
FORCESLOW=int(opt.get('slow',0))
SPIN=int(opt.get('spin',1<<17))
ACK=int(opt.get('ack',1))
a=Asm()
GRPSZ=0xC000; QB=0x0400; GUB=0x0800; MLB=0x1000; OB=0x2000
D1B=0xC0000
Q0T=0xD0000; FB=0xE0000; EB=0xE1000; EPC=0x9E3779B9
STAMP_OFF=0x10000000
LV=0; LW=65536; SB=131072
LX=SB; LZ=SB+1024; LPARTC=SB+1280; LPART=SB+2816+0; LPL=SB+4864; LML=SB+6912; LP3=SB+7168; LHB=SB+8704; LP5=SB+9216; LFAST=SB+10752; LQ=SB+11264; LDUM=SB+12288; LWD=SB+12288
LDS_BYTES=SB+12288+16384
WOS=int(opt.get('wos',0)); PFX=opt.get('pfx',''); KMID=int(opt.get('kmid',0)); PT=int(opt.get('pt',0)); P2O=int(opt.get('p2o',0)); PRETR=int(opt.get('pretr',0)); WGS=int(opt.get('wgs',0)); KDMA=int(opt.get('kdma',0)); KE=int(opt.get('ke',0)); PF3=opt.get('pf3','q'); WGP2=int(opt.get('wgp2',0)); WDO=int(opt.get('wdo',0)); ALLW=int(opt.get('allw',0)); VBAR=int(opt.get('vbar',1)); WGE=int(opt.get('wge',1)); WDE=int(opt.get('wde',1)); ILV=int(opt.get('ilv',0)); PF=int(opt.get('pf',1)); NVA=int(opt.get('nva',4)); NV1=int(opt.get('nv1',0)); PFW=int(opt.get('pfw',0)); QBAR=int(opt.get('qbar',1)); WOLATE=int(opt.get('wolate',1)); WGLATE=int(opt.get('wglate',1)); KBAR=int(opt.get('kbar',1)); NTP=opt.get('ntp','')
sW,sC,sR,sB,sS=3,4,5,6,7
SRD_K,SRD_V,SRD_WQ,SRD_WO,SRD_WGU,SRD_WD,SRD_WS,SRD_OUT,SRD_X=32,36,40,44,48,52,56,64,68
sTAG,sXCC,sOO2,sOD2P=60,61,62,63
sL,sFAST,sOGU,sOML,sOD1,sOD2,sOO,sSPIN,s4096,sCS=72,73,76,77,78,79,80,81,82,83
sT0,sT1=84,85
mI4,mEVEN,mI0=86,88,90
sT2,sT3=92,93
mLO=100; sNL2E=94; sGRP=95; sT4,sT5=96,97; sSTP=98
def srd(n): return f's[{n}:{n+3}]'
vTID,vL,vI,vG=0,1,2,3
(vXw,vXr,vPw,vPr,vDrd,vDwr,vQrd,vQwr,vGUwr,vGUrd,vOwr,vOrd,vMLwr,vMLrd,vPLw,vPLr,vMLw,vMLr,vP3w,vP3r,vHw,vHr,vP5w,vP5r,vSh,vX,vSTAMP,vWN0,vWN1,vVr)=range(4,34)
vKo,vVoE,vVoO,vWqo,vWoo,vWguo,vWdo,vOst0,vOst1,vQl=range(34,44)
T=44
XB=T+36
vCSQ,vCSG=37,34
RK,RV,RWQ,RWO,RWG,RWD,RID=128,160,192,208,224,240,248
def v(n): return f'v{n}'
def vr(n,k): return f'v[{n}:{n+k-1}]'
nstamp=[0]; stamp_names=[]
STSEL=opt.get('stsel','')
def stamp(name):
    if not STAMPS: return
    if STAMPS==2 and name!='end' and name not in STSEL.split(','): return
    i=nstamp[0]; nstamp[0]+=1; stamp_names.append(name)
    a(f's_memtime s[{sSTP}:{sSTP+1}]\ns_mul_i32 m0, s{sL}, 30\ns_add_u32 m0, m0, {i+2}\ns_waitcnt lgkmcnt(0)\nv_writelane_b32 {v(vSTAMP)}, s{sSTP}, m0')
uid=[0]
def lbl(p):
    uid[0]+=1; return f'L_{p}_{uid[0]}'
def spin_check(retry):
    a(f's_add_u32 s{sSPIN}, s{sSPIN}, 1\ns_cmp_lt_u32 s{sSPIN}, {SPIN}\ns_cbranch_scc1 {retry}\ns_branch L_bail')
def check_valid(regs_, ok, tmp):
    rs=list(regs_)
    if len(rs)==2:
        a(f'v_max_u32 {v(tmp)}, {v(rs[0])}, {v(rs[1])}')
    else:
        a(f'v_max3_u32 {v(tmp)}, {v(rs[0])}, {v(rs[1])}, {v(rs[2])}')
        k=3; alt=[tmp,tmp+1]; used2=False
        if len(rs)>=8:
            a(f'v_max3_u32 {v(tmp+1)}, {v(rs[3])}, {v(rs[4])}, {v(rs[5])}'); k=6; used2=True
        tog=0
        while k<len(rs):
            d=alt[tog%2] if used2 else tmp
            if k+1<len(rs):
                a(f'v_max3_u32 {v(d)}, {v(d)}, {v(rs[k])}, {v(rs[k+1])}'); k+=2
            else:
                a(f'v_max_u32 {v(d)}, {v(d)}, {v(rs[k])}'); k+=1
            tog+=1
        if used2: a(f'v_max_u32 {v(tmp)}, {v(tmp)}, {v(tmp+1)}')
    a(f'v_cmp_eq_u32 vcc, -1, {v(tmp)}')
    a(f's_cbranch_vccz {ok}')
def exec_all(): a('s_mov_b64 exec, -1')
def exec_mask(m): a(f's_mov_b64 exec, s[{m}:{m+1}]')
def pub_store(instr):
    l1=lbl('pubs'); l2=lbl('pubd')
    a(f's_cmp_eq_u32 s{sFAST}, 0\ns_cbranch_scc1 {l1}')
    a(instr); a(f's_branch {l2}'); a(f'{l1}:'); a(instr+' sc1'); a(f'{l2}:')
def ack():
    if ACK: a('s_waitcnt vmcnt(0)')

a(f'''
s_cmp_ge_u32 s2, 256
s_cbranch_scc1 L_end
s_load_dwordx16 s[8:23], s[0:1], 0
s_load_dwordx8 s[24:31], s[0:1], 64
''')
if CPF:
    a(f'''s_getpc_b64 s[74:75]
L_pc:
s_sub_u32 s74, s74, L_pc-{NAME}
s_subb_u32 s75, s75, 0
s_lshr_b32 s76, s2, 3
s_and_b32 s76, s76, {CPF if CPF>1 else 1}
s_lshl_b32 s76, s76, 13
v_lshlrev_b32 v126, 7, v0
v_add_u32 v126, s76, v126
v_min_u32 v126, L_end-{NAME}, v126
v_cmp_gt_u32 vcc, 64, v0
s_and_saveexec_b64 s[76:77], vcc
s_cbranch_execz L_cpf_done
global_load_dword v127, v126, s[74:75]
L_cpf_done:
s_mov_b64 exec, s[76:77]''')
if STAMPS:
    a(f's_memrealtime s[{sT4}:{sT5}]\ns_memtime s[{sSTP}:{sSTP+1}]')
a(f'''
v_lshrrev_b32 {v(T)}, 6, v0
v_and_b32 {v(vL)}, 63, v0
v_and_b32 {v(vI)}, 15, v0
v_readfirstlane_b32 s{sW}, {v(T)}
v_lshrrev_b32 {v(vG)}, 4, {v(vL)}
''')
if ROLE=='xcd':
    a(f's_and_b32 s{sC}, s2, 7\ns_lshr_b32 s{sR}, s2, 3')
else:
    a(f's_lshr_b32 s{sC}, s2, 3\ns_and_b32 s{sC}, s{sC}, 7\ns_and_b32 s{sR}, s2, 7\ns_lshr_b32 s{sT0}, s2, 6\ns_lshl_b32 s{sT0}, s{sT0}, 3\ns_or_b32 s{sR}, s{sR}, s{sT0}')
a(f'''
s_lshr_b32 s{sB}, s{sR}, 4
s_and_b32 s{sS}, s{sR}, 15
s_lshl_b32 s{sGRP}, s{sB}, 3
s_add_u32 s{sGRP}, s{sGRP}, s{sC}       ; grp = b*8+c
s_mov_b32 s{s4096}, 4096
s_mov_b32 s{sL}, 0
; weight staging voffsets: row = l/4, chunk = (l%4) ^ (2*(l/32))
v_lshrrev_b32 {v(T)}, 2, {v(vL)}
v_and_b32 {v(T+1)}, 3, {v(vL)}
v_lshrrev_b32 {v(T+2)}, 5, {v(vL)}
v_lshlrev_b32 {v(T+2)}, 1, {v(T+2)}
v_xor_b32 {v(T+1)}, {v(T+1)}, {v(T+2)}
v_lshlrev_b32 {v(T+1)}, 4, {v(T+1)}          ; chunk*16
s_lshl_b32 s{sT0}, s{sW}, 6
v_add_u32 {v(T+2)}, s{sT0}, {v(T)}           ; row = 64w + l/4
v_lshl_add_u32 {v(vWqo)}, {v(T+2)}, 13, {v(T+1)}
v_lshl_add_u32 {v(vWoo)}, {v(T+2)}, 10, {v(T+1)}
s_mov_b32 s{sT1}, 3584
v_mul_lo_u32 {v(T+3)}, {v(T+2)}, s{sT1}
v_add_u32 {v(vWguo)}, {v(T+3)}, {v(T+1)}
s_lshl_b32 s{sT0}, s{sW}, 5
v_add_u32 {v(T+2)}, s{sT0}, {v(T)}           ; row = 32w + l/4
v_lshl_add_u32 {v(vWdo)}, {v(T+2)}, 10, {v(T+1)}
v_lshlrev_b32 {v(T+4)}, 1, v0
''')
if STAMPS:
    a(f's_waitcnt lgkmcnt(0)\nv_mov_b32 {v(vSTAMP)}, 0\nv_writelane_b32 {v(vSTAMP)}, s{sT4}, 0\nv_writelane_b32 {v(vSTAMP)}, s{sSTP}, 1')
a('s_waitcnt lgkmcnt(0)')
a(f'''
s_lshl_b32 s{sT0}, s{sB}, 10
s_add_u32 s{SRD_X}, s8, s{sT0}
s_addc_u32 s{SRD_X+1}, s9, 0
s_mov_b32 s{SRD_X+2}, 1024
s_mov_b32 s{SRD_X+3}, 0x20000
s_lshl_b32 s{sT0}, s{sC}, 10
s_lshl_b32 s{sT1}, s{sS}, 6
s_add_u32 s{sT0}, s{sT0}, s{sT1}
s_add_u32 s{SRD_WQ}, s14, s{sT0}
s_addc_u32 s{SRD_WQ+1}, s15, 0
s_sub_u32 s{SRD_WQ+2}, 4194304, s{sT0}
s_mov_b32 s{SRD_WQ+3}, 0x20000
buffer_load_ushort {v(vX)}, {v(T+4)}, {srd(SRD_X)}, 0 offen
''')
def w_dma(srd_, voff, slot, nins, rowstride, nt, n0=0):
    if slot==2: a(f's_lshl_b32 s{sT0}, s{sW}, 11\ns_add_u32 m0, s{sT0}, {LWD}')
    else: a(f's_lshl_b32 s{sT0}, s{sW}, 13\ns_add_u32 m0, s{sT0}, {LW+slot*4096}')
    for n in range(n0,nins):
        if n==0:
            a('s_nop 0'); so='0'
        else:
            a(f's_mov_b32 s{sT1}, {n*(16*rowstride-1024)}'); so=f's{sT1}'
        a(f'buffer_load_dwordx4 {v(voff)}, {srd(srd_)}, {so} offen offset:{n*1024} {nt} lds')
SRD_PF=SRD_X
def pf_setup(ptr_lo, size):
    a(f's_mov_b32 s{SRD_PF}, s{ptr_lo}\ns_mov_b32 s{SRD_PF+1}, s{ptr_lo+1}\ns_mov_b32 s{SRD_PF+2}, {size}\ns_mov_b32 s{SRD_PF+3}, 0x20000')
def pf_m0():
    a(f's_lshl_b32 s{sT0}, s{sW}, 10\ns_add_u32 m0, s{sT0}, {LDUM}')
def pf_load(voff, soff):
    a(f'buffer_load_dwordx4 {v(voff)}, {srd(SRD_PF)}, {soff} offen {NTP} lds')
def pf_wq():
    if 'q' not in PFX: return 0
    pf_setup(14, 4194304); pf_m0()
    a(f's_lshl_b32 s{sT0}, s{sR}, 4\ns_lshl_b32 s{sT1}, s{sW}, 1\ns_add_u32 s{sT0}, s{sT0}, s{sT1}\ns_lshl_b32 s{sT0}, s{sT0}, 13\ns_lshl_b32 s{sT1}, s{sC}, 10\ns_add_u32 s{sT0}, s{sT0}, s{sT1}')
    a(f'v_lshlrev_b32 {v(T+10)}, 4, {v(vL)}')
    pf_load(T+10, f's{sT0}')
    a(f's_add_u32 s{sT0}, s{sT0}, 8192'); pf_load(T+10, f's{sT0}')
    return 2
def pf_wo():
    if 'o' not in PFX: return 0
    pf_setup(16, 4194304); pf_m0()
    a(f's_lshl_b32 s{sT0}, s{sC}, 19\ns_lshl_b32 s{sT1}, s{sR}, 14\ns_add_u32 s{sT0}, s{sT0}, s{sT1}\ns_lshl_b32 s{sT1}, s{sW}, 11\ns_add_u32 s{sT0}, s{sT0}, s{sT1}')
    a(f'v_lshlrev_b32 {v(T+62)}, 4, {v(vL)}')
    pf_load(T+62, f's{sT0}')
    a(f's_add_u32 s{sT0}, s{sT0}, 1024'); pf_load(T+62, f's{sT0}')
    return 2
def pf_wgu():
    if 'g' not in PFX: return 0
    pf_m0()
    a(f's_lshl_b32 s{sT0}, s{sR}, 4\ns_lshl_b32 s{sT1}, s{sW}, 1\ns_add_u32 s{sT0}, s{sT0}, s{sT1}\ns_mul_i32 s{sT0}, s{sT0}, 3584\ns_mul_i32 s{sT1}, s{sC}, 448\ns_add_u32 s{sT2}, s{sT0}, s{sT1}')
    a(f'v_lshrrev_b32 {v(T+62)}, 5, {v(vL)}\nv_mul_u32_u24 {v(T+62)}, 3584, {v(T+62)}\nv_and_b32 {v(T+63)}, 31, {v(vL)}\nv_lshl_add_u32 {v(T+62)}, {v(T+63)}, 4, {v(T+62)}')
    pf_setup(20, 1835008); pf_load(T+62, f's{sT2}')
    pf_setup(22, 1835008); pf_load(T+62, f's{sT2}')
    return 2
def pf_wd():
    if 'd' not in PFX: return 0
    pf_setup(24, 1835008); pf_m0()
    a(f's_mul_i32 s{sT0}, s{sC}, 229376\ns_mul_i32 s{sT1}, s{sR}, 7168\ns_add_u32 s{sT0}, s{sT0}, s{sT1}\ns_lshl_b32 s{sT1}, s{sW}, 10\ns_add_u32 s{sT0}, s{sT0}, s{sT1}')
    a(f'v_lshlrev_b32 {v(T+62)}, 4, {v(vL)}')
    pf_load(T+62, f's{sT0}')
    return 1
def pf3(which, wave, dst):
    if which not in PF3: return
    l=lbl('pf3')
    a(f's_cmp_lg_u32 s{sW}, {wave}\ns_cbranch_scc1 {l}')
    t0,t1=T+60,T+61
    if which=='q':
        pf_setup(14, 4194304)
        a(f'v_and_b32 {v(t0)}, 15, {v(vL)}\ns_lshl_b32 s{sT0}, s{sR}, 4\nv_add_u32 {v(t0)}, s{sT0}, {v(t0)}\nv_lshlrev_b32 {v(t0)}, 13, {v(t0)}\ns_lshl_b32 s{sT0}, s{sC}, 10\ns_add_u32 s{sT0}, s{sT0}, 384')
    elif which=='o':
        pf_setup(16, 4194304)
        a(f'v_and_b32 {v(t0)}, 15, {v(vL)}\ns_lshl_b32 s{sT0}, s{sR}, 4\nv_add_u32 {v(t0)}, s{sT0}, {v(t0)}\nv_lshlrev_b32 {v(t0)}, 10, {v(t0)}\ns_lshl_b32 s{sT0}, s{sC}, 19\ns_add_u32 s{sT0}, s{sT0}, 384')
    elif which=='d':
        pf_setup(24, 1835008)
        a(f'v_and_b32 {v(t0)}, 15, {v(vL)}\nv_min_u32 {v(t0)}, 6, {v(t0)}\ns_mul_i32 s{sT0}, s{sR}, 7\nv_add_u32 {v(t0)}, s{sT0}, {v(t0)}\nv_lshlrev_b32 {v(t0)}, 10, {v(t0)}\ns_mul_i32 s{sT0}, s{sC}, 229376\ns_add_u32 s{sT0}, s{sT0}, 384')
    if which in 'qod':
        a(f'v_lshrrev_b32 {v(t1)}, 4, {v(vL)}\nv_and_b32 {v(t1)}, 1, {v(t1)}\nv_lshl_add_u32 {v(t0)}, {v(t1)}, 6, {v(t0)}')
        a(f's_mov_b32 exec_hi, 0\nbuffer_load_dword {v(dst)}, {v(t0)}, {srd(SRD_PF)}, s{sT0} offen\ns_mov_b32 exec_hi, -1')
    else:
        a(f'''v_and_b32 {v(t0)}, 15, {v(vL)}
s_lshl_b32 s{sT0}, s{sR}, 4
v_add_u32 {v(t0)}, s{sT0}, {v(t0)}
v_mul_u32_u24 {v(t0)}, 28, {v(t0)}
s_mul_i32 s{sT0}, s{sC}, 7
s_lshr_b32 s{sT0}, s{sT0}, 1
v_add_u32 {v(t0)}, s{sT0}, {v(t0)}
v_sub_u32 {v(t1)}, 3, {v(t0)}
v_and_b32 {v(t1)}, 7, {v(t1)}
v_min_u32 {v(t1)}, 4, {v(t1)}
v_add_u32 {v(t0)}, {v(t0)}, {v(t1)}
v_lshlrev_b32 {v(t0)}, 7, {v(t0)}
v_lshrrev_b32 {v(t1)}, 4, {v(vL)}
v_and_b32 {v(t1)}, 1, {v(t1)}
v_lshl_add_u32 {v(t0)}, {v(t1)}, 6, {v(t0)}
s_mov_b32 exec_hi, 0''')
        pf_setup(20, 1835008); a(f'buffer_load_dword {v(dst)}, {v(t0)}, {srd(SRD_PF)}, 0 offen')
        pf_setup(22, 1835008); a(f'buffer_load_dword {v(dst+1)}, {v(t0)}, {srd(SRD_PF)}, 0 offen')
        a('s_mov_b32 exec_hi, -1')
    a(f'{l}:')
def w_tr(dst, slot, nkk):
    if slot==2:
        a(f's_mul_i32 s{sT0}, s{sW}, {(2048-8192)&0xffffffff}\ns_add_u32 s{sT0}, s{sT0}, {(LWD-LW)&0xffffffff}\nv_add_u32 {v(T+60)}, s{sT0}, {v(vWN0)}\nv_xor_b32 {v(T+61)}, 32, {v(T+60)}')
        for nt_ in range(2):
            for hh in range(2):
                r=dst+nt_*4+hh*2
                a(f'ds_read_b64_tr_b16 {vr(r,2)}, {v(T+60 if nt_==0 else T+61)} offset:{hh*256}')
        return
    for kk in range(nkk):
        for nt_ in range(2):
            for hh in range(2):
                r=dst+(kk*2+nt_)*4+hh*2
                a(f'ds_read_b64_tr_b16 {vr(r,2)}, {v(vWN0 if nt_==0 else vWN1)} offset:{slot*4096+kk*2048+hh*256}')
if KE:
    a(f'''s_mov_b32 s{SRD_WS}, s30
s_mov_b32 s{SRD_WS+1}, s31
s_mov_b32 s{SRD_WS+2}, 0x20000000
s_mov_b32 s{SRD_WS+3}, 0x20000
s_cmp_eq_u32 s{sW}, 0
s_cbranch_scc1 L_proto
L_proto_ret:''')
pf3('q',1,T+41)
NPQ=pf_wq()
if not PFW and not ILV: w_dma(SRD_WQ, vWqo, 0, 4, 8192, NTW)
a(f'''
s_lshl_b32 s{sT0}, s{sGRP}, 23
s_lshl_b32 s{sT1}, s{sS}, 16
s_add_u32 s{sT0}, s{sT0}, s{sT1}
s_add_u32 s{sT0}, s{sT0}, 7340032
s_add_u32 s{SRD_V}, s12, s{sT0}
s_addc_u32 s{SRD_V+1}, s13, 0
s_mov_b32 s{SRD_V+2}, 65536
s_mov_b32 s{SRD_V+3}, 0x20000
s_add_u32 s{SRD_K}, s10, s{sT0}
s_addc_u32 s{SRD_K+1}, s11, 0
s_mov_b32 s{SRD_K+2}, 65536
s_mov_b32 s{SRD_K+3}, 0x20000
s_mov_b32 s{SRD_WS}, s30
s_mov_b32 s{SRD_WS+1}, s31
s_mov_b32 s{SRD_WS+2}, 0x20000000
s_mov_b32 s{SRD_WS+3}, 0x20000
; K voffset = w*8192 + i*256 + g*16
s_lshl_b32 s{sT0}, s{sW}, 13
v_lshlrev_b32 {v(T)}, 8, {v(vI)}
v_lshl_add_u32 {v(T)}, {v(vG)}, 4, {v(T)}
v_add_u32 {v(vKo)}, s{sT0}, {v(T)}
v_lshlrev_b32 {v(T)}, 1, {v(vG)}
v_xor_b32 {v(T)}, {v(T)}, {v(vI)}
v_lshlrev_b32 {v(T)}, 4, {v(T)}
v_lshl_add_u32 {v(vVoE)}, {v(vG)}, 8, {v(T)}
v_xor_b32 {v(vVoO)}, 128, {v(vVoE)}
''')
def k_tile(t):
    for kk in range(4):
        r=RK+(t*4+kk)*4
        so='0' if t==0 else f's{s4096}'
        a(f'buffer_load_dwordx4 {vr(r,4)}, {v(vKo)}, {srd(SRD_K)}, {so} offen offset:{kk*64} {NT}')
def k_first():
    l1=lbl('kf'); l2=lbl('kfd')
    a(f's_add_u32 s{sT0}, s{sW}, s{sS}\ns_bitcmp1_b32 s{sT0}, 0\ns_cbranch_scc1 {l1}')
    k_tile(0); a(f's_branch {l2}\n{l1}:'); k_tile(1); a(f'{l2}:')
def k_second():
    l1=lbl('ks'); l2=lbl('ksd')
    a(f's_add_u32 s{sT0}, s{sW}, s{sS}\ns_bitcmp1_b32 s{sT0}, 0\ns_cbranch_scc1 {l1}')
    k_tile(1); a(f's_branch {l2}\n{l1}:'); k_tile(0); a(f'{l2}:')
def k_dma():
    a(f'''v_xor_b32 {v(T+62)}, {v(vI)}, {v(vG)}
v_lshlrev_b32 {v(T+62)}, 4, {v(T+62)}
v_lshl_add_u32 {v(T+62)}, {v(vG)}, 8, {v(T+62)}
s_add_u32 s{sT2}, s{sW}, s{sS}
s_lshl_b32 s{sT3}, s{sW}, 13''')
    for n in range(8):
        a(f'''s_add_u32 s{sT0}, s{sT2}, {n}
s_and_b32 s{sT0}, s{sT0}, 7
s_and_b32 s{sT1}, s{sT0}, 3
s_lshl_b32 s{sT1}, s{sT1}, 6
v_xor_b32 {v(T+63)}, s{sT1}, {v(T+62)}
s_lshl_b32 s{sT0}, s{sT0}, 10
s_add_u32 s{sT0}, s{sT0}, s{sT3}
s_add_u32 m0, s{sT0}, {LW}
s_nop 0
buffer_load_dwordx4 {v(T+63)}, {srd(SRD_K)}, s{sT0} offen {NT} lds''')
def k_frags():
    a(f'''v_xor_b32 {v(T+62)}, {v(vI)}, {v(vG)}
v_lshlrev_b32 {v(T+62)}, 4, {v(T+62)}
v_lshl_add_u32 {v(T+62)}, {v(vI)}, 8, {v(T+62)}
s_lshl_b32 s{sT0}, s{sW}, 13
s_add_u32 s{sT0}, s{sT0}, {LW}
v_add_u32 {v(T+62)}, s{sT0}, {v(T+62)}''')
    for kk in range(4):
        if kk: a(f'v_xor_b32 {v(T+63)}, {64*kk}, {v(T+62)}')
        r=T+62 if kk==0 else T+63
        for t in range(2): a(f'ds_read_b128 {vr(RK+(t*4+kk)*4,4)}, {v(r)} offset:{t*4096}')
def e_load(dst):
    a(f's_lshl_b32 s{sT0}, s{sB}, 7\ns_add_u32 s{sT0}, s{sT0}, {EB}\nv_mov_b32 {v(dst)}, s{sT0}\nbuffer_load_dword {v(dst)}, {v(dst)}, {srd(SRD_WS)}, 0 offen sc1')
vE=T+30
def v_dma(n0,n1):
    a(f's_add_u32 s{sT2}, s{sW}, s{sS}\ns_and_b32 s{sT2}, s{sT2}, 3\ns_lshl_b32 s{sT2}, s{sT2}, 1\ns_lshl_b32 s{sT3}, s{sW}, 13')
    for n in range(n0,n1):
        a(f's_add_u32 s{sT0}, s{sT2}, {n}\ns_and_b32 s{sT0}, s{sT0}, 7\ns_lshl_b32 s{sT0}, s{sT0}, 10\ns_add_u32 s{sT0}, s{sT0}, s{sT3}')
        a(f's_add_u32 m0, s{sT0}, {LV}\ns_nop 0')
        a(f'buffer_load_dwordx4 {v(vVoE if n%2==0 else vVoO)}, {srd(SRD_V)}, s{sT0} offen {NT} lds')
def wq_one(n):
    a(f's_lshl_b32 s{sT0}, s{sW}, 13\ns_add_u32 m0, s{sT0}, {LW}\ns_mov_b32 s{sT1}, {n*(16*8192-1024)}')
    a(f'buffer_load_dwordx4 {v(vWqo)}, {srd(SRD_WQ)}, s{sT1} offen offset:{n*1024} {NTW} lds')
def ilv_issue():
    nv=0
    for n in range(4):
        wq_one(n)
        k=min(ILV, NVA-nv) if n<3 else NVA-nv
        v_dma(nv,nv+k); nv+=k
    return k
if ILV:
    a(f's_cmp_eq_u32 s{sW}, 0\ns_cbranch_scc1 L_proto')
    a(f's_cmp_lg_u32 s{sW}, 7\ns_cbranch_scc1 L_va')
    e_load(vE)
    a('L_va:')
    NTAIL=ilv_issue()
    a('s_branch L_pre_p1')
elif PFW:
    v_dma(0,NV1)
    a(f's_waitcnt vmcnt({NV1})')
    w_dma(SRD_WQ, vWqo, 0, 4, 8192, NTW)
else:
    v_dma(0,NV1)
if KE:
    if QBAR: a('s_barrier')
    a(f's_cmp_lg_u32 s{sW}, 7\ns_cbranch_scc1 L_va')
    e_load(vE)
    a('L_va:')
    v_dma(0,NVA)
    k_first(); k_second()
    a('s_branch L_pre_p1')
    NTAIL=NVA+8
elif not ILV:
    if QBAR: a('s_barrier')
    a(f's_cmp_eq_u32 s{sW}, 0\ns_cbranch_scc1 L_proto')
    a(f's_cmp_lg_u32 s{sW}, 7\ns_cbranch_scc1 L_va')
    e_load(vE)
    a('L_va:')
    v_dma(NV1,NVA)
    a('s_branch L_pre_p1')
    NTAIL=NVA-NV1
OLDCPF='' if CPF else '''; code prefetch into L2: (r&7)*2KB + lane*128 (16 lanes), clamped to the code size
s_getpc_b64 s[74:75]
L_pc:
s_sub_u32 s74, s74, L_pc-'''+NAME+'''
s_subb_u32 s75, s75, 0
s_and_b32 s84, s5, 7
s_lshl_b32 s84, s84, 11
v_and_b32 v45, 15, v1
v_lshl_add_u32 v45, v45, 7, s84
v_min_u32 v45, L_end-'''+NAME+''', v45
global_load_dword v84, v45, s[74:75]
'''
a('L_proto:')
e_load(vE)
a(f'''
s_mul_i32 s{sT0}, s{sGRP}, {GRPSZ}
s_mul_i32 s{sT1}, s{sS}, 3072
s_add_u32 s{sT0}, s{sT0}, s{sT1}
v_lshl_add_u32 {v(T)}, {v(vL)}, 4, s{sT0}
v_mov_b32 {v(T+4)}, -1
v_mov_b32 {v(T+5)}, -1
v_mov_b32 {v(T+6)}, -1
v_mov_b32 {v(T+7)}, -1
buffer_store_dwordx4 {vr(T+4,4)}, {v(T)}, {srd(SRD_WS)}, 0 offen sc1
buffer_store_dwordx4 {vr(T+4,4)}, {v(T)}, {srd(SRD_WS)}, 0 offen offset:1024 sc1
buffer_store_dwordx4 {vr(T+4,4)}, {v(T)}, {srd(SRD_WS)}, 0 offen offset:2048 sc1
; my four 64-byte partial-sum pieces: D1B + b*0x2000 + (s/2)*1024 + c*128 + (s%2)*64 + (l>>2)*0x4000 + (l&3)*16
s_lshl_b32 s{sT0}, s{sB}, 13
s_lshr_b32 s{sT1}, s{sS}, 1
s_lshl_b32 s{sT1}, s{sT1}, 10
s_add_u32 s{sT0}, s{sT0}, s{sT1}
s_lshl_b32 s{sT1}, s{sC}, 7
s_add_u32 s{sT0}, s{sT0}, s{sT1}
s_and_b32 s{sT1}, s{sS}, 1
s_lshl_b32 s{sT1}, s{sT1}, 6
s_add_u32 s{sT0}, s{sT0}, s{sT1}
s_add_u32 s{sT0}, s{sT0}, {D1B}
v_lshrrev_b32 {v(T+1)}, 2, {v(vL)}
v_lshlrev_b32 {v(T+1)}, 14, {v(T+1)}
v_and_b32 {v(T+2)}, 3, {v(vL)}
v_lshl_add_u32 {v(T+1)}, {v(T+2)}, 4, {v(T+1)}
v_add_u32 {v(T+1)}, s{sT0}, {v(T+1)}
s_mov_b64 exec, 0xffff
buffer_store_dwordx4 {vr(T+4,4)}, {v(T+1)}, {srd(SRD_WS)}, 0 offen sc1
s_mov_b64 exec, -1
{OLDCPF}
''')
if ILV: ilv_issue()
if KE: a('s_branch L_proto_ret')
a('L_pre_p1:')
stamp('issued0')
a(f's_getreg_b32 s{sXCC}, hwreg(HW_REG_XCC_ID, 0, 4)')
MLFIX=f'''v_and_b32 {v(T)}, 7, {v(vI)}
v_lshl_add_u32 {v(vMLr)}, {v(T)}, 3, {v(vMLr)}''' if P2O else ''
a(f'''
v_lshlrev_b32 {v(vXw)}, 1, v0
v_add_u32 {v(vXw)}, {LX}, {v(vXw)}
s_lshl_b32 s{sT0}, s{sW}, 7
v_lshl_add_u32 {v(vXr)}, {v(vG)}, 4, s{sT0}
v_add_u32 {v(vXr)}, {LX}, {v(vXr)}
v_cmp_eq_u32 vcc, 0, {v(vI)}
v_mov_b32 {v(T)}, {LZ}
s_lshl_b32 s{sT1}, s{sW}, 3
v_cndmask_b32 {v(vXr)}, {v(T)}, {v(vXr)}, vcc
s_lshl_b32 s{sT2}, s{sW}, 2
s_add_u32 s{sT2}, s{sT2}, {LPART+32*48}
v_mov_b32 {v(vPw)}, s{sT2}
v_min_u32 {v(T)}, 33, {v(vL)}
v_mul_u32_u24 {v(T)}, 48, {v(T)}
v_add_u32 {v(vPr)}, {LPART}, {v(T)}
s_lshl_b32 s{sT0}, s{sW}, 8
v_lshlrev_b32 {v(T)}, 6, {v(vI)}
v_lshl_add_u32 {v(T)}, {v(vG)}, 4, {v(T)}
v_add_u32 {v(T)}, s{sT0}, {v(T)}
v_add_u32 {v(vPLw)}, {LPL}, {v(T)}
v_lshrrev_b32 {v(T)}, 2, {v(vI)}
v_lshlrev_b32 {v(T)}, 6, {v(T)}
v_lshl_add_u32 {v(T)}, {v(vG)}, 4, {v(T)}
v_add_u32 {v(vPLr)}, {LPL}, {v(T)}
v_lshlrev_b32 {v(T)}, 6, {v(vI)}
v_add_u32 {v(T)}, s{sT1}, {v(T)}
v_add_u32 {v(vMLw)}, {LML}, {v(T)}
v_lshlrev_b32 {v(T)}, 6, {v(vG)}
v_add_u32 {v(vMLr)}, {LML}, {v(T)}
{MLFIX}
v_lshrrev_b32 {v(T)}, 5, {v(vL)}
v_lshl_add_u32 {v(T)}, {v(T)}, 4, {v(vI)}
v_mul_u32_u24 {v(T)}, 48, {v(T)}
s_lshl_b32 s{sT0}, s{sW}, 2
v_add_u32 {v(T)}, s{sT0}, {v(T)}
v_add_u32 {v(vP3w)}, {LP3}, {v(T)}
v_and_b32 {v(T+1)}, 31, {v(vL)}
v_mul_u32_u24 {v(T)}, 48, {v(T+1)}
v_add_u32 {v(vP3r)}, {LP3}, {v(T)}
v_add_u32 {v(vP5r)}, {LP5}, {v(T)}
v_mul_u32_u24 {v(T)}, 48, {v(vI)}
v_add_u32 {v(T)}, s{sT0}, {v(T)}
v_add_u32 {v(vP5w)}, {LP5}, {v(T)}
; H bounce: write LHB + w*64 + (l%32)*2 ; read LHB + w*64 + g*16
s_lshl_b32 s{sT0}, s{sW}, 6
v_lshl_add_u32 {v(T)}, {v(T+1)}, 1, s{sT0}
v_add_u32 {v(vHw)}, {LHB}, {v(T)}
v_lshl_add_u32 {v(T)}, {v(vG)}, 4, s{sT0}
v_add_u32 {v(vHr)}, {LHB}, {v(T)}
v_and_b32 {v(T)}, 1, {v(vL)}
v_lshlrev_b32 {v(T)}, 4, {v(T)}
v_sub_u32 {v(vSh)}, 16, {v(T)}
v_lshrrev_b32 {v(T)}, 2, {v(vI)}
v_lshl_add_u32 {v(T)}, {v(vG)}, 3, {v(T)}
v_lshlrev_b32 {v(T)}, 6, {v(T)}
v_and_b32 {v(T+2)}, 3, {v(vI)}
v_lshrrev_b32 {v(T+3)}, 1, {v(T+2)}
v_and_b32 {v(T+4)}, 1, {v(vG)}
v_lshlrev_b32 {v(T+4)}, 1, {v(T+4)}
v_xor_b32 {v(T+3)}, {v(T+3)}, {v(T+4)}
v_lshl_add_u32 {v(T)}, {v(T+3)}, 4, {v(T)}
v_and_b32 {v(T+3)}, 1, {v(T+2)}
v_lshl_add_u32 {v(T)}, {v(T+3)}, 3, {v(T)}
s_lshl_b32 s{sT0}, s{sW}, 13
s_add_u32 s{sT0}, s{sT0}, {LW}
v_add_u32 {v(vWN0)}, s{sT0}, {v(T)}
v_xor_b32 {v(vWN1)}, 32, {v(vWN0)}
v_lshrrev_b32 {v(T)}, 2, {v(vI)}                 ; r
v_lshl_add_u32 {v(T+3)}, {v(vG)}, 2, {v(T)}      ; 4g+r
v_lshlrev_b32 {v(T+3)}, 8, {v(T+3)}
v_and_b32 {v(T+4)}, 1, {v(vG)}
v_lshlrev_b32 {v(T+4)}, 2, {v(T+4)}
v_add_u32 {v(T+4)}, {v(T+4)}, {v(T)}
v_lshlrev_b32 {v(T+4)}, 1, {v(T+4)}              ; 8*(g&1)+2r
v_lshrrev_b32 {v(T+5)}, 1, {v(T+2)}
s_lshl_b32 s{sT0}, s{sW}, 1
v_add_u32 {v(T+5)}, s{sT0}, {v(T+5)}
v_xor_b32 {v(T+5)}, {v(T+5)}, {v(T+4)}
v_lshl_add_u32 {v(T+3)}, {v(T+5)}, 4, {v(T+3)}
v_and_b32 {v(T+5)}, 1, {v(T+2)}
v_lshl_add_u32 {v(vVr)}, {v(T+5)}, 3, {v(T+3)}
s_lshl_b32 s{sT0}, s{sW}, 11
v_and_b32 {v(T)}, 7, {v(vI)}
v_xor_b32 {v(T)}, {v(T)}, {v(vG)}
v_lshlrev_b32 {v(T)}, 4, {v(T)}
v_lshl_add_u32 {v(T)}, {v(vI)}, 7, {v(T)}
v_add_u32 {v(T)}, s{sT0}, {v(T)}
v_add_u32 {v(vOst0)}, {LV}, {v(T)}
v_xor_b32 {v(vOst1)}, 64, {v(vOst0)}
v_and_b32 {v(T)}, 3, {v(vI)}
v_lshlrev_b32 {v(T)}, 8, {v(T)}
v_lshl_add_u32 {v(T)}, {v(vG)}, 4, {v(T)}
v_add_u32 {v(vQl)}, {LQ}, {v(T)}
; D read: D1B + b*0x2000 + w*1024 + (i&7)*128 + (i>>3)*64 + g*16
s_lshl_b32 s{sT0}, s{sB}, 13
s_lshl_b32 s{sT1}, s{sW}, 10
s_add_u32 s{sT1}, s{sT1}, s{sT0}
s_add_u32 s{sT1}, s{sT1}, {D1B}
v_and_b32 {v(T)}, 7, {v(vI)}
v_lshlrev_b32 {v(T)}, 7, {v(T)}
v_lshrrev_b32 {v(T+1)}, 3, {v(vI)}
v_lshl_add_u32 {v(T)}, {v(T+1)}, 6, {v(T)}
v_lshl_add_u32 {v(T)}, {v(vG)}, 4, {v(T)}
v_add_u32 {v(vDrd)}, s{sT1}, {v(T)}
; D write: D1B + b*0x2000 + (s/2)*1024 + c*128 + (s%2)*64 + l*2
s_lshr_b32 s{sT1}, s{sS}, 1
s_lshl_b32 s{sT1}, s{sT1}, 10
s_add_u32 s{sT0}, s{sT0}, s{sT1}
s_lshl_b32 s{sT1}, s{sC}, 7
s_add_u32 s{sT0}, s{sT0}, s{sT1}
s_and_b32 s{sT1}, s{sS}, 1
s_lshl_b32 s{sT1}, s{sT1}, 6
s_add_u32 s{sT0}, s{sT0}, s{sT1}
s_add_u32 s{sT0}, s{sT0}, {D1B}
v_lshl_add_u32 {v(vDwr)}, {v(vL)}, 1, s{sT0}
s_mul_i32 s{sT0}, s{sGRP}, {GRPSZ}
s_add_u32 s{sT1}, s{sT0}, {QB}
v_lshl_add_u32 {v(vQrd)}, {v(vL)}, 4, s{sT1}
s_lshl_b32 s{sT2}, s{sS}, 6
s_add_u32 s{sT1}, s{sT1}, s{sT2}
v_lshl_add_u32 {v(vQwr)}, {v(vL)}, 1, s{sT1}
s_lshl_b32 s{sT1}, s{sS}, 6
s_add_u32 s{sT2}, s{sT1}, 64
s_cmp_lt_u32 s{sS}, 7
s_cselect_b32 s{sT1}, s{sT1}, s{sT2}
s_add_u32 s{sT1}, s{sT1}, s{sT0}
s_add_u32 s{sT1}, s{sT1}, {GUB}
v_lshl_add_u32 {v(vGUwr)}, {v(vL)}, 1, s{sT1}
v_and_b32 {v(T)}, 30, {v(vL)}
v_lshlrev_b32 {v(T)}, 1, {v(T)}
s_lshl_b32 s{sT1}, s{sW}, 6
s_add_u32 s{sT1}, s{sT1}, s{sT0}
s_add_u32 s{sT1}, s{sT1}, {GUB}
v_add_u32 {v(vGUrd)}, s{sT1}, {v(T)}
; O write: OB + s*1024 + (g*128 + 16w + i)*2 ; DMA read: OB + (l/8)*1024 + w*128 + ((l%8)^(l/8))*16
s_add_u32 s{sT0}, s{sT0}, {OB}
s_lshl_b32 s{sT1}, s{sS}, 10
s_add_u32 s{sT1}, s{sT1}, s{sT0}
s_lshl_b32 s{sT2}, s{sW}, 5
s_add_u32 s{sT1}, s{sT1}, s{sT2}
v_lshlrev_b32 {v(T)}, 8, {v(vG)}
v_lshl_add_u32 {v(T)}, {v(vI)}, 1, {v(T)}
v_add_u32 {v(vOwr)}, s{sT1}, {v(T)}
s_lshl_b32 s{sT2}, s{sW}, 7
s_add_u32 s{sT1}, s{sT0}, s{sT2}
v_lshrrev_b32 {v(T)}, 3, {v(vL)}
v_and_b32 {v(T+1)}, 7, {v(vL)}
v_xor_b32 {v(T+1)}, {v(T+1)}, {v(T)}
v_lshlrev_b32 {v(T)}, 10, {v(T)}
v_lshl_add_u32 {v(T)}, {v(T+1)}, 4, {v(T)}
v_add_u32 {v(vOrd)}, s{sT1}, {v(T)}
s_mul_i32 s{sT0}, s{sGRP}, {GRPSZ}
s_add_u32 s{sT0}, s{sT0}, {MLB}
s_lshl_b32 s{sT1}, s{sS}, 3
s_add_u32 s{sT1}, s{sT1}, s{sT0}
v_lshl_add_u32 {v(vMLwr)}, {v(vG)}, 7, s{sT1}
s_lshr_b32 s{sT1}, s{sW}, 1
s_lshl_b32 s{sT1}, s{sT1}, 7
s_add_u32 s{sT1}, s{sT1}, s{sT0}
v_lshl_add_u32 {v(vMLrd)}, {v(vG)}, 5, s{sT1}
s_mov_b32 s{mI4}, 0x000f000f
s_mov_b32 s{mI4+1}, 0x000f000f
s_mov_b32 s{mEVEN}, 0x55555555
s_mov_b32 s{mEVEN+1}, 0x55555555
s_mov_b32 s{mI0}, 0x00010001
s_mov_b32 s{mI0+1}, 0x00010001
s_mov_b32 s{sCS}, 0x3e0293ee          ; 128^-0.5 * log2(e)
s_mov_b32 s{sNL2E}, 0xbfb8aa3b        ; -log2(e)
s_mov_b32 s{sOGU}, 0
s_mov_b32 s{sOML}, 0
s_mov_b32 s{sOD1}, 0
s_mov_b32 s{sOD2}, 0x8000
s_mov_b32 s{sOD2P}, 0x8000
s_mov_b32 s{mLO}, -1
s_mov_b32 s{mLO+1}, 0
s_mov_b32 s{sOO}, 0
s_mov_b32 s{sOO2}, 7168
s_mov_b32 s{sSPIN}, 0
s_mov_b32 s{sFAST}, 0
s_lshl_b32 s{sT0}, s{sC}, 19
s_lshl_b32 s{sT1}, s{sS}, 6
s_add_u32 s{sT0}, s{sT0}, s{sT1}
s_add_u32 s{SRD_WO}, s16, s{sT0}
s_addc_u32 s{SRD_WO+1}, s17, 0
s_sub_u32 s{SRD_WO+2}, 4194304, s{sT0}
s_mov_b32 s{SRD_WO+3}, 0x20000
s_mul_i32 s{sT0}, s{sC}, 229376
s_add_u32 s{sT0}, s{sT0}, s{sT1}
s_add_u32 s{SRD_WD}, s24, s{sT0}
s_addc_u32 s{SRD_WD+1}, s25, 0
s_sub_u32 s{SRD_WD+2}, 1835008, s{sT0}
s_mov_b32 s{SRD_WD+3}, 0x20000
s_mul_i32 s{sT0}, s{sC}, 448
s_sub_u32 s{sT2}, s{sT1}, 448
s_cmp_lt_u32 s{sS}, 7
s_cselect_b32 s{sT1}, s{sT1}, s{sT2}
s_cselect_b32 s{sT2}, s20, s22
s_cselect_b32 s{sT3}, s21, s23
s_add_u32 s{sT0}, s{sT0}, s{sT1}
s_add_u32 s{SRD_WGU}, s{sT2}, s{sT0}
s_addc_u32 s{SRD_WGU+1}, s{sT3}, 0
s_sub_u32 s{SRD_WGU+2}, 1835008, s{sT0}
s_mov_b32 s{SRD_WGU+3}, 0x20000
s_mov_b32 s{SRD_OUT}, s26
s_mov_b32 s{SRD_OUT+1}, s27
s_mov_b32 s{SRD_OUT+2}, 2048
s_mov_b32 s{SRD_OUT+3}, 0x20000
v_mov_b32 {v(T)}, 0
v_and_b32 {v(T+1)}, 31, {v(vL)}
v_lshlrev_b32 {v(T+1)}, 2, {v(T+1)}
v_add_u32 {v(T+1)}, {LZ}, {v(T+1)}
ds_write_b32 {v(T+1)}, {v(T)}
v_mov_b32 {v(T)}, 0x3f80
v_lshlrev_b32 {v(T+1)}, 3, {v(vG)}
v_sub_u32 {v(T+1)}, {v(vI)}, {v(T+1)}
v_add_u32 {v(T+2)}, 16, {v(T+1)}
v_mov_b32 {v(T+3)}, 0x3f800000
''')
for blk,src in ((0,T+1),(1,T+2)):
    for r2 in range(4):
        d=RID+blk*4+r2
        a(f'''v_cmp_eq_u32 vcc, {2*r2}, {v(src)}
v_mov_b32 {v(d)}, 0
s_nop 0
v_cndmask_b32 {v(d)}, {v(d)}, {v(T)}, vcc
v_cmp_eq_u32 vcc, {2*r2+1}, {v(src)}
s_nop 1
v_cndmask_b32 {v(d)}, {v(d)}, {v(T+3)}, vcc''')
a(f'''
s_cmp_eq_u32 s{sW}, 0
s_cbranch_scc1 L_wq_w0
s_waitcnt vmcnt({NTAIL})
v_add_u32 {v(vE)}, {EPC}, {v(vE)}
s_nop 0
v_readfirstlane_b32 s{sTAG}, {v(vE)}
s_branch L_wq_landed
L_wq_w0:
s_waitcnt vmcnt({NTAIL if (ILV or KE) else 0})
v_add_u32 {v(vE)}, {EPC}, {v(vE)}
s_nop 0
v_readfirstlane_b32 s{sTAG}, {v(vE)}
s_lshl_b32 s{sT0}, s{sGRP}, 7
s_lshl_b32 s{sT2}, s{sS}, 2
s_add_u32 s{sT0}, s{sT0}, s{sT2}
s_add_u32 s{sT0}, s{sT0}, {FB}
v_mov_b32 {v(T+8)}, s{sT0}
v_add_u32 {v(T+9)}, s{sXCC}, {v(vE)}
s_mov_b64 exec, 1
buffer_store_dword {v(T+9)}, {v(T+8)}, {srd(SRD_WS)}, 0 offen sc1
s_mov_b64 exec, -1
''')
if not ILV and not KE: v_dma(NV1,NVA)
a('L_wq_landed:')
stamp('wq_landed')
w_tr(RWQ,0,2)
if KMID:
    a('s_waitcnt lgkmcnt(0)')
    k_dma()
a(f'v_lshlrev_b32 {v(vX)}, 16, {v(vX)}')
a(f'v_lshrrev_b32 {v(XB)}, 16, {v(vX)}')
def x_update(delta):
    a(f'''v_cvt_pk_bf16_f32 {v(delta)}, {v(delta)}, {v(delta)}
v_and_b32 {v(delta)}, 0xffff0000, {v(delta)}
v_add_f32 {v(vX)}, {v(vX)}, {v(delta)}
v_cvt_pk_bf16_f32 {v(XB)}, {v(vX)}, {v(vX)}
v_and_b32 {v(vX)}, 0xffff0000, {v(XB)}''')
R=T+24
def d_issue(soff): a(f'buffer_load_dwordx4 {vr(R,4)}, {v(vDrd)}, {srd(SRD_WS)}, s{soff} offen sc1')
def d_check(soff, tag=None):
    r=lbl('pd_r'); ok=lbl('pd_ok'); c=lbl('pd_c')
    a(f'{c}:')
    check_valid(range(R,R+4), ok, T+40)
    spin_check(r)
    a(f'{r}:'); d_issue(soff); a(f's_waitcnt vmcnt(0)\ns_branch {c}')
    a(f'{ok}:')
    if tag: stamp(tag)
I1,I2=T+28,T+32
def ident_mfma():
    a(f'v_mfma_f32_16x16x32_bf16 {vr(I1,4)}, {vr(R,4)}, {vr(RID,4)}, 0\nv_mfma_f32_16x16x32_bf16 {vr(I2,4)}, {vr(R,4)}, {vr(RID+4,4)}, 0')
def d_sum():
    a(f'''v_add_f32 {v(I1)}, {v(I1)}, {v(I1+1)}
v_add_f32 {v(I1+2)}, {v(I1+2)}, {v(I1+3)}
v_add_f32 {v(I2)}, {v(I2)}, {v(I2+1)}
v_add_f32 {v(I2+2)}, {v(I2+2)}, {v(I2+3)}
v_add_f32 {v(I1)}, {v(I1)}, {v(I1+2)}
v_add_f32 {v(I2)}, {v(I2)}, {v(I2+2)}
v_permlane16_swap_b32 {v(I1)}, {v(I2)}
v_add_f32 {v(I1)}, {v(I1)}, {v(I2)}''')
    return I1
D00,D01,D10,D11=T+8,T+12,T+16,T+20
def ln_prev(W, colsum_if_l0):
    a(f'ds_read_b128 {vr(T,4)}, {v(vXr)}\nds_read_b128 {vr(T+4,4)}, {v(vXr)} offset:64\ns_waitcnt lgkmcnt(0)')
    a(f'v_mfma_f32_16x16x32_bf16 {vr(D00,4)}, {vr(T,4)}, {vr(W,4)}, 0')
    a(f'v_mfma_f32_16x16x32_bf16 {vr(D01,4)}, {vr(T,4)}, {vr(W+4,4)}, 0')
    a(f'v_mfma_f32_16x16x32_bf16 {vr(D00,4)}, {vr(T+4,4)}, {vr(W+8,4)}, {vr(D00,4)}')
    a(f'v_mfma_f32_16x16x32_bf16 {vr(D01,4)}, {vr(T+4,4)}, {vr(W+12,4)}, {vr(D01,4)}')
    l=lbl('cs')
    a(f's_cmp_lg_u32 s{sL}, 0\ns_cbranch_scc1 {l}')
    O1=T+40; C0,C1=T+44,T+48
    for j in range(4): a(f'v_mov_b32 {v(O1+j)}, 0x3f803f80')
    a(f'v_mfma_f32_16x16x32_bf16 {vr(C0,4)}, {vr(O1,4)}, {vr(W,4)}, 0')
    a(f'v_mfma_f32_16x16x32_bf16 {vr(C1,4)}, {vr(O1,4)}, {vr(W+4,4)}, 0')
    a(f'v_mfma_f32_16x16x32_bf16 {vr(C0,4)}, {vr(O1,4)}, {vr(W+8,4)}, {vr(C0,4)}')
    a(f'v_mfma_f32_16x16x32_bf16 {vr(C1,4)}, {vr(O1,4)}, {vr(W+12,4)}, {vr(C1,4)}')
    a(f's_nop 7\nv_cndmask_b32 {v(C0)}, {v(C1)}, {v(C0)}, s[{mLO}:{mLO+1}]')
    a('s_mov_b32 exec_lo, 0xffff\ns_mov_b32 exec_hi, 0xffff')
    a(f'ds_write_b32 {v(vP3w)}, {v(C0)} offset:{LPARTC-LP3 if LPARTC>=LP3 else 0}') if False else None
    a(f'v_add_u32 {v(C0+1)}, {(LPARTC-LP3)&0xffffffff}, {v(vP3w)}\nds_write_b32 {v(C0+1)}, {v(C0)}')
    a('s_mov_b64 exec, -1')
    a(f'{l}:')
def ln_post(W, pub, tag, cs):
    ident_mfma()
    a(f'v_mfma_f32_16x16x32_bf16 {vr(D00,4)}, {vr(R,4)}, {vr(W,4)}, {vr(D00,4)}')
    a(f'v_mfma_f32_16x16x32_bf16 {vr(D01,4)}, {vr(R,4)}, {vr(W+4,4)}, {vr(D01,4)}')
    a(f'v_mfma_f32_16x16x32_bf16 {vr(D10,4)}, {vr(R,4)}, {vr(W+8,4)}, 0')
    a(f'v_mfma_f32_16x16x32_bf16 {vr(D11,4)}, {vr(R,4)}, {vr(W+12,4)}, 0')
    x_update(d_sum())
    a(f'ds_write_b16 {v(vXw)}, {v(XB)}')
    sa,sq=T+38,T+39
    a(f'v_mov_b32 {v(sa)}, {v(vX)}\nv_mul_f32 {v(sq)}, {v(vX)}, {v(vX)}')
    steps=['quad_perm:[1,0,3,2] row_mask:0xf bank_mask:0xf','quad_perm:[2,3,0,1] row_mask:0xf bank_mask:0xf','row_half_mirror row_mask:0xf bank_mask:0xf','row_mirror row_mask:0xf bank_mask:0xf','row_bcast:15 row_mask:0xa bank_mask:0xf','row_bcast:31 row_mask:0xc bank_mask:0xf']
    fill=[f'v_add_f32 {v(D00)}, {v(D00)}, {v(D00+1)}', f'v_add_f32 {v(D00+2)}, {v(D00+2)}, {v(D00+3)}',
          f'v_add_f32 {v(D10)}, {v(D10)}, {v(D10+1)}', f'v_add_f32 {v(D10+2)}, {v(D10+2)}, {v(D10+3)}',
          f'v_add_f32 {v(D01)}, {v(D01)}, {v(D01+1)}', f'v_add_f32 {v(D01+2)}, {v(D01+2)}, {v(D01+3)}',
          f'v_add_f32 {v(D11)}, {v(D11)}, {v(D11+1)}', f'v_add_f32 {v(D11+2)}, {v(D11+2)}, {v(D11+3)}',
          f'v_add_f32 {v(D00)}, {v(D00)}, {v(D00+2)}', f'v_add_f32 {v(D10)}, {v(D10)}, {v(D10+2)}',
          f'v_add_f32 {v(D01)}, {v(D01)}, {v(D01+2)}', f'v_add_f32 {v(D11)}, {v(D11)}, {v(D11+2)}']
    for k,m in enumerate(steps):
        a(fill[2*k]); a(fill[2*k+1])
        a(f'v_add_f32_dpp {v(sa)}, {v(sa)}, {v(sa)} {m}\nv_add_f32_dpp {v(sq)}, {v(sq)}, {v(sq)} {m}')
    a(f'''v_cndmask_b32 {v(D00)}, {v(D10)}, {v(D00)}, s[{mLO}:{mLO+1}]
v_cndmask_b32 {v(D01)}, {v(D11)}, {v(D01)}, s[{mLO}:{mLO+1}]
s_mov_b32 exec_lo, 0
s_mov_b32 exec_hi, 0x80000000
ds_write2_b32 {v(vPw)}, {v(sa)}, {v(sq)} offset0:0 offset1:12
s_mov_b64 exec, -1
v_permlane32_swap_b32 {v(D00)}, {v(D01)}
v_add_f32 {v(D00)}, {v(D00)}, {v(D01)}
v_mov_b32 {v(D01)}, {v(D00)}
v_permlane16_swap_b32 {v(D00)}, {v(D01)}
v_add_f32 {v(D00)}, {v(D00)}, {v(D01)}
v_add_u32 {v(D01)}, {(LPART-LP3)&0xffffffff}, {v(vP3w)}
s_mov_b32 exec_lo, 0xffff
s_mov_b32 exec_hi, 0xffff
ds_write_b32 {v(D01)}, {v(D00)}
s_mov_b64 exec, -1
s_waitcnt lgkmcnt(0)
s_barrier''')
    stamp(tag+'_b2')
    done=lbl('lng_done'); nocs=lbl('nocs')
    a(f's_cmp_lg_u32 s{sW}, 0\ns_cbranch_scc1 {done}')
    a(f'ds_read_b128 {vr(T,4)}, {v(vPr)}\nds_read_b128 {vr(T+4,4)}, {v(vPr)} offset:16')
    a(f's_cmp_lg_u32 s{sL}, 0\ns_cbranch_scc1 {nocs}')
    a(f'''v_add_u32 {v(T+16)}, {(LPARTC-LPART)&0xffffffff}, {v(vPr)}
ds_read_b128 {vr(T+8,4)}, {v(T+16)}
ds_read_b128 {vr(T+12,4)}, {v(T+16)} offset:16
s_waitcnt lgkmcnt(0)
v_add_f32 {v(T+8)}, {v(T+8)}, {v(T+9)}
v_add_f32 {v(T+10)}, {v(T+10)}, {v(T+11)}
v_add_f32 {v(T+12)}, {v(T+12)}, {v(T+13)}
v_add_f32 {v(T+14)}, {v(T+14)}, {v(T+15)}
v_add_f32 {v(T+8)}, {v(T+8)}, {v(T+10)}
v_add_f32 {v(T+12)}, {v(T+12)}, {v(T+14)}
v_add_f32 {v(cs)}, {v(T+8)}, {v(T+12)}
{nocs}:
s_waitcnt lgkmcnt(0)
v_add_f32 {v(T)}, {v(T)}, {v(T+1)}
v_add_f32 {v(T+2)}, {v(T+2)}, {v(T+3)}
v_add_f32 {v(T+4)}, {v(T+4)}, {v(T+5)}
v_add_f32 {v(T+6)}, {v(T+6)}, {v(T+7)}
v_add_f32 {v(T)}, {v(T)}, {v(T+2)}
v_add_f32 {v(T+4)}, {v(T+4)}, {v(T+6)}
v_add_f32 {v(T)}, {v(T)}, {v(T+4)}
s_nop 0
v_readlane_b32 s{sT0}, {v(T)}, 32
v_readlane_b32 s{sT1}, {v(T)}, 33
s_nop 0
v_mov_b32 {v(T+2)}, s{sT0}
v_mov_b32 {v(T+3)}, s{sT1}
v_mul_f32 {v(T+2)}, 0x3b000000, {v(T+2)}          ; mean
v_mul_f32 {v(T+3)}, 0x3b000000, {v(T+3)}          ; E[x^2]
v_fma_f32 {v(T+3)}, -{v(T+2)}, {v(T+2)}, {v(T+3)}
v_fma_f32 {v(T+4)}, -{v(cs)}, {v(T+2)}, {v(T)}
v_max_f32 {v(T+3)}, 0, {v(T+3)}
v_add_f32 {v(T+3)}, 0x3727c5ac, {v(T+3)}          ; + 1e-5
v_rsq_f32 {v(T+3)}, {v(T+3)}
v_mul_f32 {v(T+4)}, {v(T+4)}, {v(T+3)}
v_mov_b32_dpp {v(T+5)}, {v(T+4)} quad_perm:[1,1,3,3] row_mask:0xf bank_mask:0xf
v_cvt_pk_bf16_f32 {v(T+12)}, {v(T+4)}, {v(T+5)}
v_min_u32 {v(T+12)}, -2, {v(T+12)}
s_mov_b32 exec_lo, 0x55555555
s_mov_b32 exec_hi, 0''')
    pub()
    exec_all()
    a(f'{done}:')
a(f'ds_write_b16 {v(vXw)}, {v(XB)}')
for j in range(4): a(f'v_mov_b32 {v(R+j)}, 0')
a('s_waitcnt lgkmcnt(0)')
ln_prev(RWQ, True)
a('s_branch L_p1_post')
a('L_layer:')
d_issue(sOD2P)
ln_prev(RWQ, False)
a('s_waitcnt vmcnt(0)')
d_check(sOD2P,'d2_ok')
a('L_p1_post:')
def q_pub():
    l1=lbl('qp1'); l2=lbl('qpd')
    a(f's_cmp_lg_u32 s{sL}, 0\ns_cbranch_scc1 {l1}')
    a(f'''s_lshl_b32 s{sT0}, s{sGRP}, 11
s_lshl_b32 s{sT1}, s{sS}, 7
s_add_u32 s{sT0}, s{sT0}, s{sT1}
s_add_u32 s{sT0}, s{sT0}, {Q0T}
v_lshl_add_u32 {v(T+14)}, {v(vL)}, 2, s{sT0}
s_add_u32 s{sT1}, s{sTAG}, s{sXCC}
v_mov_b32 {v(T+13)}, s{sT1}
buffer_store_dwordx2 {vr(T+12,2)}, {v(T+14)}, {srd(SRD_WS)}, 0 offen sc1
s_branch {l2}
{l1}:''')
    pub_store(f'buffer_store_dword {v(T+12)}, {v(vQwr)}, {srd(SRD_WS)}, 0 offen')
    a(f'{l2}:')
ln_post(RWQ, q_pub, 'p1', vCSQ)
stamp('p1_done')
a(f's_cmp_lg_u32 s{sL}, 0\ns_cbranch_scc1 L_h1_l1')
if not KE:
    if KDMA:
        if not KMID: k_dma()
    else:
        k_first(); k_second()
    if KBAR: a('s_barrier')
stamp('k_issued')
pf3('o',1,T+41); pf3('g',2,T+41); pf3('d',3,T+41)
a(f's_cmp_eq_u32 s{sW}, 0\ns_cbranch_scc1 L_h1_w0\ns_cmp_eq_u32 s{sW}, 7\ns_cbranch_scc1 L_h1_w7')
v_dma(NVA,8)
def late_w():
    if VBAR: a('s_barrier')
    w_dma(SRD_WO, vWoo, 1, 4, 1024, NTW)
    l1=lbl('lw1'); l2=lbl('lw2')
    a(f's_cmp_ge_u32 s{sS}, 14\ns_cbranch_scc1 {l1}')
    w_dma(SRD_WGU, vWguo, 0, 4, 3584, NTW)
    a(f'{l1}:\ns_cmp_eq_u32 s{sW}, 7\ns_cbranch_scc1 {l2}')
    w_dma(SRD_WD, vWdo, 2, 2, 1024, NTW)
    a(f'{l2}:')
NPO=0
if ALLW:
    NWO=4
    late_w()
else:
    NPO=pf_wo()
    NWO=0 if WOLATE else 4
    if not WOLATE: w_dma(SRD_WO, vWoo, 1, 4, 1024, NTW)
stamp('vw_issued')
if ALLW:
    l1=lbl('kw1'); l2=lbl('kw2')
    a(f's_cmp_ge_u32 s{sS}, 14\ns_cbranch_scc1 {l1}\ns_waitcnt vmcnt({8-NVA+10})\ns_branch {l2}\n{l1}:\ns_waitcnt vmcnt({8-NVA+6})\n{l2}:')
else:
    a(f's_waitcnt vmcnt({8-NVA+NPO+NWO})')
stamp('k_landed')
if KDMA: k_frags()
a('s_branch L_h1_bar')
a(f'''L_h1_w7:
s_lshl_b32 s{sT0}, s{sB}, 10
s_add_u32 s{sT0}, s{sT0}, {FB}
v_lshrrev_b32 {v(T+28)}, 3, {v(vL)}
v_lshlrev_b32 {v(T+28)}, 7, {v(T+28)}
v_and_b32 {v(T+29)}, 7, {v(vL)}
v_lshl_add_u32 {v(T+28)}, {v(T+29)}, 3, {v(T+28)}
v_add_u32 {v(T+28)}, s{sT0}, {v(T+28)}
L_f1_retry:
buffer_load_dwordx2 {vr(T+30,2)}, {v(T+28)}, {srd(SRD_WS)}, 0 offen sc1
s_waitcnt vmcnt(0)
v_subrev_u32 {v(T+30)}, s{sTAG}, {v(T+30)}
v_subrev_u32 {v(T+31)}, s{sTAG}, {v(T+31)}
v_max_u32 {v(T+30)}, {v(T+30)}, {v(T+31)}
v_cmp_lt_u32 vcc, 15, {v(T+30)}
s_cbranch_vccz L_h1_rest
''')
spin_check('L_f1_retry')
a(f'''L_h1_w0:
s_lshl_b32 s{sT0}, s{sGRP}, 11
s_add_u32 s{sT0}, s{sT0}, {Q0T}
v_lshl_add_u32 {v(T+16)}, {v(vL)}, 5, s{sT0}
L_q0_retry:
buffer_load_dwordx4 {vr(T,4)}, {v(T+16)}, {srd(SRD_WS)}, 0 offen sc1
buffer_load_dwordx4 {vr(T+4,4)}, {v(T+16)}, {srd(SRD_WS)}, 0 offen offset:16 sc1
s_waitcnt vmcnt(0)
v_subrev_u32 {v(T+1)}, s{sTAG}, {v(T+1)}
v_subrev_u32 {v(T+3)}, s{sTAG}, {v(T+3)}
v_subrev_u32 {v(T+5)}, s{sTAG}, {v(T+5)}
v_subrev_u32 {v(T+7)}, s{sTAG}, {v(T+7)}
v_max3_u32 {v(T+8)}, {v(T+1)}, {v(T+3)}, {v(T+5)}
v_max_u32 {v(T+8)}, {v(T+8)}, {v(T+7)}
v_cmp_lt_u32 vcc, 15, {v(T+8)}
s_cbranch_vccz L_q0_ok''')
spin_check('L_q0_retry')
a(f'''L_q0_ok:
v_min3_u32 {v(T+9)}, {v(T+1)}, {v(T+3)}, {v(T+5)}
v_min_u32 {v(T+9)}, {v(T+9)}, {v(T+7)}
v_cmp_ne_u32 vcc, s{sXCC}, {v(T+8)}
v_cmp_ne_u32 s[{sT2}:{sT3}], s{sXCC}, {v(T+9)}
s_or_b64 vcc, vcc, s[{sT2}:{sT3}]
s_cmp_eq_u64 vcc, 0
s_cselect_b32 s{sT0}, 1, 0
''')
if FORCESLOW: a(f's_mov_b32 s{sT0}, 0')
a(f'''v_lshlrev_b32 {v(T+10)}, 4, {v(vL)}
v_add_u32 {v(T+10)}, {LQ}, {v(T+10)}
ds_write2_b32 {v(T+10)}, {v(T)}, {v(T+2)} offset0:0 offset1:1
ds_write2_b32 {v(T+10)}, {v(T+4)}, {v(T+6)} offset0:2 offset1:3
v_mov_b32 {v(T+11)}, s{sT0}
v_mov_b32 {v(T+12)}, {LFAST}
ds_write_b32 {v(T+12)}, {v(T+11)}
L_h1_rest:''')
if KDMA: k_frags()
v_dma(NVA,8)
if ALLW: late_w()
else:
    pf_wo()
    if not WOLATE: w_dma(SRD_WO, vWoo, 1, 4, 1024, NTW)
a('s_branch L_h1_bar')
a('L_h1_l1:')
a(f's_cmp_lg_u32 s{sW}, 0\ns_cbranch_scc1 L_h1_bar')
ack()
a(f'''L_q1_retry:
buffer_load_dwordx4 {vr(T,4)}, {v(vQrd)}, {srd(SRD_WS)}, 0 offen sc1
s_waitcnt vmcnt(0)''')
check_valid(range(T,T+4),'L_q1_ok',T+4)
spin_check('L_q1_retry')
a(f'''L_q1_ok:
v_lshlrev_b32 {v(T+10)}, 4, {v(vL)}
v_add_u32 {v(T+10)}, {LQ}, {v(T+10)}
ds_write_b128 {v(T+10)}, {vr(T,4)}
L_h1_bar:
s_waitcnt lgkmcnt(0)
s_barrier''')
stamp('q_ok')
if PT:
    a(f'''s_cmp_lg_u32 s{sL}, 0
s_cbranch_scc1 L_nopt
s_cmp_lg_u32 s{sW}, 6
s_cbranch_scc1 L_nopt
s_mul_i32 s{sT0}, s{sGRP}, {GRPSZ}
s_lshl_b32 s{sT1}, s{sS}, 10
s_add_u32 s{sT1}, s{sT1}, {OB}
v_and_b32 {v(T+70)}, 7, {v(vL)}
v_lshlrev_b32 {v(T+70)}, 7, {v(T+70)}
v_lshrrev_b32 {v(T+71)}, 3, {v(vL)}
v_and_b32 {v(T+71)}, 1, {v(T+71)}
v_lshl_add_u32 {v(T+70)}, {v(T+71)}, 14, {v(T+70)}
v_add_u32 {v(T+70)}, s{sT1}, {v(T+70)}
v_subrev_u32 {v(T+71)}, 16, {v(vL)}
s_lshl_b32 s{sT1}, s{sS}, 2
v_add_u32 {v(T+71)}, s{sT1}, {v(T+71)}
v_min_u32 {v(T+71)}, 39, {v(T+71)}
v_lshlrev_b32 {v(T+71)}, 7, {v(T+71)}
v_cmp_gt_u32 vcc, 16, {v(vL)}
s_nop 1
v_cndmask_b32 {v(T+70)}, {v(T+71)}, {v(T+70)}, vcc
s_mov_b32 exec_lo, 0xfffff
s_mov_b32 exec_hi, 0
buffer_load_dword {v(43 if False else T+83)}, {v(T+70)}, {srd(SRD_WS)}, s{sT0} offen sc1
s_mov_b64 exec, -1
L_nopt:''')
Q=T
for kk in range(4): a(f'ds_read_b128 {vr(Q+4*kk,4)}, {v(vQl)} offset:{kk*64}')
a(f'v_mov_b32 {v(T+26)}, {LFAST}\nds_read_b32 {v(T+27)}, {v(T+26)}')
S0,S1=T+16,T+20
for kk in range(4):
    a(f's_waitcnt lgkmcnt({4-kk})')
    for t,S in ((0,S0),(1,S1)):
        c='0' if kk==0 else vr(S,4)
        a(f'v_mfma_f32_16x16x32_bf16 {vr(S,4)}, {vr(RK+(t*4+kk)*4,4)}, {vr(Q+4*kk,4)}, {c}')
if WOS:
    a(f's_cmp_lg_u32 s{sL}, 0\ns_cbranch_scc1 L_wos')
    w_dma(SRD_WO, vWoo, 1, WOS, 1024, NTW)
    a('L_wos:')
a(f's_waitcnt lgkmcnt(0)\nv_readfirstlane_b32 s{sFAST}, {v(T+27)}')
m,m2,tt=T+24,T+25,T+26
MC,LS=T+28,T+29
a(f'''
v_max3_f32 {v(m)}, {v(S0)}, {v(S0+1)}, {v(S0+2)}
v_max3_f32 {v(m2)}, {v(S1)}, {v(S1+1)}, {v(S1+2)}
v_max3_f32 {v(m)}, {v(m)}, {v(S0+3)}, {v(S1+3)}
v_max_f32 {v(m)}, {v(m)}, {v(m2)}
v_mov_b32 {v(tt)}, {v(m)}
v_permlane16_swap_b32 {v(m)}, {v(tt)}
v_max_f32 {v(m)}, {v(m)}, {v(tt)}
v_mov_b32 {v(tt)}, {v(m)}
v_permlane32_swap_b32 {v(m)}, {v(tt)}
v_max_f32 {v(m)}, {v(m)}, {v(tt)}
v_mul_f32 {v(MC)}, s{sCS}, {v(m)}
''')
P=T+32
for t,S in ((0,S0),(1,S1)):
    for r in range(4): a(f'v_fma_f32 {v(P+4*t+r)}, {v(S+r)}, s{sCS}, -{v(MC)}')
for r in range(8): a(f'v_exp_f32 {v(P+r)}, {v(P+r)}')
PK=T+40
for r in range(4): a(f'v_cvt_pk_bf16_f32 {v(PK+r)}, {v(P+2*r)}, {v(P+2*r+1)}')
if ALLW:
    VWAIT=f'''s_cmp_ge_u32 s{sS}, 14
s_cbranch_scc1 L_vw_a
s_cmp_eq_u32 s{sW}, 7
s_cbranch_scc1 L_vw_b
s_waitcnt vmcnt(10)
s_branch L_p2_nov
L_vw_b:
s_waitcnt vmcnt(8)
s_branch L_p2_nov
L_vw_a:
s_cmp_eq_u32 s{sW}, 7
s_cbranch_scc1 L_vw_c
s_waitcnt vmcnt(6)
s_branch L_p2_nov
L_vw_c:
s_waitcnt vmcnt(4)'''
else:
    VWAIT=f's_waitcnt vmcnt({NPO+NWO+WOS})'
exec_mask(mI4)
a(f'ds_write_b128 {v(vPLw)}, {vr(PK,4)}')
exec_all()
a(f'''
v_add_f32 {v(P)}, {v(P)}, {v(P+1)}
v_add_f32 {v(P+2)}, {v(P+2)}, {v(P+3)}
v_add_f32 {v(P+4)}, {v(P+4)}, {v(P+5)}
v_add_f32 {v(P+6)}, {v(P+6)}, {v(P+7)}
v_add_f32 {v(P)}, {v(P)}, {v(P+2)}
v_add_f32 {v(P+4)}, {v(P+4)}, {v(P+6)}
v_add_f32 {v(LS)}, {v(P)}, {v(P+4)}
v_mov_b32 {v(tt)}, {v(LS)}
v_permlane16_swap_b32 {v(LS)}, {v(tt)}
v_add_f32 {v(LS)}, {v(LS)}, {v(tt)}
v_mov_b32 {v(tt)}, {v(LS)}
v_permlane32_swap_b32 {v(LS)}, {v(tt)}
v_add_f32 {v(LS)}, {v(LS)}, {v(tt)}
s_mov_b64 exec, 15
ds_write_b64 {v(vMLw)}, {vr(MC,2)}
s_mov_b64 exec, -1
s_cmp_lg_u32 s{sL}, 0
s_cbranch_scc1 L_p2_nov
{VWAIT}
L_p2_nov:
s_waitcnt lgkmcnt(0)
s_barrier
''')
stamp('p2_bar')
a(f's_cmp_lg_u32 s{sL}, 0\ns_cbranch_scc1 L_p2_novt')
if WOLATE and not ALLW and WOS<4: w_dma(SRD_WO, vWoo, 1, 4, 1024, NTW, WOS)
pf_wgu()
if WGS:
    a(f's_cmp_ge_u32 s{sS}, 14\ns_cbranch_scc1 L_p2_nowgs')
    w_dma(SRD_WGU, vWguo, 0, WGS, 3584, NTW)
    a('L_p2_nowgs:')
if WGP2:
    a(f's_cmp_ge_u32 s{sS}, 14\ns_cbranch_scc1 L_p2_nowg')
    w_dma(SRD_WGU, vWguo, 0, 4, 3584, NTW)
    a('L_p2_nowg:')
for kk in range(8):
    for hh in range(2):
        a(f'ds_read_b64_tr_b16 {vr(RV+kk*4+hh*2,2)}, {v(vVr)} offset:{LV+kk*8192+hh*4096}')
a('s_waitcnt lgkmcnt(0)')
a('L_p2_novt:')
PA=T; MLr=T+32; DO=T+48
OO=T+82
if not P2O:
    for k in range(4): a(f'ds_read_b128 {vr(MLr+4*k,4)}, {v(vMLr)} offset:{16*k}')
    for kk in range(8): a(f'ds_read_b128 {vr(PA+4*kk,4)}, {v(vPLr)} offset:{kk*256}')
    for kk in range(8):
        a(f's_waitcnt lgkmcnt({7-kk})')
        a(f'v_mfma_f32_16x16x32_bf16 {vr(DO+4*kk,4)}, {vr(PA+4*kk,4)}, {vr(RV+4*kk,4)}, 0')
        if kk==0:
            mc=[MLr+2*k for k in range(8)]
            a(f'''v_max3_f32 {v(T+80)}, {v(mc[0])}, {v(mc[1])}, {v(mc[2])}
    v_max3_f32 {v(T+81)}, {v(mc[3])}, {v(mc[4])}, {v(mc[5])}
    v_max3_f32 {v(T+80)}, {v(T+80)}, {v(mc[6])}, {v(mc[7])}
    v_max_f32 {v(T+80)}, {v(T+80)}, {v(T+81)}''')
        if kk==1:
            for k in range(8): a(f'v_sub_f32 {v(MLr+2*k)}, {v(MLr+2*k)}, {v(T+80)}')
        if kk==3:
            for k in range(8): a(f'v_exp_f32 {v(MLr+2*k)}, {v(MLr+2*k)}')
        if kk==6:
            a(f'v_mul_f32 {v(T+81)}, {v(MLr)}, {v(MLr+1)}')
            for k in range(1,8): a(f'v_fmac_f32 {v(T+81)}, {v(MLr+2*k)}, {v(MLr+2*k+1)}')
    OO=T+82
    a(f'v_mul_f32 {v(OO)}, {v(MLr)}, {v(DO)}\nv_mul_f32 {v(OO+1)}, {v(MLr+2)}, {v(DO+4)}')
    for k in range(2,8,2):
        a(f'v_fmac_f32 {v(OO)}, {v(MLr+2*k)}, {v(DO+4*k)}\nv_fmac_f32 {v(OO+1)}, {v(MLr+2*k+2)}, {v(DO+4*k+4)}')
else:
    mc,ll,FM,FL=MLr,MLr+1,T+80,T+81
    DP='row_mask:0xf bank_mask:0xf'
    a(f'ds_read_b64 {vr(mc,2)}, {v(vMLr)}')
    for kk in range(8): a(f'ds_read_b128 {vr(PA+4*kk,4)}, {v(vPLr)} offset:{kk*256}')
    for kk in range(8):
        a(f's_waitcnt lgkmcnt({7-kk})')
        a(f'v_mfma_f32_16x16x32_bf16 {vr(DO+4*kk,4)}, {vr(PA+4*kk,4)}, {vr(RV+4*kk,4)}, 0')
        if kk==0: a(f'v_max_f32_dpp {v(FM)}, {v(mc)}, {v(mc)} quad_perm:[1,0,3,2] {DP}')
        if kk==1: a(f'v_max_f32_dpp {v(FM)}, {v(FM)}, {v(FM)} quad_perm:[2,3,0,1] {DP}')
        if kk==2: a(f'v_max_f32_dpp {v(FM)}, {v(FM)}, {v(FM)} row_half_mirror {DP}\nv_sub_f32 {v(mc)}, {v(mc)}, {v(FM)}\nv_exp_f32 {v(mc)}, {v(mc)}')
        if kk==3: a(f'v_mul_f32 {v(FL)}, {v(mc)}, {v(ll)}')
        if kk==4: a(f'v_add_f32_dpp {v(FL)}, {v(FL)}, {v(FL)} quad_perm:[1,0,3,2] {DP}')
        if kk==5: a(f'v_add_f32_dpp {v(FL)}, {v(FL)}, {v(FL)} quad_perm:[2,3,0,1] {DP}\nv_mul_f32_dpp {v(OO)}, {v(mc)}, {v(DO)} row_newbcast:0 {DP}\nv_mul_f32_dpp {v(OO+1)}, {v(mc)}, {v(DO+4)} row_newbcast:1 {DP}')
        if kk==6: a(f'v_add_f32_dpp {v(FL)}, {v(FL)}, {v(FL)} row_half_mirror {DP}\nv_fmac_f32_dpp {v(OO)}, {v(mc)}, {v(DO+8)} row_newbcast:2 {DP}\nv_fmac_f32_dpp {v(OO+1)}, {v(mc)}, {v(DO+12)} row_newbcast:3 {DP}')
    for k in range(4,8):
        a(f'v_fmac_f32_dpp {v(OO+(k%2))}, {v(mc)}, {v(DO+4*k)} row_newbcast:{k} {DP}')
a(f'''
v_add_f32 {v(OO)}, {v(OO)}, {v(OO+1)}
v_mov_b32_dpp {v(OO+1)}, {v(OO)} quad_perm:[1,1,3,3] row_mask:0xf bank_mask:0xf
v_cvt_pk_bf16_f32 {v(OO)}, {v(OO)}, {v(OO+1)}
v_min_u32 {v(OO)}, -2, {v(OO)}
''')
exec_mask(mEVEN)
pub_store(f'buffer_store_dword {v(OO)}, {v(vOwr)}, {srd(SRD_WS)}, s{sOO} offen')
a(f's_cmp_lg_u32 s{sW}, 0\ns_cbranch_scc1 L_p2_noml')
a(f'v_min_u32 {v(T+80)}, -2, {v(T+80)}\nv_min_u32 {v(T+81)}, -2, {v(T+81)}')
exec_mask(mI0)
pub_store(f'buffer_store_dwordx2 {vr(T+80,2)}, {v(vMLwr)}, {srd(SRD_WS)}, s{sOML} offen')
a('L_p2_noml:')
exec_all()
stamp('p2_done')
A0,A1,ML0=T,T+4,T+8
def o_issue():
    a(f's_lshl_b32 s{sT0}, s{sW}, 11\ns_add_u32 m0, s{sT0}, {LV}\ns_nop 0')
    a(f'buffer_load_dwordx4 {v(vOrd)}, {srd(SRD_WS)}, s{sOO} offen sc1 lds')
    a(f'buffer_load_dwordx4 {v(vOrd)}, {srd(SRD_WS)}, s{sOO2} offen offset:1024 sc1 lds')
    a(f'buffer_load_dwordx4 {vr(ML0,4)}, {v(vMLrd)}, {srd(SRD_WS)}, s{sOML} offen sc1')
    a(f'buffer_load_dwordx4 {vr(ML0+4,4)}, {v(vMLrd)}, {srd(SRD_WS)}, s{sOML} offen offset:16 sc1')
a('s_waitcnt vmcnt(0)')
o_issue()
a(f's_cmp_lg_u32 s{sL}, 0\ns_cbranch_scc1 L_o_wait')
w_tr(RWO,1,2)
if WGP2:
    a('s_waitcnt lgkmcnt(4)')
    w_tr(RWG,0,2)
    a('s_branch L_o_wait')
elif ALLW:
    a('s_waitcnt lgkmcnt(4)')
    w_tr(RWG,0,2)
    a('s_waitcnt lgkmcnt(4)')
    w_tr(RWD,2,1)
    a('s_branch L_o_wait')
elif WGE:
    a(f's_cmp_ge_u32 s{sS}, 14\ns_cbranch_scc1 L_o_wait')
    w_dma(SRD_WGU, vWguo, 0, 4, 3584, NTW)
    a('s_waitcnt vmcnt(4)\ns_branch L_o_chk')
else:
    a('s_branch L_o_wait')
a('L_o_retry:')
o_issue()
a('L_o_wait:\ns_waitcnt vmcnt(0)')
a('L_o_chk:')
a(f'ds_read_b128 {vr(A0,4)}, {v(vOst0)}\nds_read_b128 {vr(A1,4)}, {v(vOst1)}\ns_waitcnt lgkmcnt(0)')
check_valid(range(T,T+16),'L_o_ok',T+16)
spin_check('L_o_retry')
a('L_o_ok:')
stamp('o_ok')
if WGP2 and WDO:
    a(f's_cmp_lg_u32 s{sL}, 0\ns_cbranch_scc1 L_p3_go\ns_cmp_eq_u32 s{sW}, 7\ns_cbranch_scc1 L_p3_go')
    w_dma(SRD_WD, vWdo, 2, 2, 1024, NTW)
    a('L_p3_go:')
elif not WGE and not ALLW and not WGP2:
    a(f's_cmp_lg_u32 s{sL}, 0\ns_cbranch_scc1 L_p3_go\ns_cmp_ge_u32 s{sS}, 14\ns_cbranch_scc1 L_p3_go')
    w_dma(SRD_WGU, vWguo, 0, 4, 3584, NTW, WGS)
    if 'd' in PFX:
        a(f's_cmp_eq_u32 s{sW}, 7\ns_cbranch_scc1 L_p3_go')
        pf_wd()
    a('L_p3_go:')
E0,E1=T+16,T+20
a(f'v_mfma_f32_16x16x32_bf16 {vr(E0,4)}, {vr(A0,4)}, {vr(RWO,4)}, 0')
a(f'v_mfma_f32_16x16x32_bf16 {vr(E1,4)}, {vr(A0,4)}, {vr(RWO+4,4)}, 0')
a(f'v_mfma_f32_16x16x32_bf16 {vr(E0,4)}, {vr(A1,4)}, {vr(RWO+8,4)}, {vr(E0,4)}')
a(f'v_mfma_f32_16x16x32_bf16 {vr(E1,4)}, {vr(A1,4)}, {vr(RWO+12,4)}, {vr(E1,4)}')
Mx,tt,Lt=T+24,T+25,T+26
M=[ML0,ML0+2,ML0+4,ML0+6]; Lr=[x+1 for x in M]
a(f'''
v_max3_f32 {v(Mx)}, {v(M[0])}, {v(M[1])}, {v(M[2])}
v_max_f32 {v(Mx)}, {v(Mx)}, {v(M[3])}
v_mov_b32 {v(tt)}, {v(Mx)}
v_permlane16_swap_b32 {v(Mx)}, {v(tt)}
v_max_f32 {v(Mx)}, {v(Mx)}, {v(tt)}
v_mov_b32 {v(tt)}, {v(Mx)}
v_permlane32_swap_b32 {v(Mx)}, {v(tt)}
v_max_f32 {v(Mx)}, {v(Mx)}, {v(tt)}
''')
for r in range(4): a(f'v_sub_f32 {v(M[r])}, {v(M[r])}, {v(Mx)}')
for r in range(4): a(f'v_exp_f32 {v(M[r])}, {v(M[r])}')
a(f'v_mul_f32 {v(Lt)}, {v(M[0])}, {v(Lr[0])}')
for r in range(1,4): a(f'v_fmac_f32 {v(Lt)}, {v(M[r])}, {v(Lr[r])}')
Y0,Y1=T+27,T+28
a(f'''
v_mov_b32 {v(tt)}, {v(Lt)}
v_mul_f32 {v(Y0)}, {v(M[0])}, {v(E0)}
v_mul_f32 {v(Y1)}, {v(M[0])}, {v(E1)}
v_permlane16_swap_b32 {v(Lt)}, {v(tt)}
v_add_f32 {v(Lt)}, {v(Lt)}, {v(tt)}
v_fmac_f32 {v(Y0)}, {v(M[1])}, {v(E0+1)}
v_fmac_f32 {v(Y1)}, {v(M[1])}, {v(E1+1)}
v_mov_b32 {v(tt)}, {v(Lt)}
v_fmac_f32 {v(Y0)}, {v(M[2])}, {v(E0+2)}
v_fmac_f32 {v(Y1)}, {v(M[2])}, {v(E1+2)}
v_permlane32_swap_b32 {v(Lt)}, {v(tt)}
v_add_f32 {v(Lt)}, {v(Lt)}, {v(tt)}
v_fmac_f32 {v(Y0)}, {v(M[3])}, {v(E0+3)}
v_fmac_f32 {v(Y1)}, {v(M[3])}, {v(E1+3)}
v_rcp_f32 {v(Lt)}, {v(Lt)}
v_permlane32_swap_b32 {v(Y0)}, {v(Y1)}
v_add_f32 {v(Y0)}, {v(Y0)}, {v(Y1)}
v_mov_b32 {v(tt)}, {v(Y0)}
v_permlane16_swap_b32 {v(Y0)}, {v(tt)}
v_add_f32 {v(Y0)}, {v(Y0)}, {v(tt)}
v_mul_f32 {v(Y0)}, {v(Y0)}, {v(Lt)}
s_mov_b32 exec_lo, 0xffff
s_mov_b32 exec_hi, 0xffff
ds_write_b32 {v(vP3w)}, {v(Y0)}
s_mov_b64 exec, -1
s_waitcnt lgkmcnt(0)
s_barrier
''')
stamp('p3_bar')
def final8(rd, n, soff, lab, extra=None):
    if extra:
        l0=lbl('f8x')
        a(f's_cmp_eq_u32 s{sW}, 0\ns_cbranch_scc1 {l0}')
        extra(); a(f's_branch {lab}\n{l0}:')
    else:
        a(f's_cmp_lg_u32 s{sW}, 0\ns_cbranch_scc1 {lab}')
    a(f'ds_read_b128 {vr(T,4)}, {v(rd)}\nds_read_b128 {vr(T+4,4)}, {v(rd)} offset:16\ns_waitcnt lgkmcnt(0)')
    a(f'''v_add_f32 {v(T)}, {v(T)}, {v(T+1)}
v_add_f32 {v(T+2)}, {v(T+2)}, {v(T+3)}
v_add_f32 {v(T+4)}, {v(T+4)}, {v(T+5)}''')
    if n==8: a(f'v_add_f32 {v(T+6)}, {v(T+6)}, {v(T+7)}')
    a(f'''v_add_f32 {v(T)}, {v(T)}, {v(T+2)}
v_add_f32 {v(T+4)}, {v(T+4)}, {v(T+6)}
v_add_f32 {v(T)}, {v(T)}, {v(T+4)}
v_mov_b32_dpp {v(T+1)}, {v(T)} quad_perm:[1,1,3,3] row_mask:0xf bank_mask:0xf
v_cvt_pk_bf16_f32 {v(T)}, {v(T)}, {v(T+1)}
v_min_u32 {v(T)}, -2, {v(T)}
s_mov_b32 exec_lo, 0x55555555
s_mov_b32 exec_hi, 0
buffer_store_dword {v(T)}, {v(vDwr)}, {srd(SRD_WS)}, s{soff} offen sc1
s_mov_b64 exec, -1''')
    if extra: extra()
    ack()
    a(f'{lab}:')
    if ACK: a('s_barrier')
def wgu_pretr():
    l=lbl('ptr')
    a(f's_cmp_lg_u32 s{sL}, 0\ns_cbranch_scc1 {l}\ns_cmp_ge_u32 s{sS}, 14\ns_cbranch_scc1 {l}')
    a('s_waitcnt vmcnt(0)')
    w_tr(RWG,0,2)
    a(f's_waitcnt lgkmcnt(0)\n{l}:')
final8(vP3r, 8, sOD1, 'L_p3_done', wgu_pretr if PRETR else None)
stamp('p3_done')
d_issue(sOD1)
if not PRETR:
    a(f's_cmp_lg_u32 s{sL}, 0\ns_cbranch_scc1 L_p4_w')
    if WDE and not ALLW and not WGP2:
        a(f's_cmp_eq_u32 s{sW}, 7\ns_cbranch_scc1 L_p4_w7')
        w_dma(SRD_WD, vWdo, 1, 2, 1024, NTW)
        a('s_waitcnt vmcnt(2)\ns_branch L_p4_tr\nL_p4_w7:')
    if ALLW or WGP2:
        a(f's_cmp_ge_u32 s{sS}, 14\ns_cbranch_scc1 L_p4_idle0')
        ln_prev(RWG, True)
        a('s_waitcnt vmcnt(0)')
    else:
        a('s_waitcnt vmcnt(0)\nL_p4_tr:')
        a(f's_cmp_ge_u32 s{sS}, 14\ns_cbranch_scc1 L_p4_idle')
        w_tr(RWG,0,2)
        a('s_waitcnt lgkmcnt(0)')
        ln_prev(RWG, True)
    a('s_branch L_p4_chk')
else:
    a('s_branch L_p4_w\nL_p4_idle:\ns_branch L_p4_idle9')
a('L_p4_w:')
a(f's_cmp_ge_u32 s{sS}, 14\ns_cbranch_scc1 L_p4_idle0')
ln_prev(RWG, False)
a('s_waitcnt vmcnt(0)')
if not PRETR: a('L_p4_chk:')
d_check(sOD1,'d1_ok')
if (not WDE and not ALLW and not WGP2) or (WGP2 and not WDO):
    a(f's_cmp_lg_u32 s{sL}, 0\ns_cbranch_scc1 L_p4_nowd\ns_cmp_eq_u32 s{sW}, 7\ns_cbranch_scc1 L_p4_nowd')
    w_dma(SRD_WD, vWdo, 2 if WGP2 else 1, 2, 1024, NTW)
    a('L_p4_nowd:')
def gu_pub():
    pub_store(f'buffer_store_dword {v(T+12)}, {v(vGUwr)}, {srd(SRD_WS)}, s{sOGU} offen')
    if ACK:
        l=lbl('gua')
        a(f's_cmp_eq_u32 s{sL}, 0\ns_cbranch_scc1 {l}\ns_waitcnt vmcnt(0)\n{l}:')
ln_post(RWG, gu_pub, 'p4', vCSG)
if ACK: a('s_barrier')
a('s_branch L_p4_done')
a('L_p4_idle0:\ns_waitcnt vmcnt(0)\n'+('L_p4_idle9:' if PRETR else 'L_p4_idle:'))
d_check(sOD1)
if (not WDE and not ALLW and not WGP2) or (WGP2 and not WDO):
    a(f's_cmp_lg_u32 s{sL}, 0\ns_cbranch_scc1 L_p4_nowd2\ns_cmp_eq_u32 s{sW}, 7\ns_cbranch_scc1 L_p4_nowd2')
    w_dma(SRD_WD, vWdo, 2 if WGP2 else 1, 2, 1024, NTW)
    a('L_p4_nowd2:')
ident_mfma()
x_update(d_sum())
a(f'ds_write_b16 {v(vXw)}, {v(XB)}')
a('L_p4_done:')
stamp('p4_done')
a(f's_cmp_eq_u32 s{sW}, 7\ns_cbranch_scc1 L_p5_bar')
def gu_issue():
    a(f'buffer_load_dword {v(T)}, {v(vGUrd)}, {srd(SRD_WS)}, s{sOGU} offen sc1')
    a(f'buffer_load_dword {v(T+1)}, {v(vGUrd)}, {srd(SRD_WS)}, s{sOGU} offen offset:512 sc1')
a('L_gu_retry:')
gu_issue()
a('L_gu_wait:\ns_waitcnt vmcnt(0)')
check_valid([T,T+1],'L_gu_ok',T+2)
spin_check('L_gu_retry')
a('L_gu_ok:')
if not ALLW:
    a(f's_cmp_lg_u32 s{sL}, 0\ns_cbranch_scc1 L_gu_nowd')
    w_tr(RWD,2 if WGP2 else 1,1)
    a('L_gu_nowd:')
stamp('gu_ok')
a(f'''
v_lshlrev_b32 {v(T)}, {v(vSh)}, {v(T)}
v_lshlrev_b32 {v(T+1)}, {v(vSh)}, {v(T+1)}
v_and_b32 {v(T)}, 0xffff0000, {v(T)}
v_and_b32 {v(T+1)}, 0xffff0000, {v(T+1)}
v_mul_f32 {v(T)}, s{sNL2E}, {v(T)}
v_exp_f32 {v(T)}, {v(T)}
v_add_f32 {v(T)}, 1.0, {v(T)}
v_rcp_f32 {v(T)}, {v(T)}
v_mul_f32 {v(T)}, {v(T)}, {v(T+1)}
v_cvt_pk_bf16_f32 {v(T)}, {v(T)}, {v(T)}
ds_write_b16 {v(vHw)}, {v(T)}
s_waitcnt lgkmcnt(0)
ds_read_b128 {vr(T+4,4)}, {v(vHr)}
s_waitcnt lgkmcnt(0)
v_mfma_f32_16x16x32_bf16 {vr(T+8,4)}, {vr(T+4,4)}, {vr(RWD,4)}, 0
v_mfma_f32_16x16x32_bf16 {vr(T+12,4)}, {vr(T+4,4)}, {vr(RWD+4,4)}, 0
s_mov_b64 exec, 0xffff
ds_write_b32 {v(vP5w)}, {v(T+8)}
ds_write_b32 {v(vP5w)}, {v(T+12)} offset:{16*48}
s_mov_b64 exec, -1
L_p5_bar:
s_waitcnt lgkmcnt(0)
s_barrier
''')
stamp('p5_bar')
final8(vP5r, 7, sOD2, 'L_p5_done')
stamp('p5_done')
a(f's_cmp_lg_u32 s{sL}, 0\ns_cbranch_scc1 L_final')
a(f'''
s_mov_b32 s{sL}, 1
s_mov_b32 s{sOGU}, 0x400
s_mov_b32 s{sOML}, 0x200
s_mov_b32 s{sOD1}, 0x4000
s_mov_b32 s{sOD2}, 0xC000
s_mov_b32 s{sOO}, 0x4000
s_mov_b32 s{sOO2}, {0x4000+7168}
s_waitcnt lgkmcnt(0)
s_branch L_layer
''')
a('L_final:')
a(f'''
s_cmp_lg_u32 s{sC}, 0
s_cbranch_scc1 L_fin_stamps
s_lshr_b32 s{sT0}, s{sS}, 1
s_cmp_lg_u32 s{sW}, s{sT0}
s_cbranch_scc1 L_fin_stamps
''')
d_issue(sOD2)
a('s_waitcnt vmcnt(0)')
d_check(sOD2)
ident_mfma()
x_update(d_sum())
a(f'''
s_and_b32 s{sT0}, s{sS}, 1
s_cmp_eq_u32 s{sT0}, 0
s_cselect_b32 exec_lo, -1, 0
s_cselect_b32 exec_hi, 0, -1
s_lshl_b32 s{sT0}, s{sB}, 10
v_lshl_add_u32 {v(T)}, v0, 1, s{sT0}
buffer_store_short {v(XB)}, {v(T)}, {srd(SRD_OUT)}, 0 offen
s_mov_b64 exec, -1
s_cmp_lg_u32 s{sS}, 0
s_cbranch_scc1 L_fin_stamps
s_lshl_b32 s{sT0}, s{sB}, 7
s_add_u32 s{sT0}, s{sT0}, {EB}
v_mov_b32 {v(T+2)}, s{sT0}
v_mov_b32 {v(T+1)}, s{sTAG}
s_mov_b64 exec, 1
buffer_store_dword {v(T+1)}, {v(T+2)}, {srd(SRD_WS)}, 0 offen sc1
s_mov_b64 exec, -1
L_fin_stamps:
''')
if int(opt.get('dbgfast',0)):
    a(f'''s_cmp_lg_u32 s{sW}, 0
s_cbranch_scc1 L_nodbg
s_lshl_b32 s{sT0}, s2, 2
s_add_u32 s{sT0}, s{sT0}, 0xE2000
v_mov_b32 {v(T+2)}, s{sT0}
s_lshl_b32 s{sT1}, s{sXCC}, 4
s_or_b32 s{sT1}, s{sT1}, s{sFAST}
v_mov_b32 {v(T+1)}, s{sT1}
s_mov_b64 exec, 1
buffer_store_dword {v(T+1)}, {v(T+2)}, {srd(SRD_WS)}, 0 offen
s_mov_b64 exec, -1
L_nodbg:''')
if STAMPS:
    stamp('end')
    a(f'''
s_lshl_b32 s{sT0}, s2, 3
s_add_u32 s{sT0}, s{sT0}, s{sW}
s_lshl_b32 s{sT0}, s{sT0}, 8
s_add_u32 s{sT0}, s{sT0}, {STAMP_OFF}
v_lshl_add_u32 {v(T)}, {v(vL)}, 2, s{sT0}
buffer_store_dword {v(vSTAMP)}, {v(T)}, {srd(SRD_WS)}, 0 offen
''')
a('s_branch L_end')
a('L_bail:')
a('L_end:\ns_endpgm')
lines=a.text().split('\n')
lines,added=haz.fix(lines)
sys.stderr.write(f'auto nops: {added}; stamps: {stamp_names}\n')
open(sys.argv[1],'w').write(wrap('\n'.join(lines),256,512,LDS_BYTES,nvgpr=256,nsgpr=102))
if STAMPS: open(sys.argv[1]+'.stamps','w').write(','.join(stamp_names))
```

```python
import sys
from asmlib import *
import haz
opt=dict(a.split('=') for a in sys.argv[2:])
STAMPS=int(opt.get('stamps',0)); CPF=int(opt.get('cpf',1))
NT=opt.get('nt','nt'); NTW=opt.get('ntw','nt')
ROLE=opt.get('role','xcd')
FORCESLOW=int(opt.get('slow',0))
SPIN=int(opt.get('spin',1<<17))
ACK=int(opt.get('ack',1))
a=Asm()
GRPSZ=0xC000; QB=0x0400; GUB=0x0800; MLB=0x1000; OB=0x2000
D1B=0xC0000
Q0T=0xD0000; FB=0xE0000; EB=0xE1000; EPC=0x9E3779B9
STAMP_OFF=0x10000000
LV=0; LW=65536; SB=131072
LX=SB; LZ=SB+1024; LPARTC=SB+1280; LPART=SB+2816+0; LPL=SB+4864; LML=SB+6912; LP3=SB+7168; LHB=SB+8704; LP5=SB+9216; LFAST=SB+10752; LQ=SB+11264; LDUM=SB+12288; LWD=SB+12288
LDS_BYTES=SB+12288+16384
WDOK=int(opt.get('wdok',0)); VHELP=int(opt.get('vhelp',0)); MO=int(opt.get('mo',0)); H1W=int(opt.get('h1w',0)); H4A=int(opt.get('h4a',1)); H2A=int(opt.get('h2a',1)); WOS=int(opt.get('wos',0)); PFX=opt.get('pfx',''); KMID=int(opt.get('kmid',0)); PT=int(opt.get('pt',0)); P2O=int(opt.get('p2o',0)); PRETR=int(opt.get('pretr',0)); WGS=int(opt.get('wgs',0)); KF=int(opt.get('kf',0)); NVE=int(opt.get('nve',0)); KDMA=int(opt.get('kdma',0)); KE=int(opt.get('ke',0)) or KF; PF3=opt.get('pf3','q'); WGP2=int(opt.get('wgp2',0)); WDO=int(opt.get('wdo',0)); ALLW=int(opt.get('allw',0)); VBAR=int(opt.get('vbar',1)); WGE=int(opt.get('wge',1)); WDE=int(opt.get('wde',1)); ILV=int(opt.get('ilv',0)); PF=int(opt.get('pf',1)); NVA=int(opt.get('nva',4)); NV1=int(opt.get('nv1',0)); PFW=int(opt.get('pfw',0)); QBAR=int(opt.get('qbar',1)); WOLATE=int(opt.get('wolate',1)); WGLATE=int(opt.get('wglate',1)); KBAR=int(opt.get('kbar',1)); NTP=opt.get('ntp','')
sW,sC,sR,sB,sS=3,4,5,6,7
SRD_K,SRD_V,SRD_WQ,SRD_WO,SRD_WGU,SRD_WD,SRD_WS,SRD_OUT,SRD_X=32,36,40,44,48,52,56,64,68
sTAG,sXCC,sOO2,sOD2P=60,61,62,63
sL,sFAST,sOGU,sOML,sOD1,sOD2,sOO,sSPIN,s4096,sCS=72,73,76,77,78,79,80,81,82,83
sT0,sT1=84,85
mI4,mEVEN,mI0=86,88,90
sT2,sT3=92,93
mLO=100; sNL2E=94; sGRP=95; sT4,sT5=96,97; sSTP=98
def srd(n): return f's[{n}:{n+3}]'
vTID,vL,vI,vG=0,1,2,3
(vXw,vXr,vPw,vPr,vDrd,vDwr,vQrd,vQwr,vGUwr,vGUrd,vOwr,vOrd,vMLwr,vMLrd,vPLw,vPLr,vMLw,vMLr,vP3w,vP3r,vHw,vHr,vP5w,vP5r,vSh,vX,vSTAMP,vWN0,vWN1,vVr)=range(4,34)
vKo,vVoE,vVoO,vWqo,vWoo,vWguo,vWdo,vOst0,vOst1,vQl=range(34,44)
T=44
XB=T+36
vCSQ,vCSG=37,34
RK,RV,RWQ,RWO,RWG,RWD,RID=128,160,192,208,224,240,248
def v(n): return f'v{n}'
def vr(n,k): return f'v[{n}:{n+k-1}]'
nstamp=[0]; stamp_names=[]
STSEL=opt.get('stsel','')
def stamp(name):
    if not STAMPS: return
    if STAMPS==2 and name!='end' and name not in STSEL.split(','): return
    i=nstamp[0]; nstamp[0]+=1; stamp_names.append(name)
    a(f's_memtime s[{sSTP}:{sSTP+1}]\ns_mul_i32 m0, s{sL}, 30\ns_add_u32 m0, m0, {i+2}\ns_waitcnt lgkmcnt(0)\nv_writelane_b32 {v(vSTAMP)}, s{sSTP}, m0')
uid=[0]
def lbl(p):
    uid[0]+=1; return f'L_{p}_{uid[0]}'
def spin_check(retry):
    a(f's_add_u32 s{sSPIN}, s{sSPIN}, 1\ns_cmp_lt_u32 s{sSPIN}, {SPIN}\ns_cbranch_scc1 {retry}\ns_branch L_bail')
def check_valid(regs_, ok, tmp):
    rs=list(regs_)
    if len(rs)==2:
        a(f'v_max_u32 {v(tmp)}, {v(rs[0])}, {v(rs[1])}')
    else:
        a(f'v_max3_u32 {v(tmp)}, {v(rs[0])}, {v(rs[1])}, {v(rs[2])}')
        k=3; alt=[tmp,tmp+1]; used2=False
        if len(rs)>=8:
            a(f'v_max3_u32 {v(tmp+1)}, {v(rs[3])}, {v(rs[4])}, {v(rs[5])}'); k=6; used2=True
        tog=0
        while k<len(rs):
            d=alt[tog%2] if used2 else tmp
            if k+1<len(rs):
                a(f'v_max3_u32 {v(d)}, {v(d)}, {v(rs[k])}, {v(rs[k+1])}'); k+=2
            else:
                a(f'v_max_u32 {v(d)}, {v(d)}, {v(rs[k])}'); k+=1
            tog+=1
        if used2: a(f'v_max_u32 {v(tmp)}, {v(tmp)}, {v(tmp+1)}')
    a(f'v_cmp_eq_u32 vcc, -1, {v(tmp)}')
    a(f's_cbranch_vccz {ok}')
def exec_all(): a('s_mov_b64 exec, -1')
def exec_mask(m): a(f's_mov_b64 exec, s[{m}:{m+1}]')
def pub_store(instr):
    l1=lbl('pubs'); l2=lbl('pubd')
    a(f's_cmp_eq_u32 s{sFAST}, 0\ns_cbranch_scc1 {l1}')
    a(instr); a(f's_branch {l2}'); a(f'{l1}:'); a(instr+' sc1'); a(f'{l2}:')
def ack():
    if ACK: a('s_waitcnt vmcnt(0)')

a(f'''
s_cmp_ge_u32 s2, 256
s_cbranch_scc1 L_end
s_load_dwordx16 s[8:23], s[0:1], 0
s_load_dwordx8 s[24:31], s[0:1], 64
''')
if CPF:
    a(f'''s_getpc_b64 s[74:75]
L_pc:
s_sub_u32 s74, s74, L_pc-{NAME}
s_subb_u32 s75, s75, 0
s_lshr_b32 s76, s2, 3
s_and_b32 s76, s76, {CPF if CPF>1 else 1}
s_lshl_b32 s76, s76, 13
v_lshlrev_b32 v126, 7, v0
v_add_u32 v126, s76, v126
v_min_u32 v126, L_end-{NAME}, v126
v_cmp_gt_u32 vcc, 64, v0
s_and_saveexec_b64 s[76:77], vcc
s_cbranch_execz L_cpf_done
global_load_dword v127, v126, s[74:75]
L_cpf_done:
s_mov_b64 exec, s[76:77]''')
if STAMPS:
    a(f's_memrealtime s[{sT4}:{sT5}]\ns_memtime s[{sSTP}:{sSTP+1}]')
a(f'''
v_lshrrev_b32 {v(T)}, 6, v0
v_and_b32 {v(vL)}, 63, v0
v_and_b32 {v(vI)}, 15, v0
v_readfirstlane_b32 s{sW}, {v(T)}
v_lshrrev_b32 {v(vG)}, 4, {v(vL)}
''')
if ROLE=='xcd':
    a(f's_and_b32 s{sC}, s2, 7\ns_lshr_b32 s{sR}, s2, 3')
else:
    a(f's_lshr_b32 s{sC}, s2, 3\ns_and_b32 s{sC}, s{sC}, 7\ns_and_b32 s{sR}, s2, 7\ns_lshr_b32 s{sT0}, s2, 6\ns_lshl_b32 s{sT0}, s{sT0}, 3\ns_or_b32 s{sR}, s{sR}, s{sT0}')
a(f'''
s_lshr_b32 s{sB}, s{sR}, 4
s_and_b32 s{sS}, s{sR}, 15
s_lshl_b32 s{sGRP}, s{sB}, 3
s_add_u32 s{sGRP}, s{sGRP}, s{sC}       ; grp = b*8+c
s_mov_b32 s{s4096}, 4096
s_mov_b32 s{sL}, 0
; weight staging voffsets: row = l/4, chunk = (l%4) ^ (2*(l/32))
v_lshrrev_b32 {v(T)}, 2, {v(vL)}
v_and_b32 {v(T+1)}, 3, {v(vL)}
v_lshrrev_b32 {v(T+2)}, 5, {v(vL)}
v_lshlrev_b32 {v(T+2)}, 1, {v(T+2)}
v_xor_b32 {v(T+1)}, {v(T+1)}, {v(T+2)}
v_lshlrev_b32 {v(T+1)}, 4, {v(T+1)}          ; chunk*16
s_lshl_b32 s{sT0}, s{sW}, 6
v_add_u32 {v(T+2)}, s{sT0}, {v(T)}           ; row = 64w + l/4
v_lshl_add_u32 {v(vWqo)}, {v(T+2)}, 13, {v(T+1)}
v_lshl_add_u32 {v(vWoo)}, {v(T+2)}, 10, {v(T+1)}
s_mov_b32 s{sT1}, 3584
v_mul_lo_u32 {v(T+3)}, {v(T+2)}, s{sT1}
v_add_u32 {v(vWguo)}, {v(T+3)}, {v(T+1)}
s_lshl_b32 s{sT0}, s{sW}, 5
v_add_u32 {v(T+2)}, s{sT0}, {v(T)}           ; row = 32w + l/4
v_lshl_add_u32 {v(vWdo)}, {v(T+2)}, 10, {v(T+1)}
v_lshlrev_b32 {v(T+4)}, 1, v0
''')
if STAMPS:
    a(f's_waitcnt lgkmcnt(0)\nv_mov_b32 {v(vSTAMP)}, 0\nv_writelane_b32 {v(vSTAMP)}, s{sT4}, 0\nv_writelane_b32 {v(vSTAMP)}, s{sSTP}, 1')
a('s_waitcnt lgkmcnt(0)')
a(f'''
s_lshl_b32 s{sT0}, s{sB}, 10
s_add_u32 s{SRD_X}, s8, s{sT0}
s_addc_u32 s{SRD_X+1}, s9, 0
s_mov_b32 s{SRD_X+2}, 1024
s_mov_b32 s{SRD_X+3}, 0x20000
s_lshl_b32 s{sT0}, s{sC}, 10
s_lshl_b32 s{sT1}, s{sS}, 6
s_add_u32 s{sT0}, s{sT0}, s{sT1}
s_add_u32 s{SRD_WQ}, s14, s{sT0}
s_addc_u32 s{SRD_WQ+1}, s15, 0
s_sub_u32 s{SRD_WQ+2}, 4194304, s{sT0}
s_mov_b32 s{SRD_WQ+3}, 0x20000
buffer_load_ushort {v(vX)}, {v(T+4)}, {srd(SRD_X)}, 0 offen
''')
def w_dma(srd_, voff, slot, nins, rowstride, nt, n0=0):
    if slot==2: a(f's_lshl_b32 s{sT0}, s{sW}, 11\ns_add_u32 m0, s{sT0}, {LWD}')
    elif slot==3: a(f's_lshl_b32 s{sT0}, s{sW}, 13\ns_add_u32 m0, s{sT0}, {LV}')
    else: a(f's_lshl_b32 s{sT0}, s{sW}, 13\ns_add_u32 m0, s{sT0}, {LW+slot*4096}')
    for n in range(n0,nins):
        if n==0:
            a('s_nop 0'); so='0'
        else:
            a(f's_mov_b32 s{sT1}, {n*(16*rowstride-1024)}'); so=f's{sT1}'
        a(f'buffer_load_dwordx4 {v(voff)}, {srd(srd_)}, {so} offen offset:{n*1024} {nt} lds')
SRD_PF=SRD_X
def pf_setup(ptr_lo, size):
    a(f's_mov_b32 s{SRD_PF}, s{ptr_lo}\ns_mov_b32 s{SRD_PF+1}, s{ptr_lo+1}\ns_mov_b32 s{SRD_PF+2}, {size}\ns_mov_b32 s{SRD_PF+3}, 0x20000')
def pf_m0():
    a(f's_lshl_b32 s{sT0}, s{sW}, 10\ns_add_u32 m0, s{sT0}, {LDUM}')
def pf_load(voff, soff):
    a(f'buffer_load_dwordx4 {v(voff)}, {srd(SRD_PF)}, {soff} offen {NTP} lds')
def pf_wq():
    if 'q' not in PFX: return 0
    pf_setup(14, 4194304); pf_m0()
    a(f's_lshl_b32 s{sT0}, s{sR}, 4\ns_lshl_b32 s{sT1}, s{sW}, 1\ns_add_u32 s{sT0}, s{sT0}, s{sT1}\ns_lshl_b32 s{sT0}, s{sT0}, 13\ns_lshl_b32 s{sT1}, s{sC}, 10\ns_add_u32 s{sT0}, s{sT0}, s{sT1}')
    a(f'v_lshlrev_b32 {v(T+10)}, 4, {v(vL)}')
    pf_load(T+10, f's{sT0}')
    a(f's_add_u32 s{sT0}, s{sT0}, 8192'); pf_load(T+10, f's{sT0}')
    return 2
def pf_wo():
    if 'o' not in PFX: return 0
    pf_setup(16, 4194304); pf_m0()
    a(f's_lshl_b32 s{sT0}, s{sC}, 19\ns_lshl_b32 s{sT1}, s{sR}, 14\ns_add_u32 s{sT0}, s{sT0}, s{sT1}\ns_lshl_b32 s{sT1}, s{sW}, 11\ns_add_u32 s{sT0}, s{sT0}, s{sT1}')
    a(f'v_lshlrev_b32 {v(T+62)}, 4, {v(vL)}')
    pf_load(T+62, f's{sT0}')
    a(f's_add_u32 s{sT0}, s{sT0}, 1024'); pf_load(T+62, f's{sT0}')
    return 2
def pf_wgu():
    if 'g' not in PFX: return 0
    pf_m0()
    a(f's_lshl_b32 s{sT0}, s{sR}, 4\ns_lshl_b32 s{sT1}, s{sW}, 1\ns_add_u32 s{sT0}, s{sT0}, s{sT1}\ns_mul_i32 s{sT0}, s{sT0}, 3584\ns_mul_i32 s{sT1}, s{sC}, 448\ns_add_u32 s{sT2}, s{sT0}, s{sT1}')
    a(f'v_lshrrev_b32 {v(T+62)}, 5, {v(vL)}\nv_mul_u32_u24 {v(T+62)}, 3584, {v(T+62)}\nv_and_b32 {v(T+63)}, 31, {v(vL)}\nv_lshl_add_u32 {v(T+62)}, {v(T+63)}, 4, {v(T+62)}')
    pf_setup(20, 1835008); pf_load(T+62, f's{sT2}')
    pf_setup(22, 1835008); pf_load(T+62, f's{sT2}')
    return 2
def pf_wd():
    if 'd' not in PFX: return 0
    pf_setup(24, 1835008); pf_m0()
    a(f's_mul_i32 s{sT0}, s{sC}, 229376\ns_mul_i32 s{sT1}, s{sR}, 7168\ns_add_u32 s{sT0}, s{sT0}, s{sT1}\ns_lshl_b32 s{sT1}, s{sW}, 10\ns_add_u32 s{sT0}, s{sT0}, s{sT1}')
    a(f'v_lshlrev_b32 {v(T+62)}, 4, {v(vL)}')
    pf_load(T+62, f's{sT0}')
    return 1
def pf3(which, wave, dst):
    if which not in PF3: return
    l=lbl('pf3')
    a(f's_cmp_lg_u32 s{sW}, {wave}\ns_cbranch_scc1 {l}')
    t0,t1=T+60,T+61
    if which=='q':
        pf_setup(14, 4194304)
        a(f'v_and_b32 {v(t0)}, 15, {v(vL)}\ns_lshl_b32 s{sT0}, s{sR}, 4\nv_add_u32 {v(t0)}, s{sT0}, {v(t0)}\nv_lshlrev_b32 {v(t0)}, 13, {v(t0)}\ns_lshl_b32 s{sT0}, s{sC}, 10\ns_add_u32 s{sT0}, s{sT0}, 384')
    elif which=='o':
        pf_setup(16, 4194304)
        a(f'v_and_b32 {v(t0)}, 15, {v(vL)}\ns_lshl_b32 s{sT0}, s{sR}, 4\nv_add_u32 {v(t0)}, s{sT0}, {v(t0)}\nv_lshlrev_b32 {v(t0)}, 10, {v(t0)}\ns_lshl_b32 s{sT0}, s{sC}, 19\ns_add_u32 s{sT0}, s{sT0}, 384')
    elif which=='d':
        pf_setup(24, 1835008)
        a(f'v_and_b32 {v(t0)}, 15, {v(vL)}\nv_min_u32 {v(t0)}, 6, {v(t0)}\ns_mul_i32 s{sT0}, s{sR}, 7\nv_add_u32 {v(t0)}, s{sT0}, {v(t0)}\nv_lshlrev_b32 {v(t0)}, 10, {v(t0)}\ns_mul_i32 s{sT0}, s{sC}, 229376\ns_add_u32 s{sT0}, s{sT0}, 384')
    if which in 'qod':
        a(f'v_lshrrev_b32 {v(t1)}, 4, {v(vL)}\nv_and_b32 {v(t1)}, 1, {v(t1)}\nv_lshl_add_u32 {v(t0)}, {v(t1)}, 6, {v(t0)}')
        a(f's_mov_b32 exec_hi, 0\nbuffer_load_dword {v(dst)}, {v(t0)}, {srd(SRD_PF)}, s{sT0} offen\ns_mov_b32 exec_hi, -1')
    else:
        a(f'''v_and_b32 {v(t0)}, 15, {v(vL)}
s_lshl_b32 s{sT0}, s{sR}, 4
v_add_u32 {v(t0)}, s{sT0}, {v(t0)}
v_mul_u32_u24 {v(t0)}, 28, {v(t0)}
s_mul_i32 s{sT0}, s{sC}, 7
s_lshr_b32 s{sT0}, s{sT0}, 1
v_add_u32 {v(t0)}, s{sT0}, {v(t0)}
v_sub_u32 {v(t1)}, 3, {v(t0)}
v_and_b32 {v(t1)}, 7, {v(t1)}
v_min_u32 {v(t1)}, 4, {v(t1)}
v_add_u32 {v(t0)}, {v(t0)}, {v(t1)}
v_lshlrev_b32 {v(t0)}, 7, {v(t0)}
v_lshrrev_b32 {v(t1)}, 4, {v(vL)}
v_and_b32 {v(t1)}, 1, {v(t1)}
v_lshl_add_u32 {v(t0)}, {v(t1)}, 6, {v(t0)}
s_mov_b32 exec_hi, 0''')
        pf_setup(20, 1835008); a(f'buffer_load_dword {v(dst)}, {v(t0)}, {srd(SRD_PF)}, 0 offen')
        pf_setup(22, 1835008); a(f'buffer_load_dword {v(dst+1)}, {v(t0)}, {srd(SRD_PF)}, 0 offen')
        a('s_mov_b32 exec_hi, -1')
    a(f'{l}:')
def w_tr(dst, slot, nkk):
    if slot==3:
        a(f'v_add_u32 {v(T+60)}, {(LV-LW)&0xffffffff}, {v(vWN0)}\nv_xor_b32 {v(T+61)}, 32, {v(T+60)}')
        for kk in range(nkk):
            for nt_ in range(2):
                for hh in range(2):
                    r=dst+(kk*2+nt_)*4+hh*2
                    a(f'ds_read_b64_tr_b16 {vr(r,2)}, {v(T+60 if nt_==0 else T+61)} offset:{kk*2048+hh*256}')
        return
    if slot==2:
        a(f's_mul_i32 s{sT0}, s{sW}, {(2048-8192)&0xffffffff}\ns_add_u32 s{sT0}, s{sT0}, {(LWD-LW)&0xffffffff}\nv_add_u32 {v(T+60)}, s{sT0}, {v(vWN0)}\nv_xor_b32 {v(T+61)}, 32, {v(T+60)}')
        for nt_ in range(2):
            for hh in range(2):
                r=dst+nt_*4+hh*2
                a(f'ds_read_b64_tr_b16 {vr(r,2)}, {v(T+60 if nt_==0 else T+61)} offset:{hh*256}')
        return
    for kk in range(nkk):
        for nt_ in range(2):
            for hh in range(2):
                r=dst+(kk*2+nt_)*4+hh*2
                a(f'ds_read_b64_tr_b16 {vr(r,2)}, {v(vWN0 if nt_==0 else vWN1)} offset:{slot*4096+kk*2048+hh*256}')
if KE:
    a(f'''s_mov_b32 s{SRD_WS}, s30
s_mov_b32 s{SRD_WS+1}, s31
s_mov_b32 s{SRD_WS+2}, 0x20000000
s_mov_b32 s{SRD_WS+3}, 0x20000
s_cmp_eq_u32 s{sW}, 0
s_cbranch_scc1 L_proto
L_proto_ret:''')
pf3('q',1,T+41)
NPQ=pf_wq()
if not PFW and not ILV: w_dma(SRD_WQ, vWqo, 3 if KF else 0, 4, 8192, NTW)
a(f'''
s_lshl_b32 s{sT0}, s{sGRP}, 23
s_lshl_b32 s{sT1}, s{sS}, 16
s_add_u32 s{sT0}, s{sT0}, s{sT1}
s_add_u32 s{sT0}, s{sT0}, 7340032
s_add_u32 s{SRD_V}, s12, s{sT0}
s_addc_u32 s{SRD_V+1}, s13, 0
s_mov_b32 s{SRD_V+2}, 65536
s_mov_b32 s{SRD_V+3}, 0x20000
s_add_u32 s{SRD_K}, s10, s{sT0}
s_addc_u32 s{SRD_K+1}, s11, 0
s_mov_b32 s{SRD_K+2}, 65536
s_mov_b32 s{SRD_K+3}, 0x20000
s_mov_b32 s{SRD_WS}, s30
s_mov_b32 s{SRD_WS+1}, s31
s_mov_b32 s{SRD_WS+2}, 0x20000000
s_mov_b32 s{SRD_WS+3}, 0x20000
; K voffset = w*8192 + i*256 + g*16
s_lshl_b32 s{sT0}, s{sW}, 13
v_lshlrev_b32 {v(T)}, 8, {v(vI)}
v_lshl_add_u32 {v(T)}, {v(vG)}, 4, {v(T)}
v_add_u32 {v(vKo)}, s{sT0}, {v(T)}
v_lshlrev_b32 {v(T)}, 1, {v(vG)}
v_xor_b32 {v(T)}, {v(T)}, {v(vI)}
v_lshlrev_b32 {v(T)}, 4, {v(T)}
v_lshl_add_u32 {v(vVoE)}, {v(vG)}, 8, {v(T)}
v_xor_b32 {v(vVoO)}, 128, {v(vVoE)}
''')
def k_tile(t):
    for kk in range(4):
        r=RK+(t*4+kk)*4
        so='0' if t==0 else f's{s4096}'
        a(f'buffer_load_dwordx4 {vr(r,4)}, {v(vKo)}, {srd(SRD_K)}, {so} offen offset:{kk*64} {NT}')
def k_first():
    l1=lbl('kf'); l2=lbl('kfd')
    a(f's_add_u32 s{sT0}, s{sW}, s{sS}\ns_bitcmp1_b32 s{sT0}, 0\ns_cbranch_scc1 {l1}')
    k_tile(0); a(f's_branch {l2}\n{l1}:'); k_tile(1); a(f'{l2}:')
def k_second():
    l1=lbl('ks'); l2=lbl('ksd')
    a(f's_add_u32 s{sT0}, s{sW}, s{sS}\ns_bitcmp1_b32 s{sT0}, 0\ns_cbranch_scc1 {l1}')
    k_tile(1); a(f's_branch {l2}\n{l1}:'); k_tile(0); a(f'{l2}:')
def k_dma():
    a(f'''v_xor_b32 {v(T+62)}, {v(vI)}, {v(vG)}
v_lshlrev_b32 {v(T+62)}, 4, {v(T+62)}
v_lshl_add_u32 {v(T+62)}, {v(vG)}, 8, {v(T+62)}
s_add_u32 s{sT2}, s{sW}, s{sS}
s_lshl_b32 s{sT3}, s{sW}, 13''')
    for n in range(8):
        a(f'''s_add_u32 s{sT0}, s{sT2}, {n}
s_and_b32 s{sT0}, s{sT0}, 7
s_and_b32 s{sT1}, s{sT0}, 3
s_lshl_b32 s{sT1}, s{sT1}, 6
v_xor_b32 {v(T+63)}, s{sT1}, {v(T+62)}
s_lshl_b32 s{sT0}, s{sT0}, 10
s_add_u32 s{sT0}, s{sT0}, s{sT3}
s_add_u32 m0, s{sT0}, {LW}
s_nop 0
buffer_load_dwordx4 {v(T+63)}, {srd(SRD_K)}, s{sT0} offen {NT} lds''')
def k_frags():
    a(f'''v_xor_b32 {v(T+62)}, {v(vI)}, {v(vG)}
v_lshlrev_b32 {v(T+62)}, 4, {v(T+62)}
v_lshl_add_u32 {v(T+62)}, {v(vI)}, 8, {v(T+62)}
s_lshl_b32 s{sT0}, s{sW}, 13
s_add_u32 s{sT0}, s{sT0}, {LW}
v_add_u32 {v(T+62)}, s{sT0}, {v(T+62)}''')
    for kk in range(4):
        if kk: a(f'v_xor_b32 {v(T+63)}, {64*kk}, {v(T+62)}')
        r=T+62 if kk==0 else T+63
        for t in range(2): a(f'ds_read_b128 {vr(RK+(t*4+kk)*4,4)}, {v(r)} offset:{t*4096}')
def e_load(dst):
    a(f's_lshl_b32 s{sT0}, s{sB}, 7\ns_add_u32 s{sT0}, s{sT0}, {EB}\nv_mov_b32 {v(dst)}, s{sT0}\nbuffer_load_dword {v(dst)}, {v(dst)}, {srd(SRD_WS)}, 0 offen sc1')
vE=T+30
def v_dma(n0,n1,owner=None):
    if owner is not None:
        a(f's_add_u32 s{sT2}, s{sS}, {owner}\ns_and_b32 s{sT2}, s{sT2}, 3\ns_lshl_b32 s{sT2}, s{sT2}, 1\ns_mov_b32 s{sT3}, {owner<<13}')
    else:
        a(f's_add_u32 s{sT2}, s{sW}, s{sS}\ns_and_b32 s{sT2}, s{sT2}, 3\ns_lshl_b32 s{sT2}, s{sT2}, 1\ns_lshl_b32 s{sT3}, s{sW}, 13')
    for n in range(n0,n1):
        a(f's_add_u32 s{sT0}, s{sT2}, {n}\ns_and_b32 s{sT0}, s{sT0}, 7\ns_lshl_b32 s{sT0}, s{sT0}, 10\ns_add_u32 s{sT0}, s{sT0}, s{sT3}')
        a(f's_add_u32 m0, s{sT0}, {LV}\ns_nop 0')
        a(f'buffer_load_dwordx4 {v(vVoE if n%2==0 else vVoO)}, {srd(SRD_V)}, s{sT0} offen {NT} lds')
def v_pos(hi, n0, n1):
    if n1<=n0: return
    a(f's_add_u32 s{sT2}, s{sW}, s{sS}\ns_lshl_b32 s{sT2}, s{sT2}, 1\ns_lshl_b32 s{sT3}, s{sW}, 13')
    for n in range(n0,n1):
        a(f's_add_u32 s{sT0}, s{sT2}, {n}\ns_and_b32 s{sT0}, s{sT0}, 3\ns_add_u32 s{sT0}, s{sT0}, {4 if hi else 0}\ns_lshl_b32 s{sT0}, s{sT0}, 10\ns_add_u32 s{sT0}, s{sT0}, s{sT3}')
        a(f's_add_u32 m0, s{sT0}, {LV}\ns_nop 0')
        a(f'buffer_load_dwordx4 {v(vVoE if n%2==0 else vVoO)}, {srd(SRD_V)}, s{sT0} offen {NT} lds')
def v_rest():
    if KF:
        v_pos(True,NVE,4); v_pos(False,0,4)
    else: v_dma(NVA,8)
def wq_one(n):
    a(f's_lshl_b32 s{sT0}, s{sW}, 13\ns_add_u32 m0, s{sT0}, {LW}\ns_mov_b32 s{sT1}, {n*(16*8192-1024)}')
    a(f'buffer_load_dwordx4 {v(vWqo)}, {srd(SRD_WQ)}, s{sT1} offen offset:{n*1024} {NTW} lds')
def ilv_issue():
    nv=0
    for n in range(4):
        wq_one(n)
        k=min(ILV, NVA-nv) if n<3 else NVA-nv
        v_dma(nv,nv+k); nv+=k
    return k
if ILV:
    a(f's_cmp_eq_u32 s{sW}, 0\ns_cbranch_scc1 L_proto')
    a(f's_cmp_lg_u32 s{sW}, 7\ns_cbranch_scc1 L_va')
    e_load(vE)
    a('L_va:')
    NTAIL=ilv_issue()
    a('s_branch L_pre_p1')
elif PFW:
    v_dma(0,NV1)
    a(f's_waitcnt vmcnt({NV1})')
    w_dma(SRD_WQ, vWqo, 0, 4, 8192, NTW)
else:
    v_dma(0,NV1)
if KE:
    if QBAR: a('s_barrier')
    a(f's_cmp_lg_u32 s{sW}, 7\ns_cbranch_scc1 L_va')
    e_load(vE)
    a('L_va:')
    if KF:
        k_dma(); v_pos(True,0,NVE); NTAIL=8+NVE
    else:
        v_dma(0,NVA)
        k_first(); k_second()
        NTAIL=NVA+8
    a('s_branch L_pre_p1')
elif not ILV:
    if QBAR: a('s_barrier')
    a(f's_cmp_eq_u32 s{sW}, 0\ns_cbranch_scc1 L_proto')
    a(f's_cmp_lg_u32 s{sW}, 7\ns_cbranch_scc1 L_va')
    e_load(vE)
    a('L_va:')
    v_dma(NV1,NVA)
    a('s_branch L_pre_p1')
    NTAIL=NVA-NV1
OLDCPF='' if CPF else '''; code prefetch into L2: (r&7)*2KB + lane*128 (16 lanes), clamped to the code size
s_getpc_b64 s[74:75]
L_pc:
s_sub_u32 s74, s74, L_pc-'''+NAME+'''
s_subb_u32 s75, s75, 0
s_and_b32 s84, s5, 7
s_lshl_b32 s84, s84, 11
v_and_b32 v45, 15, v1
v_lshl_add_u32 v45, v45, 7, s84
v_min_u32 v45, L_end-'''+NAME+''', v45
global_load_dword v84, v45, s[74:75]
'''
a('L_proto:')
e_load(vE)
a(f'''
s_mul_i32 s{sT0}, s{sGRP}, {GRPSZ}
s_mul_i32 s{sT1}, s{sS}, 3072
s_add_u32 s{sT0}, s{sT0}, s{sT1}
v_lshl_add_u32 {v(T)}, {v(vL)}, 4, s{sT0}
v_mov_b32 {v(T+4)}, -1
v_mov_b32 {v(T+5)}, -1
v_mov_b32 {v(T+6)}, -1
v_mov_b32 {v(T+7)}, -1
buffer_store_dwordx4 {vr(T+4,4)}, {v(T)}, {srd(SRD_WS)}, 0 offen sc1
buffer_store_dwordx4 {vr(T+4,4)}, {v(T)}, {srd(SRD_WS)}, 0 offen offset:1024 sc1
buffer_store_dwordx4 {vr(T+4,4)}, {v(T)}, {srd(SRD_WS)}, 0 offen offset:2048 sc1
; my four 64-byte partial-sum pieces: D1B + b*0x2000 + (s/2)*1024 + c*128 + (s%2)*64 + (l>>2)*0x4000 + (l&3)*16
s_lshl_b32 s{sT0}, s{sB}, 13
s_lshr_b32 s{sT1}, s{sS}, 1
s_lshl_b32 s{sT1}, s{sT1}, 10
s_add_u32 s{sT0}, s{sT0}, s{sT1}
s_lshl_b32 s{sT1}, s{sC}, 7
s_add_u32 s{sT0}, s{sT0}, s{sT1}
s_and_b32 s{sT1}, s{sS}, 1
s_lshl_b32 s{sT1}, s{sT1}, 6
s_add_u32 s{sT0}, s{sT0}, s{sT1}
s_add_u32 s{sT0}, s{sT0}, {D1B}
v_lshrrev_b32 {v(T+1)}, 2, {v(vL)}
v_lshlrev_b32 {v(T+1)}, 14, {v(T+1)}
v_and_b32 {v(T+2)}, 3, {v(vL)}
v_lshl_add_u32 {v(T+1)}, {v(T+2)}, 4, {v(T+1)}
v_add_u32 {v(T+1)}, s{sT0}, {v(T+1)}
s_mov_b64 exec, 0xffff
buffer_store_dwordx4 {vr(T+4,4)}, {v(T+1)}, {srd(SRD_WS)}, 0 offen sc1
s_mov_b64 exec, -1
{OLDCPF}
''')
if ILV: ilv_issue()
if KE: a('s_branch L_proto_ret')
a('L_pre_p1:')
stamp('issued0')
a(f's_getreg_b32 s{sXCC}, hwreg(HW_REG_XCC_ID, 0, 4)')
MLFIX=f'''v_and_b32 {v(T)}, 7, {v(vI)}
v_lshl_add_u32 {v(vMLr)}, {v(T)}, 3, {v(vMLr)}''' if P2O else ''
if MO:
    MLFIX=f'''s_lshl_b32 s{sT2}, s{sW}, 5
s_add_u32 s{sT2}, s{sT2}, {LDUM}
v_lshlrev_b32 {v(T)}, 8, {v(vI)}
v_add_u32 {v(T)}, s{sT2}, {v(T)}
v_lshl_add_u32 {v(vMLw)}, {v(vG)}, 2, {v(T)}
v_and_b32 {v(T)}, 7, {v(vI)}
v_lshlrev_b32 {v(T)}, 5, {v(T)}
v_lshl_add_u32 {v(T)}, {v(vG)}, 8, {v(T)}
v_add_u32 {v(vMLr)}, {LDUM}, {v(T)}'''
a(f'''
v_lshlrev_b32 {v(vXw)}, 1, v0
v_add_u32 {v(vXw)}, {LX}, {v(vXw)}
s_lshl_b32 s{sT0}, s{sW}, 7
v_lshl_add_u32 {v(vXr)}, {v(vG)}, 4, s{sT0}
v_add_u32 {v(vXr)}, {LX}, {v(vXr)}
v_cmp_eq_u32 vcc, 0, {v(vI)}
v_mov_b32 {v(T)}, {LZ}
s_lshl_b32 s{sT1}, s{sW}, 3
v_cndmask_b32 {v(vXr)}, {v(T)}, {v(vXr)}, vcc
s_lshl_b32 s{sT2}, s{sW}, 2
s_add_u32 s{sT2}, s{sT2}, {LPART+32*48}
v_mov_b32 {v(vPw)}, s{sT2}
v_min_u32 {v(T)}, 33, {v(vL)}
v_mul_u32_u24 {v(T)}, 48, {v(T)}
v_add_u32 {v(vPr)}, {LPART}, {v(T)}
s_lshl_b32 s{sT0}, s{sW}, 8
v_lshlrev_b32 {v(T)}, 6, {v(vI)}
v_lshl_add_u32 {v(T)}, {v(vG)}, 4, {v(T)}
v_add_u32 {v(T)}, s{sT0}, {v(T)}
v_add_u32 {v(vPLw)}, {LPL}, {v(T)}
v_lshrrev_b32 {v(T)}, 2, {v(vI)}
v_lshlrev_b32 {v(T)}, 6, {v(T)}
v_lshl_add_u32 {v(T)}, {v(vG)}, 4, {v(T)}
v_add_u32 {v(vPLr)}, {LPL}, {v(T)}
v_lshlrev_b32 {v(T)}, 6, {v(vI)}
v_add_u32 {v(T)}, s{sT1}, {v(T)}
v_add_u32 {v(vMLw)}, {LML}, {v(T)}
v_lshlrev_b32 {v(T)}, 6, {v(vG)}
v_add_u32 {v(vMLr)}, {LML}, {v(T)}
{MLFIX}
v_lshrrev_b32 {v(T)}, 5, {v(vL)}
v_lshl_add_u32 {v(T)}, {v(T)}, 4, {v(vI)}
v_mul_u32_u24 {v(T)}, 48, {v(T)}
s_lshl_b32 s{sT0}, s{sW}, 2
v_add_u32 {v(T)}, s{sT0}, {v(T)}
v_add_u32 {v(vP3w)}, {LP3}, {v(T)}
v_and_b32 {v(T+1)}, 31, {v(vL)}
v_mul_u32_u24 {v(T)}, 48, {v(T+1)}
v_add_u32 {v(vP3r)}, {LP3}, {v(T)}
v_add_u32 {v(vP5r)}, {LP5}, {v(T)}
v_mul_u32_u24 {v(T)}, 48, {v(vI)}
v_add_u32 {v(T)}, s{sT0}, {v(T)}
v_add_u32 {v(vP5w)}, {LP5}, {v(T)}
; H bounce: write LHB + w*64 + (l%32)*2 ; read LHB + w*64 + g*16
s_lshl_b32 s{sT0}, s{sW}, 6
v_lshl_add_u32 {v(T)}, {v(T+1)}, 1, s{sT0}
v_add_u32 {v(vHw)}, {LHB}, {v(T)}
v_lshl_add_u32 {v(T)}, {v(vG)}, 4, s{sT0}
v_add_u32 {v(vHr)}, {LHB}, {v(T)}
v_and_b32 {v(T)}, 1, {v(vL)}
v_lshlrev_b32 {v(T)}, 4, {v(T)}
v_sub_u32 {v(vSh)}, 16, {v(T)}
v_lshrrev_b32 {v(T)}, 2, {v(vI)}
v_lshl_add_u32 {v(T)}, {v(vG)}, 3, {v(T)}
v_lshlrev_b32 {v(T)}, 6, {v(T)}
v_and_b32 {v(T+2)}, 3, {v(vI)}
v_lshrrev_b32 {v(T+3)}, 1, {v(T+2)}
v_and_b32 {v(T+4)}, 1, {v(vG)}
v_lshlrev_b32 {v(T+4)}, 1, {v(T+4)}
v_xor_b32 {v(T+3)}, {v(T+3)}, {v(T+4)}
v_lshl_add_u32 {v(T)}, {v(T+3)}, 4, {v(T)}
v_and_b32 {v(T+3)}, 1, {v(T+2)}
v_lshl_add_u32 {v(T)}, {v(T+3)}, 3, {v(T)}
s_lshl_b32 s{sT0}, s{sW}, 13
s_add_u32 s{sT0}, s{sT0}, {LW}
v_add_u32 {v(vWN0)}, s{sT0}, {v(T)}
v_xor_b32 {v(vWN1)}, 32, {v(vWN0)}
v_lshrrev_b32 {v(T)}, 2, {v(vI)}                 ; r
v_lshl_add_u32 {v(T+3)}, {v(vG)}, 2, {v(T)}      ; 4g+r
v_lshlrev_b32 {v(T+3)}, 8, {v(T+3)}
v_and_b32 {v(T+4)}, 1, {v(vG)}
v_lshlrev_b32 {v(T+4)}, 2, {v(T+4)}
v_add_u32 {v(T+4)}, {v(T+4)}, {v(T)}
v_lshlrev_b32 {v(T+4)}, 1, {v(T+4)}              ; 8*(g&1)+2r
v_lshrrev_b32 {v(T+5)}, 1, {v(T+2)}
s_lshl_b32 s{sT0}, s{sW}, 1
v_add_u32 {v(T+5)}, s{sT0}, {v(T+5)}
v_xor_b32 {v(T+5)}, {v(T+5)}, {v(T+4)}
v_lshl_add_u32 {v(T+3)}, {v(T+5)}, 4, {v(T+3)}
v_and_b32 {v(T+5)}, 1, {v(T+2)}
v_lshl_add_u32 {v(vVr)}, {v(T+5)}, 3, {v(T+3)}
s_lshl_b32 s{sT0}, s{sW}, 11
v_and_b32 {v(T)}, 7, {v(vI)}
v_xor_b32 {v(T)}, {v(T)}, {v(vG)}
v_lshlrev_b32 {v(T)}, 4, {v(T)}
v_lshl_add_u32 {v(T)}, {v(vI)}, 7, {v(T)}
v_add_u32 {v(T)}, s{sT0}, {v(T)}
v_add_u32 {v(vOst0)}, {LV}, {v(T)}
v_xor_b32 {v(vOst1)}, 64, {v(vOst0)}
v_and_b32 {v(T)}, 3, {v(vI)}
v_lshlrev_b32 {v(T)}, 8, {v(T)}
v_lshl_add_u32 {v(T)}, {v(vG)}, 4, {v(T)}
v_add_u32 {v(vQl)}, {LQ}, {v(T)}
; D read: D1B + b*0x2000 + w*1024 + (i&7)*128 + (i>>3)*64 + g*16
s_lshl_b32 s{sT0}, s{sB}, 13
s_lshl_b32 s{sT1}, s{sW}, 10
s_add_u32 s{sT1}, s{sT1}, s{sT0}
s_add_u32 s{sT1}, s{sT1}, {D1B}
v_and_b32 {v(T)}, 7, {v(vI)}
v_lshlrev_b32 {v(T)}, 7, {v(T)}
v_lshrrev_b32 {v(T+1)}, 3, {v(vI)}
v_lshl_add_u32 {v(T)}, {v(T+1)}, 6, {v(T)}
v_lshl_add_u32 {v(T)}, {v(vG)}, 4, {v(T)}
v_add_u32 {v(vDrd)}, s{sT1}, {v(T)}
; D write: D1B + b*0x2000 + (s/2)*1024 + c*128 + (s%2)*64 + l*2
s_lshr_b32 s{sT1}, s{sS}, 1
s_lshl_b32 s{sT1}, s{sT1}, 10
s_add_u32 s{sT0}, s{sT0}, s{sT1}
s_lshl_b32 s{sT1}, s{sC}, 7
s_add_u32 s{sT0}, s{sT0}, s{sT1}
s_and_b32 s{sT1}, s{sS}, 1
s_lshl_b32 s{sT1}, s{sT1}, 6
s_add_u32 s{sT0}, s{sT0}, s{sT1}
s_add_u32 s{sT0}, s{sT0}, {D1B}
v_lshl_add_u32 {v(vDwr)}, {v(vL)}, 1, s{sT0}
s_mul_i32 s{sT0}, s{sGRP}, {GRPSZ}
s_add_u32 s{sT1}, s{sT0}, {QB}
v_lshl_add_u32 {v(vQrd)}, {v(vL)}, 4, s{sT1}
s_lshl_b32 s{sT2}, s{sS}, 6
s_add_u32 s{sT1}, s{sT1}, s{sT2}
v_lshl_add_u32 {v(vQwr)}, {v(vL)}, 1, s{sT1}
s_lshl_b32 s{sT1}, s{sS}, 6
s_add_u32 s{sT2}, s{sT1}, 64
s_cmp_lt_u32 s{sS}, 7
s_cselect_b32 s{sT1}, s{sT1}, s{sT2}
s_add_u32 s{sT1}, s{sT1}, s{sT0}
s_add_u32 s{sT1}, s{sT1}, {GUB}
v_lshl_add_u32 {v(vGUwr)}, {v(vL)}, 1, s{sT1}
v_and_b32 {v(T)}, 30, {v(vL)}
v_lshlrev_b32 {v(T)}, 1, {v(T)}
s_lshl_b32 s{sT1}, s{sW}, 6
s_add_u32 s{sT1}, s{sT1}, s{sT0}
s_add_u32 s{sT1}, s{sT1}, {GUB}
v_add_u32 {v(vGUrd)}, s{sT1}, {v(T)}
; O write: OB + s*1024 + (g*128 + 16w + i)*2 ; DMA read: OB + (l/8)*1024 + w*128 + ((l%8)^(l/8))*16
s_add_u32 s{sT0}, s{sT0}, {OB}
s_lshl_b32 s{sT1}, s{sS}, 10
s_add_u32 s{sT1}, s{sT1}, s{sT0}
s_lshl_b32 s{sT2}, s{sW}, 5
s_add_u32 s{sT1}, s{sT1}, s{sT2}
v_lshlrev_b32 {v(T)}, 8, {v(vG)}
v_lshl_add_u32 {v(T)}, {v(vI)}, 1, {v(T)}
v_add_u32 {v(vOwr)}, s{sT1}, {v(T)}
s_lshl_b32 s{sT2}, s{sW}, 7
s_add_u32 s{sT1}, s{sT0}, s{sT2}
v_lshrrev_b32 {v(T)}, 3, {v(vL)}
v_and_b32 {v(T+1)}, 7, {v(vL)}
v_xor_b32 {v(T+1)}, {v(T+1)}, {v(T)}
v_lshlrev_b32 {v(T)}, 10, {v(T)}
v_lshl_add_u32 {v(T)}, {v(T+1)}, 4, {v(T)}
v_add_u32 {v(vOrd)}, s{sT1}, {v(T)}
s_mul_i32 s{sT0}, s{sGRP}, {GRPSZ}
s_add_u32 s{sT0}, s{sT0}, {MLB}
s_lshl_b32 s{sT1}, s{sS}, 3
s_add_u32 s{sT1}, s{sT1}, s{sT0}
v_lshl_add_u32 {v(vMLwr)}, {v(vG)}, 7, s{sT1}
s_lshr_b32 s{sT1}, s{sW}, 1
s_lshl_b32 s{sT1}, s{sT1}, 7
s_add_u32 s{sT1}, s{sT1}, s{sT0}
v_lshl_add_u32 {v(vMLrd)}, {v(vG)}, 5, s{sT1}
s_mov_b32 s{mI4}, 0x000f000f
s_mov_b32 s{mI4+1}, 0x000f000f
s_mov_b32 s{mEVEN}, 0x55555555
s_mov_b32 s{mEVEN+1}, 0x55555555
s_mov_b32 s{mI0}, 0x00010001
s_mov_b32 s{mI0+1}, 0x00010001
s_mov_b32 s{sCS}, 0x3e0293ee          ; 128^-0.5 * log2(e)
s_mov_b32 s{sNL2E}, 0xbfb8aa3b        ; -log2(e)
s_mov_b32 s{sOGU}, 0
s_mov_b32 s{sOML}, 0
s_mov_b32 s{sOD1}, 0
s_mov_b32 s{sOD2}, 0x8000
s_mov_b32 s{sOD2P}, 0x8000
s_mov_b32 s{mLO}, -1
s_mov_b32 s{mLO+1}, 0
s_mov_b32 s{sOO}, 0
s_mov_b32 s{sOO2}, 7168
s_mov_b32 s{sSPIN}, 0
s_mov_b32 s{sFAST}, 0
s_lshl_b32 s{sT0}, s{sC}, 19
s_lshl_b32 s{sT1}, s{sS}, 6
s_add_u32 s{sT0}, s{sT0}, s{sT1}
s_add_u32 s{SRD_WO}, s16, s{sT0}
s_addc_u32 s{SRD_WO+1}, s17, 0
s_sub_u32 s{SRD_WO+2}, 4194304, s{sT0}
s_mov_b32 s{SRD_WO+3}, 0x20000
s_mul_i32 s{sT0}, s{sC}, 229376
s_add_u32 s{sT0}, s{sT0}, s{sT1}
s_add_u32 s{SRD_WD}, s24, s{sT0}
s_addc_u32 s{SRD_WD+1}, s25, 0
s_sub_u32 s{SRD_WD+2}, 1835008, s{sT0}
s_mov_b32 s{SRD_WD+3}, 0x20000
s_mul_i32 s{sT0}, s{sC}, 448
s_sub_u32 s{sT2}, s{sT1}, 448
s_cmp_lt_u32 s{sS}, 7
s_cselect_b32 s{sT1}, s{sT1}, s{sT2}
s_cselect_b32 s{sT2}, s20, s22
s_cselect_b32 s{sT3}, s21, s23
s_add_u32 s{sT0}, s{sT0}, s{sT1}
s_add_u32 s{SRD_WGU}, s{sT2}, s{sT0}
s_addc_u32 s{SRD_WGU+1}, s{sT3}, 0
s_sub_u32 s{SRD_WGU+2}, 1835008, s{sT0}
s_mov_b32 s{SRD_WGU+3}, 0x20000
s_mov_b32 s{SRD_OUT}, s26
s_mov_b32 s{SRD_OUT+1}, s27
s_mov_b32 s{SRD_OUT+2}, 2048
s_mov_b32 s{SRD_OUT+3}, 0x20000
v_mov_b32 {v(T)}, 0
v_and_b32 {v(T+1)}, 31, {v(vL)}
v_lshlrev_b32 {v(T+1)}, 2, {v(T+1)}
v_add_u32 {v(T+1)}, {LZ}, {v(T+1)}
ds_write_b32 {v(T+1)}, {v(T)}
v_mov_b32 {v(T)}, 0x3f80
v_lshlrev_b32 {v(T+1)}, 3, {v(vG)}
v_sub_u32 {v(T+1)}, {v(vI)}, {v(T+1)}
v_add_u32 {v(T+2)}, 16, {v(T+1)}
v_mov_b32 {v(T+3)}, 0x3f800000
''')
for blk,src in ((0,T+1),(1,T+2)):
    for r2 in range(4):
        d=RID+blk*4+r2
        a(f'''v_cmp_eq_u32 vcc, {2*r2}, {v(src)}
v_mov_b32 {v(d)}, 0
s_nop 0
v_cndmask_b32 {v(d)}, {v(d)}, {v(T)}, vcc
v_cmp_eq_u32 vcc, {2*r2+1}, {v(src)}
s_nop 1
v_cndmask_b32 {v(d)}, {v(d)}, {v(T+3)}, vcc''')
a(f'''
s_cmp_eq_u32 s{sW}, 0
s_cbranch_scc1 L_wq_w0
s_waitcnt vmcnt({NTAIL})
v_add_u32 {v(vE)}, {EPC}, {v(vE)}
s_nop 0
v_readfirstlane_b32 s{sTAG}, {v(vE)}
s_branch L_wq_landed
L_wq_w0:
s_waitcnt vmcnt({NTAIL if (ILV or KE) else 0})
v_add_u32 {v(vE)}, {EPC}, {v(vE)}
s_nop 0
v_readfirstlane_b32 s{sTAG}, {v(vE)}
s_lshl_b32 s{sT0}, s{sGRP}, 7
s_lshl_b32 s{sT2}, s{sS}, 2
s_add_u32 s{sT0}, s{sT0}, s{sT2}
s_add_u32 s{sT0}, s{sT0}, {FB}
v_mov_b32 {v(T+8)}, s{sT0}
v_add_u32 {v(T+9)}, s{sXCC}, {v(vE)}
s_mov_b64 exec, 1
buffer_store_dword {v(T+9)}, {v(T+8)}, {srd(SRD_WS)}, 0 offen sc1
s_mov_b64 exec, -1
''')
if not ILV and not KE: v_dma(NV1,NVA)
a('L_wq_landed:')
stamp('wq_landed')
w_tr(RWQ,3 if KF else 0,2)
if KMID:
    a('s_waitcnt lgkmcnt(0)')
    k_dma()
a(f'v_lshlrev_b32 {v(vX)}, 16, {v(vX)}')
a(f'v_lshrrev_b32 {v(XB)}, 16, {v(vX)}')
def x_update(delta):
    if MO:
        a(f'''v_add_f32 {v(vX)}, {v(vX)}, {v(delta)}
v_cvt_pk_bf16_f32 {v(XB)}, {v(vX)}, {v(vX)}
v_and_b32 {v(vX)}, 0xffff0000, {v(XB)}''')
        return
    a(f'''v_cvt_pk_bf16_f32 {v(delta)}, {v(delta)}, {v(delta)}
v_and_b32 {v(delta)}, 0xffff0000, {v(delta)}
v_add_f32 {v(vX)}, {v(vX)}, {v(delta)}
v_cvt_pk_bf16_f32 {v(XB)}, {v(vX)}, {v(vX)}
v_and_b32 {v(vX)}, 0xffff0000, {v(XB)}''')
R=T+24
def d_issue(soff): a(f'buffer_load_dwordx4 {vr(R,4)}, {v(vDrd)}, {srd(SRD_WS)}, s{soff} offen sc1')
def d_check(soff, tag=None):
    r=lbl('pd_r'); ok=lbl('pd_ok'); c=lbl('pd_c')
    a(f'{c}:')
    check_valid(range(R,R+4), ok, T+40)
    spin_check(r)
    a(f'{r}:'); d_issue(soff); a(f's_waitcnt vmcnt(0)\ns_branch {c}')
    a(f'{ok}:')
    if tag: stamp(tag)
I1,I2=T+28,T+32
def ident_mfma():
    a(f'v_mfma_f32_16x16x32_bf16 {vr(I1,4)}, {vr(R,4)}, {vr(RID,4)}, 0\nv_mfma_f32_16x16x32_bf16 {vr(I2,4)}, {vr(R,4)}, {vr(RID+4,4)}, 0')
def d_sum():
    a(f'''v_add_f32 {v(I1)}, {v(I1)}, {v(I1+1)}
v_add_f32 {v(I1+2)}, {v(I1+2)}, {v(I1+3)}
v_add_f32 {v(I2)}, {v(I2)}, {v(I2+1)}
v_add_f32 {v(I2+2)}, {v(I2+2)}, {v(I2+3)}
v_add_f32 {v(I1)}, {v(I1)}, {v(I1+2)}
v_add_f32 {v(I2)}, {v(I2)}, {v(I2+2)}
v_permlane16_swap_b32 {v(I1)}, {v(I2)}
v_add_f32 {v(I1)}, {v(I1)}, {v(I2)}''')
    return I1
D00,D01,D10,D11=T+8,T+12,T+16,T+20
def ln_prev(W, colsum_if_l0):
    a(f'ds_read_b128 {vr(T,4)}, {v(vXr)}\nds_read_b128 {vr(T+4,4)}, {v(vXr)} offset:64\ns_waitcnt lgkmcnt(0)')
    a(f'v_mfma_f32_16x16x32_bf16 {vr(D00,4)}, {vr(T,4)}, {vr(W,4)}, 0')
    a(f'v_mfma_f32_16x16x32_bf16 {vr(D01,4)}, {vr(T,4)}, {vr(W+4,4)}, 0')
    a(f'v_mfma_f32_16x16x32_bf16 {vr(D00,4)}, {vr(T+4,4)}, {vr(W+8,4)}, {vr(D00,4)}')
    a(f'v_mfma_f32_16x16x32_bf16 {vr(D01,4)}, {vr(T+4,4)}, {vr(W+12,4)}, {vr(D01,4)}')
    l=lbl('cs')
    a(f's_cmp_lg_u32 s{sL}, 0\ns_cbranch_scc1 {l}')
    O1=T+40; C0,C1=T+44,T+48
    for j in range(4): a(f'v_mov_b32 {v(O1+j)}, 0x3f803f80')
    a(f'v_mfma_f32_16x16x32_bf16 {vr(C0,4)}, {vr(O1,4)}, {vr(W,4)}, 0')
    a(f'v_mfma_f32_16x16x32_bf16 {vr(C1,4)}, {vr(O1,4)}, {vr(W+4,4)}, 0')
    a(f'v_mfma_f32_16x16x32_bf16 {vr(C0,4)}, {vr(O1,4)}, {vr(W+8,4)}, {vr(C0,4)}')
    a(f'v_mfma_f32_16x16x32_bf16 {vr(C1,4)}, {vr(O1,4)}, {vr(W+12,4)}, {vr(C1,4)}')
    a(f's_nop 7\nv_cndmask_b32 {v(C0)}, {v(C1)}, {v(C0)}, s[{mLO}:{mLO+1}]')
    a('s_mov_b32 exec_lo, 0xffff\ns_mov_b32 exec_hi, 0xffff')
    a(f'ds_write_b32 {v(vP3w)}, {v(C0)} offset:{LPARTC-LP3 if LPARTC>=LP3 else 0}') if False else None
    a(f'v_add_u32 {v(C0+1)}, {(LPARTC-LP3)&0xffffffff}, {v(vP3w)}\nds_write_b32 {v(C0+1)}, {v(C0)}')
    a('s_mov_b64 exec, -1')
    a(f'{l}:')
def ln_post(W, pub, tag, cs):
    ident_mfma()
    a(f'v_mfma_f32_16x16x32_bf16 {vr(D00,4)}, {vr(R,4)}, {vr(W,4)}, {vr(D00,4)}')
    a(f'v_mfma_f32_16x16x32_bf16 {vr(D01,4)}, {vr(R,4)}, {vr(W+4,4)}, {vr(D01,4)}')
    a(f'v_mfma_f32_16x16x32_bf16 {vr(D10,4)}, {vr(R,4)}, {vr(W+8,4)}, 0')
    a(f'v_mfma_f32_16x16x32_bf16 {vr(D11,4)}, {vr(R,4)}, {vr(W+12,4)}, 0')
    x_update(d_sum())
    a(f'ds_write_b16 {v(vXw)}, {v(XB)}')
    sa,sq=T+38,T+39
    a(f'v_mov_b32 {v(sa)}, {v(vX)}\nv_mul_f32 {v(sq)}, {v(vX)}, {v(vX)}')
    steps=['quad_perm:[1,0,3,2] row_mask:0xf bank_mask:0xf','quad_perm:[2,3,0,1] row_mask:0xf bank_mask:0xf','row_half_mirror row_mask:0xf bank_mask:0xf','row_mirror row_mask:0xf bank_mask:0xf','row_bcast:15 row_mask:0xa bank_mask:0xf','row_bcast:31 row_mask:0xc bank_mask:0xf']
    fill=[f'v_add_f32 {v(D00)}, {v(D00)}, {v(D00+1)}', f'v_add_f32 {v(D00+2)}, {v(D00+2)}, {v(D00+3)}',
          f'v_add_f32 {v(D10)}, {v(D10)}, {v(D10+1)}', f'v_add_f32 {v(D10+2)}, {v(D10+2)}, {v(D10+3)}',
          f'v_add_f32 {v(D01)}, {v(D01)}, {v(D01+1)}', f'v_add_f32 {v(D01+2)}, {v(D01+2)}, {v(D01+3)}',
          f'v_add_f32 {v(D11)}, {v(D11)}, {v(D11+1)}', f'v_add_f32 {v(D11+2)}, {v(D11+2)}, {v(D11+3)}',
          f'v_add_f32 {v(D00)}, {v(D00)}, {v(D00+2)}', f'v_add_f32 {v(D10)}, {v(D10)}, {v(D10+2)}',
          f'v_add_f32 {v(D01)}, {v(D01)}, {v(D01+2)}', f'v_add_f32 {v(D11)}, {v(D11)}, {v(D11+2)}']
    for k,m in enumerate(steps):
        a(fill[2*k]); a(fill[2*k+1])
        a(f'v_add_f32_dpp {v(sa)}, {v(sa)}, {v(sa)} {m}\nv_add_f32_dpp {v(sq)}, {v(sq)}, {v(sq)} {m}')
    a(f'''v_cndmask_b32 {v(D00)}, {v(D10)}, {v(D00)}, s[{mLO}:{mLO+1}]
v_cndmask_b32 {v(D01)}, {v(D11)}, {v(D01)}, s[{mLO}:{mLO+1}]
s_mov_b32 exec_lo, 0
s_mov_b32 exec_hi, 0x80000000
ds_write2_b32 {v(vPw)}, {v(sa)}, {v(sq)} offset0:0 offset1:12
s_mov_b64 exec, -1
v_permlane32_swap_b32 {v(D00)}, {v(D01)}
v_add_f32 {v(D00)}, {v(D00)}, {v(D01)}
v_mov_b32 {v(D01)}, {v(D00)}
v_permlane16_swap_b32 {v(D00)}, {v(D01)}
v_add_f32 {v(D00)}, {v(D00)}, {v(D01)}
v_add_u32 {v(D01)}, {(LPART-LP3)&0xffffffff}, {v(vP3w)}
s_mov_b32 exec_lo, 0xffff
s_mov_b32 exec_hi, 0xffff
ds_write_b32 {v(D01)}, {v(D00)}
s_mov_b64 exec, -1
s_waitcnt lgkmcnt(0)
s_barrier''')
    stamp(tag+'_b2')
    done=lbl('lng_done'); nocs=lbl('nocs')
    a(f's_cmp_lg_u32 s{sW}, 0\ns_cbranch_scc1 {done}')
    a(f'ds_read_b128 {vr(T,4)}, {v(vPr)}\nds_read_b128 {vr(T+4,4)}, {v(vPr)} offset:16')
    a(f's_cmp_lg_u32 s{sL}, 0\ns_cbranch_scc1 {nocs}')
    a(f'''v_add_u32 {v(T+16)}, {(LPARTC-LPART)&0xffffffff}, {v(vPr)}
ds_read_b128 {vr(T+8,4)}, {v(T+16)}
ds_read_b128 {vr(T+12,4)}, {v(T+16)} offset:16
s_waitcnt lgkmcnt(0)
v_add_f32 {v(T+8)}, {v(T+8)}, {v(T+9)}
v_add_f32 {v(T+10)}, {v(T+10)}, {v(T+11)}
v_add_f32 {v(T+12)}, {v(T+12)}, {v(T+13)}
v_add_f32 {v(T+14)}, {v(T+14)}, {v(T+15)}
v_add_f32 {v(T+8)}, {v(T+8)}, {v(T+10)}
v_add_f32 {v(T+12)}, {v(T+12)}, {v(T+14)}
v_add_f32 {v(cs)}, {v(T+8)}, {v(T+12)}
{nocs}:
s_waitcnt lgkmcnt(0)
v_add_f32 {v(T)}, {v(T)}, {v(T+1)}
v_add_f32 {v(T+2)}, {v(T+2)}, {v(T+3)}
v_add_f32 {v(T+4)}, {v(T+4)}, {v(T+5)}
v_add_f32 {v(T+6)}, {v(T+6)}, {v(T+7)}
v_add_f32 {v(T)}, {v(T)}, {v(T+2)}
v_add_f32 {v(T+4)}, {v(T+4)}, {v(T+6)}
v_add_f32 {v(T)}, {v(T)}, {v(T+4)}
s_nop 0
v_readlane_b32 s{sT0}, {v(T)}, 32
v_readlane_b32 s{sT1}, {v(T)}, 33
s_nop 0
v_mov_b32 {v(T+2)}, s{sT0}
v_mov_b32 {v(T+3)}, s{sT1}
v_mul_f32 {v(T+2)}, 0x3b000000, {v(T+2)}          ; mean
v_mul_f32 {v(T+3)}, 0x3b000000, {v(T+3)}          ; E[x^2]
v_fma_f32 {v(T+3)}, -{v(T+2)}, {v(T+2)}, {v(T+3)}
v_fma_f32 {v(T+4)}, -{v(cs)}, {v(T+2)}, {v(T)}
v_max_f32 {v(T+3)}, 0, {v(T+3)}
v_add_f32 {v(T+3)}, 0x3727c5ac, {v(T+3)}          ; + 1e-5
v_rsq_f32 {v(T+3)}, {v(T+3)}
v_mul_f32 {v(T+4)}, {v(T+4)}, {v(T+3)}
v_mov_b32_dpp {v(T+5)}, {v(T+4)} quad_perm:[1,1,3,3] row_mask:0xf bank_mask:0xf
v_cvt_pk_bf16_f32 {v(T+12)}, {v(T+4)}, {v(T+5)}
v_min_u32 {v(T+12)}, -2, {v(T+12)}
s_mov_b32 exec_lo, 0x55555555
s_mov_b32 exec_hi, 0''')
    pub()
    exec_all()
    a(f'{done}:')
a(f'ds_write_b16 {v(vXw)}, {v(XB)}')
for j in range(4): a(f'v_mov_b32 {v(R+j)}, 0')
a('s_waitcnt lgkmcnt(0)')
ln_prev(RWQ, True)
a('s_branch L_p1_post')
a('L_layer:')
d_issue(sOD2P)
ln_prev(RWQ, False)
a('s_waitcnt vmcnt(0)')
d_check(sOD2P,'d2_ok')
a('L_p1_post:')
def q_pub():
    l1=lbl('qp1'); l2=lbl('qpd')
    a(f's_cmp_lg_u32 s{sL}, 0\ns_cbranch_scc1 {l1}')
    a(f'''s_lshl_b32 s{sT0}, s{sGRP}, 11
s_lshl_b32 s{sT1}, s{sS}, 7
s_add_u32 s{sT0}, s{sT0}, s{sT1}
s_add_u32 s{sT0}, s{sT0}, {Q0T}
v_lshl_add_u32 {v(T+14)}, {v(vL)}, 2, s{sT0}
s_add_u32 s{sT1}, s{sTAG}, s{sXCC}
v_mov_b32 {v(T+13)}, s{sT1}
buffer_store_dwordx2 {vr(T+12,2)}, {v(T+14)}, {srd(SRD_WS)}, 0 offen sc1
s_branch {l2}
{l1}:''')
    pub_store(f'buffer_store_dword {v(T+12)}, {v(vQwr)}, {srd(SRD_WS)}, 0 offen')
    a(f'{l2}:')
ln_post(RWQ, q_pub, 'p1', vCSQ)
stamp('p1_done')
a(f's_cmp_lg_u32 s{sL}, 0\ns_cbranch_scc1 L_h1_l1')
if not KE:
    if KDMA:
        if not KMID: k_dma()
    else:
        k_first(); k_second()
    if KBAR: a('s_barrier')
stamp('k_issued')
pf3('o',1,T+41); pf3('g',2,T+41); pf3('d',3,T+41)
a(f's_cmp_eq_u32 s{sW}, 0\ns_cbranch_scc1 L_h1_w0\ns_cmp_eq_u32 s{sW}, 7\ns_cbranch_scc1 L_h1_w7')
v_rest()
NVH=0
if VHELP:
    NVH=8-NVA
    a(f's_cmp_lg_u32 s{sW}, 1\ns_cbranch_scc1 L_vh1')
    v_dma(NVA,8,0)
    a(f's_waitcnt vmcnt({2*(8-NVA)})\ns_branch L_vh_k')
    a(f'L_vh1:\ns_cmp_lg_u32 s{sW}, 6\ns_cbranch_scc1 L_vh2')
    v_dma(NVA,8,7)
    a(f's_waitcnt vmcnt({2*(8-NVA)})\ns_branch L_vh_k')
    a('L_vh2:')
def late_w():
    if VBAR: a('s_barrier')
    w_dma(SRD_WO, vWoo, 1, 4, 1024, NTW)
    l1=lbl('lw1'); l2=lbl('lw2')
    a(f's_cmp_ge_u32 s{sS}, 14\ns_cbranch_scc1 {l1}')
    w_dma(SRD_WGU, vWguo, 0, 4, 3584, NTW)
    a(f'{l1}:\ns_cmp_eq_u32 s{sW}, 7\ns_cbranch_scc1 {l2}')
    w_dma(SRD_WD, vWdo, 2, 2, 1024, NTW)
    a(f'{l2}:')
NPO=0
if ALLW:
    NWO=4
    late_w()
else:
    NPO=pf_wo()
    NWO=0 if WOLATE else 4
    if not WOLATE: w_dma(SRD_WO, vWoo, 1, 4, 1024, NTW)
stamp('vw_issued')
if ALLW:
    l1=lbl('kw1'); l2=lbl('kw2')
    a(f's_cmp_ge_u32 s{sS}, 14\ns_cbranch_scc1 {l1}\ns_waitcnt vmcnt({8-NVA+10})\ns_branch {l2}\n{l1}:\ns_waitcnt vmcnt({8-NVA+6})\n{l2}:')
else:
    a(f's_waitcnt vmcnt({(8 if KF else 8-NVA)+NPO+NWO})')
if VHELP: a('L_vh_k:')
stamp('k_landed')
if KDMA: k_frags()
a('s_branch L_h1_bar')
a(f'''L_h1_w7:
s_lshl_b32 s{sT0}, s{sB}, 10
s_add_u32 s{sT0}, s{sT0}, {FB}
v_lshrrev_b32 {v(T+28)}, 3, {v(vL)}
v_lshlrev_b32 {v(T+28)}, 7, {v(T+28)}
v_and_b32 {v(T+29)}, 7, {v(vL)}
v_lshl_add_u32 {v(T+28)}, {v(T+29)}, 3, {v(T+28)}
v_add_u32 {v(T+28)}, s{sT0}, {v(T+28)}
L_f1_retry:
buffer_load_dwordx2 {vr(T+30,2)}, {v(T+28)}, {srd(SRD_WS)}, 0 offen sc1
s_waitcnt vmcnt(0)
v_subrev_u32 {v(T+30)}, s{sTAG}, {v(T+30)}
v_subrev_u32 {v(T+31)}, s{sTAG}, {v(T+31)}
v_max_u32 {v(T+30)}, {v(T+30)}, {v(T+31)}
v_cmp_lt_u32 vcc, 15, {v(T+30)}
s_cbranch_vccz L_h1_rest
''')
spin_check('L_f1_retry')
a(f'''L_h1_w0:
s_lshl_b32 s{sT0}, s{sGRP}, 11
s_add_u32 s{sT0}, s{sT0}, {Q0T}
v_lshl_add_u32 {v(T+16)}, {v(vL)}, 5, s{sT0}
L_q0_retry:
buffer_load_dwordx4 {vr(T,4)}, {v(T+16)}, {srd(SRD_WS)}, 0 offen sc1
buffer_load_dwordx4 {vr(T+4,4)}, {v(T+16)}, {srd(SRD_WS)}, 0 offen offset:16 sc1
s_waitcnt vmcnt(0)
v_subrev_u32 {v(T+1)}, s{sTAG}, {v(T+1)}
v_subrev_u32 {v(T+3)}, s{sTAG}, {v(T+3)}
v_subrev_u32 {v(T+5)}, s{sTAG}, {v(T+5)}
v_subrev_u32 {v(T+7)}, s{sTAG}, {v(T+7)}
v_max3_u32 {v(T+8)}, {v(T+1)}, {v(T+3)}, {v(T+5)}
v_max_u32 {v(T+8)}, {v(T+8)}, {v(T+7)}
v_cmp_lt_u32 vcc, 15, {v(T+8)}
s_cbranch_vccz L_q0_ok''')
spin_check('L_q0_retry')
a(f'''L_q0_ok:
v_min3_u32 {v(T+9)}, {v(T+1)}, {v(T+3)}, {v(T+5)}
v_min_u32 {v(T+9)}, {v(T+9)}, {v(T+7)}
v_cmp_ne_u32 vcc, s{sXCC}, {v(T+8)}
v_cmp_ne_u32 s[{sT2}:{sT3}], s{sXCC}, {v(T+9)}
s_or_b64 vcc, vcc, s[{sT2}:{sT3}]
s_cmp_eq_u64 vcc, 0
s_cselect_b32 s{sT0}, 1, 0
''')
if FORCESLOW: a(f's_mov_b32 s{sT0}, 0')
a(f'''v_lshlrev_b32 {v(T+10)}, 4, {v(vL)}
v_add_u32 {v(T+10)}, {LQ}, {v(T+10)}
ds_write2_b32 {v(T+10)}, {v(T)}, {v(T+2)} offset0:0 offset1:1
ds_write2_b32 {v(T+10)}, {v(T+4)}, {v(T+6)} offset0:2 offset1:3
v_mov_b32 {v(T+11)}, s{sT0}
v_mov_b32 {v(T+12)}, {LFAST}
ds_write_b32 {v(T+12)}, {v(T+11)}
L_h1_rest:''')
if KDMA: k_frags()
if not VHELP: v_rest()
if ALLW: late_w()
else:
    pf_wo()
    if not WOLATE: w_dma(SRD_WO, vWoo, 1, 4, 1024, NTW)
a('s_branch L_h1_bar')
a('L_h1_l1:')
a(f's_cmp_lg_u32 s{sW}, {H1W}\ns_cbranch_scc1 L_h1_bar')
if H1W==0: ack()
a(f'''L_q1_retry:
buffer_load_dwordx4 {vr(T,4)}, {v(vQrd)}, {srd(SRD_WS)}, 0 offen sc1
s_waitcnt vmcnt(0)''')
check_valid(range(T,T+4),'L_q1_ok',T+4)
spin_check('L_q1_retry')
a(f'''L_q1_ok:
v_lshlrev_b32 {v(T+10)}, 4, {v(vL)}
v_add_u32 {v(T+10)}, {LQ}, {v(T+10)}
ds_write_b128 {v(T+10)}, {vr(T,4)}
L_h1_bar:
s_waitcnt lgkmcnt(0)
s_barrier''')
stamp('q_ok')
if PT:
    a(f'''s_cmp_lg_u32 s{sL}, 0
s_cbranch_scc1 L_nopt
s_cmp_lg_u32 s{sW}, 6
s_cbranch_scc1 L_nopt
s_mul_i32 s{sT0}, s{sGRP}, {GRPSZ}
s_lshl_b32 s{sT1}, s{sS}, 10
s_add_u32 s{sT1}, s{sT1}, {OB}
v_and_b32 {v(T+70)}, 7, {v(vL)}
v_lshlrev_b32 {v(T+70)}, 7, {v(T+70)}
v_lshrrev_b32 {v(T+71)}, 3, {v(vL)}
v_and_b32 {v(T+71)}, 1, {v(T+71)}
v_lshl_add_u32 {v(T+70)}, {v(T+71)}, 14, {v(T+70)}
v_add_u32 {v(T+70)}, s{sT1}, {v(T+70)}
v_subrev_u32 {v(T+71)}, 16, {v(vL)}
s_lshl_b32 s{sT1}, s{sS}, 2
v_add_u32 {v(T+71)}, s{sT1}, {v(T+71)}
v_min_u32 {v(T+71)}, 39, {v(T+71)}
v_lshlrev_b32 {v(T+71)}, 7, {v(T+71)}
v_cmp_gt_u32 vcc, 16, {v(vL)}
s_nop 1
v_cndmask_b32 {v(T+70)}, {v(T+71)}, {v(T+70)}, vcc
s_mov_b32 exec_lo, 0xfffff
s_mov_b32 exec_hi, 0
buffer_load_dword {v(43 if False else T+83)}, {v(T+70)}, {srd(SRD_WS)}, s{sT0} offen sc1
s_mov_b64 exec, -1
L_nopt:''')
Q=T
for kk in range(4): a(f'ds_read_b128 {vr(Q+4*kk,4)}, {v(vQl)} offset:{kk*64}')
if not MO: a(f'v_mov_b32 {v(T+26)}, {LFAST}\nds_read_b32 {v(T+27)}, {v(T+26)}')
S0,S1=T+16,T+20
for kk in range(4):
    a(f's_waitcnt lgkmcnt({(3 if MO else 4)-kk})')
    for t,S in ((0,S0),(1,S1)):
        c='0' if kk==0 else vr(S,4)
        a(f'v_mfma_f32_16x16x32_bf16 {vr(S,4)}, {vr(RK+(t*4+kk)*4,4)}, {vr(Q+4*kk,4)}, {c}')
if WOS or MO:
    a(f's_cmp_lg_u32 s{sL}, 0\ns_cbranch_scc1 L_wos')
    if MO: a(f'v_mov_b32 {v(T+26)}, {LFAST}\nds_read_b32 {v(T+27)}, {v(T+26)}')
    if WOS: w_dma(SRD_WO, vWoo, 1, WOS, 1024, NTW)
    if MO: a(f's_waitcnt lgkmcnt(0)\nv_readfirstlane_b32 s{sFAST}, {v(T+27)}')
    a('L_wos:')
if not MO: a(f's_waitcnt lgkmcnt(0)\nv_readfirstlane_b32 s{sFAST}, {v(T+27)}')
m,m2,tt=T+24,T+25,T+26
MC,LS=T+28,T+29
a(f'''
v_max3_f32 {v(m)}, {v(S0)}, {v(S0+1)}, {v(S0+2)}
v_max3_f32 {v(m2)}, {v(S1)}, {v(S1+1)}, {v(S1+2)}
v_max3_f32 {v(m)}, {v(m)}, {v(S0+3)}, {v(S1+3)}
v_max_f32 {v(m)}, {v(m)}, {v(m2)}
v_mov_b32 {v(tt)}, {v(m)}
v_permlane16_swap_b32 {v(m)}, {v(tt)}
v_max_f32 {v(m)}, {v(m)}, {v(tt)}
v_mov_b32 {v(tt)}, {v(m)}
v_permlane32_swap_b32 {v(m)}, {v(tt)}
v_max_f32 {v(m)}, {v(m)}, {v(tt)}
v_mul_f32 {v(MC)}, s{sCS}, {v(m)}
''')
P=T+32
for t,S in ((0,S0),(1,S1)):
    for r in range(4): a(f'v_fma_f32 {v(P+4*t+r)}, {v(S+r)}, s{sCS}, -{v(MC)}')
for r in range(8): a(f'v_exp_f32 {v(P+r)}, {v(P+r)}')
PK=T+40
for r in range(4): a(f'v_cvt_pk_bf16_f32 {v(PK+r)}, {v(P+2*r)}, {v(P+2*r+1)}')
if ALLW:
    VWAIT=f'''s_cmp_ge_u32 s{sS}, 14
s_cbranch_scc1 L_vw_a
s_cmp_eq_u32 s{sW}, 7
s_cbranch_scc1 L_vw_b
s_waitcnt vmcnt(10)
s_branch L_p2_nov
L_vw_b:
s_waitcnt vmcnt(8)
s_branch L_p2_nov
L_vw_a:
s_cmp_eq_u32 s{sW}, 7
s_cbranch_scc1 L_vw_c
s_waitcnt vmcnt(6)
s_branch L_p2_nov
L_vw_c:
s_waitcnt vmcnt(4)'''
else:
    VWAIT=f's_waitcnt vmcnt({NPO+NWO+WOS})'
LML2=LDUM
if MO:
    LTAIL=f'''s_mov_b64 exec, s[{mI4}:{mI4+1}]
ds_write_b32 {v(vMLw)}, {v(LS)}
s_mov_b64 exec, 15
ds_write_b32 {v(vMLw)}, {v(MC)} offset:16
s_mov_b64 exec, -1'''
else:
    LTAIL=f'''v_mov_b32 {v(tt)}, {v(LS)}
v_permlane16_swap_b32 {v(LS)}, {v(tt)}
v_add_f32 {v(LS)}, {v(LS)}, {v(tt)}
v_mov_b32 {v(tt)}, {v(LS)}
v_permlane32_swap_b32 {v(LS)}, {v(tt)}
v_add_f32 {v(LS)}, {v(LS)}, {v(tt)}
s_mov_b64 exec, 15
ds_write_b64 {v(vMLw)}, {vr(MC,2)}
s_mov_b64 exec, -1'''
exec_mask(mI4)
a(f'ds_write_b128 {v(vPLw)}, {vr(PK,4)}')
exec_all()
a(f'''
v_add_f32 {v(P)}, {v(P)}, {v(P+1)}
v_add_f32 {v(P+2)}, {v(P+2)}, {v(P+3)}
v_add_f32 {v(P+4)}, {v(P+4)}, {v(P+5)}
v_add_f32 {v(P+6)}, {v(P+6)}, {v(P+7)}
v_add_f32 {v(P)}, {v(P)}, {v(P+2)}
v_add_f32 {v(P+4)}, {v(P+4)}, {v(P+6)}
v_add_f32 {v(LS)}, {v(P)}, {v(P+4)}
{LTAIL}
s_cmp_lg_u32 s{sL}, 0
s_cbranch_scc1 L_p2_nov
{VWAIT}
L_p2_nov:
s_waitcnt lgkmcnt(0)
s_barrier
''')
stamp('p2_bar')
a(f's_cmp_lg_u32 s{sL}, 0\ns_cbranch_scc1 L_p2_novt')
if WOLATE and not ALLW and WOS<4: w_dma(SRD_WO, vWoo, 1, 4, 1024, NTW, WOS)
pf_wgu()
if WGS:
    a(f's_cmp_ge_u32 s{sS}, 14\ns_cbranch_scc1 L_p2_nowgs')
    w_dma(SRD_WGU, vWguo, 0, WGS, 3584, NTW)
    a('L_p2_nowgs:')
if WGP2:
    a(f's_cmp_ge_u32 s{sS}, 14\ns_cbranch_scc1 L_p2_nowg')
    w_dma(SRD_WGU, vWguo, 0, 4, 3584, NTW)
    a('L_p2_nowg:')
for kk in range(8):
    for hh in range(2):
        a(f'ds_read_b64_tr_b16 {vr(RV+kk*4+hh*2,2)}, {v(vVr)} offset:{LV+kk*8192+hh*4096}')
a('s_waitcnt lgkmcnt(0)')
a('L_p2_novt:')
PA=T; MLr=T+32; DO=T+48
OO=T+82
if not P2O:
    for k in range(4): a(f'ds_read_b128 {vr(MLr+4*k,4)}, {v(vMLr)} offset:{16*k}')
    for kk in range(8): a(f'ds_read_b128 {vr(PA+4*kk,4)}, {v(vPLr)} offset:{kk*256}')
    for kk in range(8):
        a(f's_waitcnt lgkmcnt({7-kk})')
        a(f'v_mfma_f32_16x16x32_bf16 {vr(DO+4*kk,4)}, {vr(PA+4*kk,4)}, {vr(RV+4*kk,4)}, 0')
        if kk==0:
            mc=[MLr+2*k for k in range(8)]
            a(f'''v_max3_f32 {v(T+80)}, {v(mc[0])}, {v(mc[1])}, {v(mc[2])}
    v_max3_f32 {v(T+81)}, {v(mc[3])}, {v(mc[4])}, {v(mc[5])}
    v_max3_f32 {v(T+80)}, {v(T+80)}, {v(mc[6])}, {v(mc[7])}
    v_max_f32 {v(T+80)}, {v(T+80)}, {v(T+81)}''')
        if kk==1:
            for k in range(8): a(f'v_sub_f32 {v(MLr+2*k)}, {v(MLr+2*k)}, {v(T+80)}')
        if kk==3:
            for k in range(8): a(f'v_exp_f32 {v(MLr+2*k)}, {v(MLr+2*k)}')
        if kk==6:
            a(f'v_mul_f32 {v(T+81)}, {v(MLr)}, {v(MLr+1)}')
            for k in range(1,8): a(f'v_fmac_f32 {v(T+81)}, {v(MLr+2*k)}, {v(MLr+2*k+1)}')
    OO=T+82
    a(f'v_mul_f32 {v(OO)}, {v(MLr)}, {v(DO)}\nv_mul_f32 {v(OO+1)}, {v(MLr+2)}, {v(DO+4)}')
    for k in range(2,8,2):
        a(f'v_fmac_f32 {v(OO)}, {v(MLr+2*k)}, {v(DO+4*k)}\nv_fmac_f32 {v(OO+1)}, {v(MLr+2*k+2)}, {v(DO+4*k+4)}')
else:
    mc,ll,FM,FL=MLr,MLr+1,T+80,T+81
    DP='row_mask:0xf bank_mask:0xf'
    if MO:
        mc,ll=MLr+4,MLr
        a(f'ds_read_b32 {v(mc)}, {v(vMLr)} offset:16\nds_read_b128 {vr(ll,4)}, {v(vMLr)}')
    else:
        a(f'ds_read_b64 {vr(mc,2)}, {v(vMLr)}')
    for kk in range(8): a(f'ds_read_b128 {vr(PA+4*kk,4)}, {v(vPLr)} offset:{kk*256}')
    for kk in range(8):
        a(f's_waitcnt lgkmcnt({7-kk})')
        a(f'v_mfma_f32_16x16x32_bf16 {vr(DO+4*kk,4)}, {vr(PA+4*kk,4)}, {vr(RV+4*kk,4)}, 0')
        if kk==0: a(f'v_max_f32_dpp {v(FM)}, {v(mc)}, {v(mc)} quad_perm:[1,0,3,2] {DP}')
        if kk==0 and MO: a(f'v_add_f32 {v(ll)}, {v(ll)}, {v(ll+1)}\nv_add_f32 {v(ll+2)}, {v(ll+2)}, {v(ll+3)}')
        if kk==1: a(f'v_max_f32_dpp {v(FM)}, {v(FM)}, {v(FM)} quad_perm:[2,3,0,1] {DP}')
        if kk==1 and MO: a(f'v_add_f32 {v(ll)}, {v(ll)}, {v(ll+2)}')
        if kk==2: a(f'v_max_f32_dpp {v(FM)}, {v(FM)}, {v(FM)} row_half_mirror {DP}\nv_sub_f32 {v(mc)}, {v(mc)}, {v(FM)}\nv_exp_f32 {v(mc)}, {v(mc)}')
        if kk==3: a(f'v_mul_f32 {v(FL)}, {v(mc)}, {v(ll)}')
        if kk==4: a(f'v_add_f32_dpp {v(FL)}, {v(FL)}, {v(FL)} quad_perm:[1,0,3,2] {DP}')
        if kk==5: a(f'v_add_f32_dpp {v(FL)}, {v(FL)}, {v(FL)} quad_perm:[2,3,0,1] {DP}\nv_mul_f32_dpp {v(OO)}, {v(mc)}, {v(DO)} row_newbcast:0 {DP}\nv_mul_f32_dpp {v(OO+1)}, {v(mc)}, {v(DO+4)} row_newbcast:1 {DP}')
        if kk==6: a(f'v_add_f32_dpp {v(FL)}, {v(FL)}, {v(FL)} row_half_mirror {DP}\nv_fmac_f32_dpp {v(OO)}, {v(mc)}, {v(DO+8)} row_newbcast:2 {DP}\nv_fmac_f32_dpp {v(OO+1)}, {v(mc)}, {v(DO+12)} row_newbcast:3 {DP}')
    for k in range(4,8):
        a(f'v_fmac_f32_dpp {v(OO+(k%2))}, {v(mc)}, {v(DO+4*k)} row_newbcast:{k} {DP}')
a(f'''
v_add_f32 {v(OO)}, {v(OO)}, {v(OO+1)}
v_mov_b32_dpp {v(OO+1)}, {v(OO)} quad_perm:[1,1,3,3] row_mask:0xf bank_mask:0xf
v_cvt_pk_bf16_f32 {v(OO)}, {v(OO)}, {v(OO+1)}
v_min_u32 {v(OO)}, -2, {v(OO)}
''')
exec_mask(mEVEN)
pub_store(f'buffer_store_dword {v(OO)}, {v(vOwr)}, {srd(SRD_WS)}, s{sOO} offen')
a(f's_cmp_lg_u32 s{sW}, 0\ns_cbranch_scc1 L_p2_noml')
a(f'v_min_u32 {v(T+80)}, -2, {v(T+80)}\nv_min_u32 {v(T+81)}, -2, {v(T+81)}')
exec_mask(mI0)
pub_store(f'buffer_store_dwordx2 {vr(T+80,2)}, {v(vMLwr)}, {srd(SRD_WS)}, s{sOML} offen')
a('L_p2_noml:')
exec_all()
stamp('p2_done')
A0,A1,ML0=T,T+4,T+8
def o_issue():
    a(f's_lshl_b32 s{sT0}, s{sW}, 11\ns_add_u32 m0, s{sT0}, {LV}\ns_nop 0')
    a(f'buffer_load_dwordx4 {v(vOrd)}, {srd(SRD_WS)}, s{sOO} offen sc1 lds')
    a(f'buffer_load_dwordx4 {v(vOrd)}, {srd(SRD_WS)}, s{sOO2} offen offset:1024 sc1 lds')
    a(f'buffer_load_dwordx4 {vr(ML0,4)}, {v(vMLrd)}, {srd(SRD_WS)}, s{sOML} offen sc1')
    a(f'buffer_load_dwordx4 {vr(ML0+4,4)}, {v(vMLrd)}, {srd(SRD_WS)}, s{sOML} offen offset:16 sc1')
if H2A: a('s_waitcnt vmcnt(0)')
else: a(f's_cmp_lg_u32 s{sL}, 0\ns_cbranch_scc1 L_o_noack\ns_waitcnt vmcnt(0)\nL_o_noack:')
o_issue()
a(f's_cmp_lg_u32 s{sL}, 0\ns_cbranch_scc1 L_o_wait')
w_tr(RWO,1,2)
if WGP2:
    a('s_waitcnt lgkmcnt(4)')
    w_tr(RWG,0,2)
    a('s_branch L_o_wait')
elif ALLW:
    a('s_waitcnt lgkmcnt(4)')
    w_tr(RWG,0,2)
    a('s_waitcnt lgkmcnt(4)')
    w_tr(RWD,2,1)
    a('s_branch L_o_wait')
elif WGE:
    a(f's_cmp_ge_u32 s{sS}, 14\ns_cbranch_scc1 L_o_wait')
    w_dma(SRD_WGU, vWguo, 0, 4, 3584, NTW)
    a('s_waitcnt vmcnt(4)\ns_branch L_o_chk')
else:
    a('s_branch L_o_wait')
a('L_o_retry:')
o_issue()
a('L_o_wait:\ns_waitcnt vmcnt(0)')
a('L_o_chk:')
a(f'ds_read_b128 {vr(A0,4)}, {v(vOst0)}\nds_read_b128 {vr(A1,4)}, {v(vOst1)}\ns_waitcnt lgkmcnt(0)')
check_valid(range(T,T+16),'L_o_ok',T+16)
spin_check('L_o_retry')
a('L_o_ok:')
stamp('o_ok')
if WGP2 and WDO:
    a(f's_cmp_lg_u32 s{sL}, 0\ns_cbranch_scc1 L_p3_go\ns_cmp_eq_u32 s{sW}, 7\ns_cbranch_scc1 L_p3_go')
    w_dma(SRD_WD, vWdo, 2, 2, 1024, NTW)
    a('L_p3_go:')
elif not WGE and not ALLW and not WGP2:
    if WDOK:
        a(f's_cmp_lg_u32 s{sL}, 0\ns_cbranch_scc1 L_p3_go\ns_cmp_ge_u32 s{sS}, 14\ns_cbranch_scc1 L_p3_nog')
        w_dma(SRD_WGU, vWguo, 0, 4, 3584, NTW, WGS)
        a(f'L_p3_nog:\ns_cmp_eq_u32 s{sW}, 7\ns_cbranch_scc1 L_p3_go')
        w_dma(SRD_WD, vWdo, 1, 2, 1024, NTW)
    else:
        a(f's_cmp_lg_u32 s{sL}, 0\ns_cbranch_scc1 L_p3_go\ns_cmp_ge_u32 s{sS}, 14\ns_cbranch_scc1 L_p3_go')
        w_dma(SRD_WGU, vWguo, 0, 4, 3584, NTW, WGS)
    if 'd' in PFX:
        a(f's_cmp_eq_u32 s{sW}, 7\ns_cbranch_scc1 L_p3_go')
        pf_wd()
    a('L_p3_go:')
E0,E1=T+16,T+20
a(f'v_mfma_f32_16x16x32_bf16 {vr(E0,4)}, {vr(A0,4)}, {vr(RWO,4)}, 0')
a(f'v_mfma_f32_16x16x32_bf16 {vr(E1,4)}, {vr(A0,4)}, {vr(RWO+4,4)}, 0')
a(f'v_mfma_f32_16x16x32_bf16 {vr(E0,4)}, {vr(A1,4)}, {vr(RWO+8,4)}, {vr(E0,4)}')
a(f'v_mfma_f32_16x16x32_bf16 {vr(E1,4)}, {vr(A1,4)}, {vr(RWO+12,4)}, {vr(E1,4)}')
Mx,tt,Lt=T+24,T+25,T+26
M=[ML0,ML0+2,ML0+4,ML0+6]; Lr=[x+1 for x in M]
a(f'''
v_max3_f32 {v(Mx)}, {v(M[0])}, {v(M[1])}, {v(M[2])}
v_max_f32 {v(Mx)}, {v(Mx)}, {v(M[3])}
v_mov_b32 {v(tt)}, {v(Mx)}
v_permlane16_swap_b32 {v(Mx)}, {v(tt)}
v_max_f32 {v(Mx)}, {v(Mx)}, {v(tt)}
v_mov_b32 {v(tt)}, {v(Mx)}
v_permlane32_swap_b32 {v(Mx)}, {v(tt)}
v_max_f32 {v(Mx)}, {v(Mx)}, {v(tt)}
''')
for r in range(4): a(f'v_sub_f32 {v(M[r])}, {v(M[r])}, {v(Mx)}')
for r in range(4): a(f'v_exp_f32 {v(M[r])}, {v(M[r])}')
a(f'v_mul_f32 {v(Lt)}, {v(M[0])}, {v(Lr[0])}')
for r in range(1,4): a(f'v_fmac_f32 {v(Lt)}, {v(M[r])}, {v(Lr[r])}')
Y0,Y1=T+27,T+28
a(f'''
v_mov_b32 {v(tt)}, {v(Lt)}
v_mul_f32 {v(Y0)}, {v(M[0])}, {v(E0)}
v_mul_f32 {v(Y1)}, {v(M[0])}, {v(E1)}
v_permlane16_swap_b32 {v(Lt)}, {v(tt)}
v_add_f32 {v(Lt)}, {v(Lt)}, {v(tt)}
v_fmac_f32 {v(Y0)}, {v(M[1])}, {v(E0+1)}
v_fmac_f32 {v(Y1)}, {v(M[1])}, {v(E1+1)}
v_mov_b32 {v(tt)}, {v(Lt)}
v_fmac_f32 {v(Y0)}, {v(M[2])}, {v(E0+2)}
v_fmac_f32 {v(Y1)}, {v(M[2])}, {v(E1+2)}
v_permlane32_swap_b32 {v(Lt)}, {v(tt)}
v_add_f32 {v(Lt)}, {v(Lt)}, {v(tt)}
v_fmac_f32 {v(Y0)}, {v(M[3])}, {v(E0+3)}
v_fmac_f32 {v(Y1)}, {v(M[3])}, {v(E1+3)}
v_rcp_f32 {v(Lt)}, {v(Lt)}
v_permlane32_swap_b32 {v(Y0)}, {v(Y1)}
v_add_f32 {v(Y0)}, {v(Y0)}, {v(Y1)}
v_mov_b32 {v(tt)}, {v(Y0)}
v_permlane16_swap_b32 {v(Y0)}, {v(tt)}
v_add_f32 {v(Y0)}, {v(Y0)}, {v(tt)}
v_mul_f32 {v(Y0)}, {v(Y0)}, {v(Lt)}
s_mov_b32 exec_lo, 0xffff
s_mov_b32 exec_hi, 0xffff
ds_write_b32 {v(vP3w)}, {v(Y0)}
s_mov_b64 exec, -1
s_waitcnt lgkmcnt(0)
s_barrier
''')
stamp('p3_bar')
def final8(rd, n, soff, lab, extra=None):
    if extra:
        l0=lbl('f8x')
        a(f's_cmp_eq_u32 s{sW}, 0\ns_cbranch_scc1 {l0}')
        extra(); a(f's_branch {lab}\n{l0}:')
    else:
        a(f's_cmp_lg_u32 s{sW}, 0\ns_cbranch_scc1 {lab}')
    a(f'ds_read_b128 {vr(T,4)}, {v(rd)}\nds_read_b128 {vr(T+4,4)}, {v(rd)} offset:16\ns_waitcnt lgkmcnt(0)')
    a(f'''v_add_f32 {v(T)}, {v(T)}, {v(T+1)}
v_add_f32 {v(T+2)}, {v(T+2)}, {v(T+3)}
v_add_f32 {v(T+4)}, {v(T+4)}, {v(T+5)}''')
    if n==8: a(f'v_add_f32 {v(T+6)}, {v(T+6)}, {v(T+7)}')
    a(f'''v_add_f32 {v(T)}, {v(T)}, {v(T+2)}
v_add_f32 {v(T+4)}, {v(T+4)}, {v(T+6)}
v_add_f32 {v(T)}, {v(T)}, {v(T+4)}
v_mov_b32_dpp {v(T+1)}, {v(T)} quad_perm:[1,1,3,3] row_mask:0xf bank_mask:0xf
v_cvt_pk_bf16_f32 {v(T)}, {v(T)}, {v(T+1)}
v_min_u32 {v(T)}, -2, {v(T)}
s_mov_b32 exec_lo, 0x55555555
s_mov_b32 exec_hi, 0
buffer_store_dword {v(T)}, {v(vDwr)}, {srd(SRD_WS)}, s{soff} offen sc1
s_mov_b64 exec, -1''')
    if extra: extra()
    ack()
    a(f'{lab}:')
    if ACK: a('s_barrier')
def wgu_pretr():
    l=lbl('ptr')
    if WDOK:
        a(f's_cmp_lg_u32 s{sL}, 0\ns_cbranch_scc1 {l}')
        a('s_waitcnt vmcnt(0)')
        w_tr(RWG,0,2)
        a('s_waitcnt lgkmcnt(4)')
        w_tr(RWD,1,1)
    else:
        a(f's_cmp_lg_u32 s{sL}, 0\ns_cbranch_scc1 {l}\ns_cmp_ge_u32 s{sS}, 14\ns_cbranch_scc1 {l}')
        a('s_waitcnt vmcnt(0)')
        w_tr(RWG,0,2)
    a(f's_waitcnt lgkmcnt(0)\n{l}:')
final8(vP3r, 8, sOD1, 'L_p3_done', wgu_pretr if PRETR else None)
stamp('p3_done')
d_issue(sOD1)
if not PRETR:
    a(f's_cmp_lg_u32 s{sL}, 0\ns_cbranch_scc1 L_p4_w')
    if WDE and not ALLW and not WGP2:
        a(f's_cmp_eq_u32 s{sW}, 7\ns_cbranch_scc1 L_p4_w7')
        w_dma(SRD_WD, vWdo, 1, 2, 1024, NTW)
        a('s_waitcnt vmcnt(2)\ns_branch L_p4_tr\nL_p4_w7:')
    if ALLW or WGP2:
        a(f's_cmp_ge_u32 s{sS}, 14\ns_cbranch_scc1 L_p4_idle0')
        ln_prev(RWG, True)
        a('s_waitcnt vmcnt(0)')
    else:
        a('s_waitcnt vmcnt(0)\nL_p4_tr:')
        a(f's_cmp_ge_u32 s{sS}, 14\ns_cbranch_scc1 L_p4_idle')
        w_tr(RWG,0,2)
        a('s_waitcnt lgkmcnt(0)')
        ln_prev(RWG, True)
    a('s_branch L_p4_chk')
else:
    a('s_branch L_p4_w\nL_p4_idle:\ns_branch L_p4_idle9')
a('L_p4_w:')
a(f's_cmp_ge_u32 s{sS}, 14\ns_cbranch_scc1 L_p4_idle0')
ln_prev(RWG, False)
a('s_waitcnt vmcnt(0)')
if not PRETR: a('L_p4_chk:')
d_check(sOD1,'d1_ok')
if not WDOK and ((not WDE and not ALLW and not WGP2) or (WGP2 and not WDO)):
    a(f's_cmp_lg_u32 s{sL}, 0\ns_cbranch_scc1 L_p4_nowd\ns_cmp_eq_u32 s{sW}, 7\ns_cbranch_scc1 L_p4_nowd')
    w_dma(SRD_WD, vWdo, 2 if WGP2 else 1, 2, 1024, NTW)
    a('L_p4_nowd:')
def gu_pub():
    pub_store(f'buffer_store_dword {v(T+12)}, {v(vGUwr)}, {srd(SRD_WS)}, s{sOGU} offen')
    if ACK and H4A:
        l=lbl('gua')
        a(f's_cmp_eq_u32 s{sL}, 0\ns_cbranch_scc1 {l}\ns_waitcnt vmcnt(0)\n{l}:')
ln_post(RWG, gu_pub, 'p4', vCSG)
if ACK and H4A: a('s_barrier')
a('s_branch L_p4_done')
a('L_p4_idle0:\ns_waitcnt vmcnt(0)\n'+('L_p4_idle9:' if PRETR else 'L_p4_idle:'))
d_check(sOD1)
if not WDOK and ((not WDE and not ALLW and not WGP2) or (WGP2 and not WDO)):
    a(f's_cmp_lg_u32 s{sL}, 0\ns_cbranch_scc1 L_p4_nowd2\ns_cmp_eq_u32 s{sW}, 7\ns_cbranch_scc1 L_p4_nowd2')
    w_dma(SRD_WD, vWdo, 2 if WGP2 else 1, 2, 1024, NTW)
    a('L_p4_nowd2:')
ident_mfma()
x_update(d_sum())
a(f'ds_write_b16 {v(vXw)}, {v(XB)}')
a('L_p4_done:')
stamp('p4_done')
a(f's_cmp_eq_u32 s{sW}, 7\ns_cbranch_scc1 L_p5_bar')
def gu_issue():
    a(f'buffer_load_dword {v(T)}, {v(vGUrd)}, {srd(SRD_WS)}, s{sOGU} offen sc1')
    a(f'buffer_load_dword {v(T+1)}, {v(vGUrd)}, {srd(SRD_WS)}, s{sOGU} offen offset:512 sc1')
a('L_gu_retry:')
gu_issue()
a('L_gu_wait:\ns_waitcnt vmcnt(0)')
check_valid([T,T+1],'L_gu_ok',T+2)
spin_check('L_gu_retry')
a('L_gu_ok:')
if not ALLW and not WDOK:
    a(f's_cmp_lg_u32 s{sL}, 0\ns_cbranch_scc1 L_gu_nowd')
    w_tr(RWD,2 if WGP2 else 1,1)
    a('L_gu_nowd:')
stamp('gu_ok')
a(f'''
v_lshlrev_b32 {v(T)}, {v(vSh)}, {v(T)}
v_lshlrev_b32 {v(T+1)}, {v(vSh)}, {v(T+1)}
v_and_b32 {v(T)}, 0xffff0000, {v(T)}
v_and_b32 {v(T+1)}, 0xffff0000, {v(T+1)}
v_mul_f32 {v(T)}, s{sNL2E}, {v(T)}
v_exp_f32 {v(T)}, {v(T)}
v_add_f32 {v(T)}, 1.0, {v(T)}
v_rcp_f32 {v(T)}, {v(T)}
v_mul_f32 {v(T)}, {v(T)}, {v(T+1)}
v_cvt_pk_bf16_f32 {v(T)}, {v(T)}, {v(T)}
ds_write_b16 {v(vHw)}, {v(T)}
s_waitcnt lgkmcnt(0)
ds_read_b128 {vr(T+4,4)}, {v(vHr)}
s_waitcnt lgkmcnt(0)
v_mfma_f32_16x16x32_bf16 {vr(T+8,4)}, {vr(T+4,4)}, {vr(RWD,4)}, 0
v_mfma_f32_16x16x32_bf16 {vr(T+12,4)}, {vr(T+4,4)}, {vr(RWD+4,4)}, 0
s_mov_b64 exec, 0xffff
ds_write_b32 {v(vP5w)}, {v(T+8)}
ds_write_b32 {v(vP5w)}, {v(T+12)} offset:{16*48}
s_mov_b64 exec, -1
L_p5_bar:
s_waitcnt lgkmcnt(0)
s_barrier
''')
stamp('p5_bar')
final8(vP5r, 7, sOD2, 'L_p5_done')
stamp('p5_done')
a(f's_cmp_lg_u32 s{sL}, 0\ns_cbranch_scc1 L_final')
a(f'''
s_mov_b32 s{sL}, 1
s_mov_b32 s{sOGU}, 0x400
s_mov_b32 s{sOML}, 0x200
s_mov_b32 s{sOD1}, 0x4000
s_mov_b32 s{sOD2}, 0xC000
s_mov_b32 s{sOO}, 0x4000
s_mov_b32 s{sOO2}, {0x4000+7168}
s_waitcnt lgkmcnt(0)
s_branch L_layer
''')
a('L_final:')
a(f'''
s_cmp_lg_u32 s{sC}, 0
s_cbranch_scc1 L_fin_stamps
s_lshr_b32 s{sT0}, s{sS}, 1
s_cmp_lg_u32 s{sW}, s{sT0}
s_cbranch_scc1 L_fin_stamps
''')
d_issue(sOD2)
a('s_waitcnt vmcnt(0)')
d_check(sOD2)
ident_mfma()
x_update(d_sum())
a(f'''
s_and_b32 s{sT0}, s{sS}, 1
s_cmp_eq_u32 s{sT0}, 0
s_cselect_b32 exec_lo, -1, 0
s_cselect_b32 exec_hi, 0, -1
s_lshl_b32 s{sT0}, s{sB}, 10
v_lshl_add_u32 {v(T)}, v0, 1, s{sT0}
buffer_store_short {v(XB)}, {v(T)}, {srd(SRD_OUT)}, 0 offen
s_mov_b64 exec, -1
s_cmp_lg_u32 s{sS}, 0
s_cbranch_scc1 L_fin_stamps
s_lshl_b32 s{sT0}, s{sB}, 7
s_add_u32 s{sT0}, s{sT0}, {EB}
v_mov_b32 {v(T+2)}, s{sT0}
v_mov_b32 {v(T+1)}, s{sTAG}
s_mov_b64 exec, 1
buffer_store_dword {v(T+1)}, {v(T+2)}, {srd(SRD_WS)}, 0 offen sc1
s_mov_b64 exec, -1
L_fin_stamps:
''')
if int(opt.get('dbgfast',0)):
    a(f'''s_cmp_lg_u32 s{sW}, 0
s_cbranch_scc1 L_nodbg
s_lshl_b32 s{sT0}, s2, 2
s_add_u32 s{sT0}, s{sT0}, 0xE2000
v_mov_b32 {v(T+2)}, s{sT0}
s_lshl_b32 s{sT1}, s{sXCC}, 4
s_or_b32 s{sT1}, s{sT1}, s{sFAST}
v_mov_b32 {v(T+1)}, s{sT1}
s_mov_b64 exec, 1
buffer_store_dword {v(T+1)}, {v(T+2)}, {srd(SRD_WS)}, 0 offen
s_mov_b64 exec, -1
L_nodbg:''')
if STAMPS:
    stamp('end')
    a(f'''
s_lshl_b32 s{sT0}, s2, 3
s_add_u32 s{sT0}, s{sT0}, s{sW}
s_lshl_b32 s{sT0}, s{sT0}, 8
s_add_u32 s{sT0}, s{sT0}, {STAMP_OFF}
v_lshl_add_u32 {v(T)}, {v(vL)}, 2, s{sT0}
buffer_store_dword {v(vSTAMP)}, {v(T)}, {srd(SRD_WS)}, 0 offen
''')
a('s_branch L_end')
a('L_bail:')
a('L_end:\ns_endpgm')
lines=a.text().split('\n')
lines,added=haz.fix(lines)
sys.stderr.write(f'auto nops: {added}; stamps: {stamp_names}\n')
open(sys.argv[1],'w').write(wrap('\n'.join(lines),256,512,LDS_BYTES,nvgpr=256,nsgpr=102))
if STAMPS: open(sys.argv[1]+'.stamps','w').write(','.join(stamp_names))
```

```python
import sys
from asmlib import *
import haz
opt=dict(a.split('=') for a in sys.argv[2:])
STAMPS=int(opt.get('stamps',0)); CPF=int(opt.get('cpf',1))
NT=opt.get('nt','nt'); NTW=opt.get('ntw','nt')
ROLE=opt.get('role','xcd')
FORCESLOW=int(opt.get('slow',0))
SPIN=int(opt.get('spin',1<<17))
ACK=int(opt.get('ack',1))
a=Asm()
GRPSZ=0xC000; QB=0x0400; GUB=0x0800; MLB=0x1000; OB=0x2000
D1B=0xC0000
Q0T=0xD0000; FB=0xE0000; EB=0xE1000; EPC=0x9E3779B9
STAMP_OFF=0x10000000
LV=0; LW=65536; SB=131072
LX=SB; LZ=SB+1024; LPARTC=SB+1280; LPART=SB+2816+0; LPL=SB+4864; LML=SB+6912; LP3=SB+7168; LHB=SB+8704; LP5=SB+9216; LFAST=SB+10752; LQ=SB+10880; LDUM=SB+12288; LWD=SB+12288
LDS_BYTES=SB+12288+16384
BG=int(opt.get('bg',0)); QPAD=int(opt.get('qpad',0)); WDOK=int(opt.get('wdok',0)); VHELP=int(opt.get('vhelp',0)); MO=int(opt.get('mo',0)); H1W=int(opt.get('h1w',0)); H4A=int(opt.get('h4a',1)); H2A=int(opt.get('h2a',1)); WOS=int(opt.get('wos',0)); PFX=opt.get('pfx',''); KMID=int(opt.get('kmid',0)); PT=int(opt.get('pt',0)); P2O=int(opt.get('p2o',0)); PRETR=int(opt.get('pretr',0)); WGS=int(opt.get('wgs',0)); KF=int(opt.get('kf',0)); NVE=int(opt.get('nve',0)); KDMA=int(opt.get('kdma',0)); KE=int(opt.get('ke',0)) or KF; PF3=opt.get('pf3','q'); WGP2=int(opt.get('wgp2',0)); WDO=int(opt.get('wdo',0)); ALLW=int(opt.get('allw',0)); VBAR=int(opt.get('vbar',1)); WGE=int(opt.get('wge',1)); WDE=int(opt.get('wde',1)); ILV=int(opt.get('ilv',0)); PF=int(opt.get('pf',1)); NVA=int(opt.get('nva',4)); NV1=int(opt.get('nv1',0)); PFW=int(opt.get('pfw',0)); QBAR=int(opt.get('qbar',1)); WOLATE=int(opt.get('wolate',1)); WGLATE=int(opt.get('wglate',1)); KBAR=int(opt.get('kbar',1)); NTP=opt.get('ntp','')
sW,sC,sR,sB,sS=3,4,5,6,7
SRD_K,SRD_V,SRD_WQ,SRD_WO,SRD_WGU,SRD_WD,SRD_WS,SRD_OUT,SRD_X=32,36,40,44,48,52,56,64,68
sTAG,sXCC,sOO2,sOD2P=60,61,62,63
sL,sFAST,sOGU,sOML,sOD1,sOD2,sOO,sSPIN,s4096,sCS=72,73,76,77,78,79,80,81,82,83
sT0,sT1=84,85
mI4,mEVEN,mI0=86,88,90
sT2,sT3=92,93
mLO=100; sNL2E=94; sGRP=95; sT4,sT5=96,97; sSTP=98
def srd(n): return f's[{n}:{n+3}]'
vTID,vL,vI,vG=0,1,2,3
(vXw,vXr,vPw,vPr,vDrd,vDwr,vQrd,vQwr,vGUwr,vGUrd,vOwr,vOrd,vMLwr,vMLrd,vPLw,vPLr,vMLw,vMLr,vP3w,vP3r,vHw,vHr,vP5w,vP5r,vSh,vX,vSTAMP,vWN0,vWN1,vVr)=range(4,34)
vKo,vVoE,vVoO,vWqo,vWoo,vWguo,vWdo,vOst0,vOst1,vQl=range(34,44)
T=44
XB=T+36
vCSQ,vCSG=37,34
RK,RV,RWQ,RWO,RWG,RWD,RID=128,160,192,208,224,240,248
def v(n): return f'v{n}'
def vr(n,k): return f'v[{n}:{n+k-1}]'
nstamp=[0]; stamp_names=[]
STSEL=opt.get('stsel','')
def stamp(name):
    if not STAMPS: return
    if STAMPS==2 and name!='end' and name not in STSEL.split(','): return
    i=nstamp[0]; nstamp[0]+=1; stamp_names.append(name)
    a(f's_memtime s[{sSTP}:{sSTP+1}]\ns_mul_i32 m0, s{sL}, 30\ns_add_u32 m0, m0, {i+2}\ns_waitcnt lgkmcnt(0)\nv_writelane_b32 {v(vSTAMP)}, s{sSTP}, m0')
uid=[0]
def lbl(p):
    uid[0]+=1; return f'L_{p}_{uid[0]}'
def spin_check(retry):
    a(f's_add_u32 s{sSPIN}, s{sSPIN}, 1\ns_cmp_lt_u32 s{sSPIN}, {SPIN}\ns_cbranch_scc1 {retry}\ns_branch L_bail')
def check_valid(regs_, ok, tmp):
    rs=list(regs_)
    if len(rs)==2:
        a(f'v_max_u32 {v(tmp)}, {v(rs[0])}, {v(rs[1])}')
    else:
        a(f'v_max3_u32 {v(tmp)}, {v(rs[0])}, {v(rs[1])}, {v(rs[2])}')
        k=3; alt=[tmp,tmp+1]; used2=False
        if len(rs)>=8:
            a(f'v_max3_u32 {v(tmp+1)}, {v(rs[3])}, {v(rs[4])}, {v(rs[5])}'); k=6; used2=True
        tog=0
        while k<len(rs):
            d=alt[tog%2] if used2 else tmp
            if k+1<len(rs):
                a(f'v_max3_u32 {v(d)}, {v(d)}, {v(rs[k])}, {v(rs[k+1])}'); k+=2
            else:
                a(f'v_max_u32 {v(d)}, {v(d)}, {v(rs[k])}'); k+=1
            tog+=1
        if used2: a(f'v_max_u32 {v(tmp)}, {v(tmp)}, {v(tmp+1)}')
    a(f'v_cmp_eq_u32 vcc, -1, {v(tmp)}')
    a(f's_cbranch_vccz {ok}')
def exec_all(): a('s_mov_b64 exec, -1')
def exec_mask(m): a(f's_mov_b64 exec, s[{m}:{m+1}]')
def pub_store(instr):
    l1=lbl('pubs'); l2=lbl('pubd')
    a(f's_cmp_eq_u32 s{sFAST}, 0\ns_cbranch_scc1 {l1}')
    a(instr); a(f's_branch {l2}'); a(f'{l1}:'); a(instr+' sc1'); a(f'{l2}:')
def ack():
    if ACK: a('s_waitcnt vmcnt(0)')

a(f'''
s_cmp_ge_u32 s2, 256
s_cbranch_scc1 L_end
s_load_dwordx16 s[8:23], s[0:1], 0
s_load_dwordx8 s[24:31], s[0:1], 64
''')
if CPF:
    a(f'''s_getpc_b64 s[74:75]
L_pc:
s_sub_u32 s74, s74, L_pc-{NAME}
s_subb_u32 s75, s75, 0
s_lshr_b32 s76, s2, 3
s_and_b32 s76, s76, {CPF if CPF>1 else 1}
s_lshl_b32 s76, s76, 13
v_lshlrev_b32 v126, 7, v0
v_add_u32 v126, s76, v126
v_min_u32 v126, L_end-{NAME}, v126
v_cmp_gt_u32 vcc, 64, v0
s_and_saveexec_b64 s[76:77], vcc
s_cbranch_execz L_cpf_done
global_load_dword v127, v126, s[74:75]
L_cpf_done:
s_mov_b64 exec, s[76:77]''')
if STAMPS:
    a(f's_memrealtime s[{sT4}:{sT5}]\ns_memtime s[{sSTP}:{sSTP+1}]')
a(f'''
v_lshrrev_b32 {v(T)}, 6, v0
v_and_b32 {v(vL)}, 63, v0
v_and_b32 {v(vI)}, 15, v0
v_readfirstlane_b32 s{sW}, {v(T)}
v_lshrrev_b32 {v(vG)}, 4, {v(vL)}
''')
if ROLE=='xcd':
    a(f's_and_b32 s{sC}, s2, 7\ns_lshr_b32 s{sR}, s2, 3')
else:
    a(f's_lshr_b32 s{sC}, s2, 3\ns_and_b32 s{sC}, s{sC}, 7\ns_and_b32 s{sR}, s2, 7\ns_lshr_b32 s{sT0}, s2, 6\ns_lshl_b32 s{sT0}, s{sT0}, 3\ns_or_b32 s{sR}, s{sR}, s{sT0}')
a(f'''
s_lshr_b32 s{sB}, s{sR}, 4
s_and_b32 s{sS}, s{sR}, 15
s_lshl_b32 s{sGRP}, s{sB}, 3
s_add_u32 s{sGRP}, s{sGRP}, s{sC}       ; grp = b*8+c
s_mov_b32 s{s4096}, 4096
s_mov_b32 s{sL}, 0
; weight staging voffsets: row = l/4, chunk = (l%4) ^ (2*(l/32))
v_lshrrev_b32 {v(T)}, 2, {v(vL)}
v_and_b32 {v(T+1)}, 3, {v(vL)}
v_lshrrev_b32 {v(T+2)}, 5, {v(vL)}
v_lshlrev_b32 {v(T+2)}, 1, {v(T+2)}
v_xor_b32 {v(T+1)}, {v(T+1)}, {v(T+2)}
v_lshlrev_b32 {v(T+1)}, 4, {v(T+1)}          ; chunk*16
s_lshl_b32 s{sT0}, s{sW}, 6
v_add_u32 {v(T+2)}, s{sT0}, {v(T)}           ; row = 64w + l/4
v_lshl_add_u32 {v(vWqo)}, {v(T+2)}, 13, {v(T+1)}
v_lshl_add_u32 {v(vWoo)}, {v(T+2)}, 10, {v(T+1)}
s_mov_b32 s{sT1}, 3584
v_mul_lo_u32 {v(T+3)}, {v(T+2)}, s{sT1}
v_add_u32 {v(vWguo)}, {v(T+3)}, {v(T+1)}
s_lshl_b32 s{sT0}, s{sW}, 5
v_add_u32 {v(T+2)}, s{sT0}, {v(T)}           ; row = 32w + l/4
v_lshl_add_u32 {v(vWdo)}, {v(T+2)}, 10, {v(T+1)}
v_lshlrev_b32 {v(T+4)}, 1, v0
''')
if STAMPS:
    a(f's_waitcnt lgkmcnt(0)\nv_mov_b32 {v(vSTAMP)}, 0\nv_writelane_b32 {v(vSTAMP)}, s{sT4}, 0\nv_writelane_b32 {v(vSTAMP)}, s{sSTP}, 1')
a('s_waitcnt lgkmcnt(0)')
a(f'''
s_lshl_b32 s{sT0}, s{sB}, 10
s_add_u32 s{SRD_X}, s8, s{sT0}
s_addc_u32 s{SRD_X+1}, s9, 0
s_mov_b32 s{SRD_X+2}, 1024
s_mov_b32 s{SRD_X+3}, 0x20000
s_lshl_b32 s{sT0}, s{sC}, 10
s_lshl_b32 s{sT1}, s{sS}, 6
s_add_u32 s{sT0}, s{sT0}, s{sT1}
s_add_u32 s{SRD_WQ}, s14, s{sT0}
s_addc_u32 s{SRD_WQ+1}, s15, 0
s_sub_u32 s{SRD_WQ+2}, 4194304, s{sT0}
s_mov_b32 s{SRD_WQ+3}, 0x20000
buffer_load_ushort {v(vX)}, {v(T+4)}, {srd(SRD_X)}, 0 offen
''')
def w_dma(srd_, voff, slot, nins, rowstride, nt, n0=0):
    if slot==2: a(f's_lshl_b32 s{sT0}, s{sW}, 11\ns_add_u32 m0, s{sT0}, {LWD}')
    elif slot==3: a(f's_lshl_b32 s{sT0}, s{sW}, 13\ns_add_u32 m0, s{sT0}, {LV}')
    else: a(f's_lshl_b32 s{sT0}, s{sW}, 13\ns_add_u32 m0, s{sT0}, {LW+slot*4096}')
    for n in range(n0,nins):
        if n==0:
            a('s_nop 0'); so='0'
        else:
            a(f's_mov_b32 s{sT1}, {n*(16*rowstride-1024)}'); so=f's{sT1}'
        a(f'buffer_load_dwordx4 {v(voff)}, {srd(srd_)}, {so} offen offset:{n*1024} {nt} lds')
SRD_PF=SRD_X
def pf_setup(ptr_lo, size):
    a(f's_mov_b32 s{SRD_PF}, s{ptr_lo}\ns_mov_b32 s{SRD_PF+1}, s{ptr_lo+1}\ns_mov_b32 s{SRD_PF+2}, {size}\ns_mov_b32 s{SRD_PF+3}, 0x20000')
def pf_m0():
    a(f's_lshl_b32 s{sT0}, s{sW}, 10\ns_add_u32 m0, s{sT0}, {LDUM}')
def pf_load(voff, soff):
    a(f'buffer_load_dwordx4 {v(voff)}, {srd(SRD_PF)}, {soff} offen {NTP} lds')
def pf_wq():
    if 'q' not in PFX: return 0
    pf_setup(14, 4194304); pf_m0()
    a(f's_lshl_b32 s{sT0}, s{sR}, 4\ns_lshl_b32 s{sT1}, s{sW}, 1\ns_add_u32 s{sT0}, s{sT0}, s{sT1}\ns_lshl_b32 s{sT0}, s{sT0}, 13\ns_lshl_b32 s{sT1}, s{sC}, 10\ns_add_u32 s{sT0}, s{sT0}, s{sT1}')
    a(f'v_lshlrev_b32 {v(T+10)}, 4, {v(vL)}')
    pf_load(T+10, f's{sT0}')
    a(f's_add_u32 s{sT0}, s{sT0}, 8192'); pf_load(T+10, f's{sT0}')
    return 2
def pf_wo():
    if 'o' not in PFX: return 0
    pf_setup(16, 4194304); pf_m0()
    a(f's_lshl_b32 s{sT0}, s{sC}, 19\ns_lshl_b32 s{sT1}, s{sR}, 14\ns_add_u32 s{sT0}, s{sT0}, s{sT1}\ns_lshl_b32 s{sT1}, s{sW}, 11\ns_add_u32 s{sT0}, s{sT0}, s{sT1}')
    a(f'v_lshlrev_b32 {v(T+62)}, 4, {v(vL)}')
    pf_load(T+62, f's{sT0}')
    a(f's_add_u32 s{sT0}, s{sT0}, 1024'); pf_load(T+62, f's{sT0}')
    return 2
def pf_wgu():
    if 'g' not in PFX: return 0
    pf_m0()
    a(f's_lshl_b32 s{sT0}, s{sR}, 4\ns_lshl_b32 s{sT1}, s{sW}, 1\ns_add_u32 s{sT0}, s{sT0}, s{sT1}\ns_mul_i32 s{sT0}, s{sT0}, 3584\ns_mul_i32 s{sT1}, s{sC}, 448\ns_add_u32 s{sT2}, s{sT0}, s{sT1}')
    a(f'v_lshrrev_b32 {v(T+62)}, 5, {v(vL)}\nv_mul_u32_u24 {v(T+62)}, 3584, {v(T+62)}\nv_and_b32 {v(T+63)}, 31, {v(vL)}\nv_lshl_add_u32 {v(T+62)}, {v(T+63)}, 4, {v(T+62)}')
    pf_setup(20, 1835008); pf_load(T+62, f's{sT2}')
    pf_setup(22, 1835008); pf_load(T+62, f's{sT2}')
    return 2
def pf_wd():
    if 'd' not in PFX: return 0
    pf_setup(24, 1835008); pf_m0()
    a(f's_mul_i32 s{sT0}, s{sC}, 229376\ns_mul_i32 s{sT1}, s{sR}, 7168\ns_add_u32 s{sT0}, s{sT0}, s{sT1}\ns_lshl_b32 s{sT1}, s{sW}, 10\ns_add_u32 s{sT0}, s{sT0}, s{sT1}')
    a(f'v_lshlrev_b32 {v(T+62)}, 4, {v(vL)}')
    pf_load(T+62, f's{sT0}')
    return 1
def pf3(which, wave, dst):
    if which not in PF3: return
    l=lbl('pf3')
    a(f's_cmp_lg_u32 s{sW}, {wave}\ns_cbranch_scc1 {l}')
    t0,t1=T+60,T+61
    if which=='q':
        pf_setup(14, 4194304)
        a(f'v_and_b32 {v(t0)}, 15, {v(vL)}\ns_lshl_b32 s{sT0}, s{sR}, 4\nv_add_u32 {v(t0)}, s{sT0}, {v(t0)}\nv_lshlrev_b32 {v(t0)}, 13, {v(t0)}\ns_lshl_b32 s{sT0}, s{sC}, 10\ns_add_u32 s{sT0}, s{sT0}, 384')
    elif which=='o':
        pf_setup(16, 4194304)
        a(f'v_and_b32 {v(t0)}, 15, {v(vL)}\ns_lshl_b32 s{sT0}, s{sR}, 4\nv_add_u32 {v(t0)}, s{sT0}, {v(t0)}\nv_lshlrev_b32 {v(t0)}, 10, {v(t0)}\ns_lshl_b32 s{sT0}, s{sC}, 19\ns_add_u32 s{sT0}, s{sT0}, 384')
    elif which=='d':
        pf_setup(24, 1835008)
        a(f'v_and_b32 {v(t0)}, 15, {v(vL)}\nv_min_u32 {v(t0)}, 6, {v(t0)}\ns_mul_i32 s{sT0}, s{sR}, 7\nv_add_u32 {v(t0)}, s{sT0}, {v(t0)}\nv_lshlrev_b32 {v(t0)}, 10, {v(t0)}\ns_mul_i32 s{sT0}, s{sC}, 229376\ns_add_u32 s{sT0}, s{sT0}, 384')
    if which in 'qod':
        a(f'v_lshrrev_b32 {v(t1)}, 4, {v(vL)}\nv_and_b32 {v(t1)}, 1, {v(t1)}\nv_lshl_add_u32 {v(t0)}, {v(t1)}, 6, {v(t0)}')
        a(f's_mov_b32 exec_hi, 0\nbuffer_load_dword {v(dst)}, {v(t0)}, {srd(SRD_PF)}, s{sT0} offen\ns_mov_b32 exec_hi, -1')
    else:
        a(f'''v_and_b32 {v(t0)}, 15, {v(vL)}
s_lshl_b32 s{sT0}, s{sR}, 4
v_add_u32 {v(t0)}, s{sT0}, {v(t0)}
v_mul_u32_u24 {v(t0)}, 28, {v(t0)}
s_mul_i32 s{sT0}, s{sC}, 7
s_lshr_b32 s{sT0}, s{sT0}, 1
v_add_u32 {v(t0)}, s{sT0}, {v(t0)}
v_sub_u32 {v(t1)}, 3, {v(t0)}
v_and_b32 {v(t1)}, 7, {v(t1)}
v_min_u32 {v(t1)}, 4, {v(t1)}
v_add_u32 {v(t0)}, {v(t0)}, {v(t1)}
v_lshlrev_b32 {v(t0)}, 7, {v(t0)}
v_lshrrev_b32 {v(t1)}, 4, {v(vL)}
v_and_b32 {v(t1)}, 1, {v(t1)}
v_lshl_add_u32 {v(t0)}, {v(t1)}, 6, {v(t0)}
s_mov_b32 exec_hi, 0''')
        pf_setup(20, 1835008); a(f'buffer_load_dword {v(dst)}, {v(t0)}, {srd(SRD_PF)}, 0 offen')
        pf_setup(22, 1835008); a(f'buffer_load_dword {v(dst+1)}, {v(t0)}, {srd(SRD_PF)}, 0 offen')
        a('s_mov_b32 exec_hi, -1')
    a(f'{l}:')
def w_tr(dst, slot, nkk):
    if slot==3:
        a(f'v_add_u32 {v(T+60)}, {(LV-LW)&0xffffffff}, {v(vWN0)}\nv_xor_b32 {v(T+61)}, 32, {v(T+60)}')
        for kk in range(nkk):
            for nt_ in range(2):
                for hh in range(2):
                    r=dst+(kk*2+nt_)*4+hh*2
                    a(f'ds_read_b64_tr_b16 {vr(r,2)}, {v(T+60 if nt_==0 else T+61)} offset:{kk*2048+hh*256}')
        return
    if slot==2:
        a(f's_mul_i32 s{sT0}, s{sW}, {(2048-8192)&0xffffffff}\ns_add_u32 s{sT0}, s{sT0}, {(LWD-LW)&0xffffffff}\nv_add_u32 {v(T+60)}, s{sT0}, {v(vWN0)}\nv_xor_b32 {v(T+61)}, 32, {v(T+60)}')
        for nt_ in range(2):
            for hh in range(2):
                r=dst+nt_*4+hh*2
                a(f'ds_read_b64_tr_b16 {vr(r,2)}, {v(T+60 if nt_==0 else T+61)} offset:{hh*256}')
        return
    for kk in range(nkk):
        for nt_ in range(2):
            for hh in range(2):
                r=dst+(kk*2+nt_)*4+hh*2
                a(f'ds_read_b64_tr_b16 {vr(r,2)}, {v(vWN0 if nt_==0 else vWN1)} offset:{slot*4096+kk*2048+hh*256}')
if KE:
    a(f'''s_mov_b32 s{SRD_WS}, s30
s_mov_b32 s{SRD_WS+1}, s31
s_mov_b32 s{SRD_WS+2}, 0x20000000
s_mov_b32 s{SRD_WS+3}, 0x20000
s_cmp_eq_u32 s{sW}, 0
s_cbranch_scc1 L_proto
L_proto_ret:''')
pf3('q',1,T+41)
NPQ=pf_wq()
if not PFW and not ILV: w_dma(SRD_WQ, vWqo, 3 if KF else 0, 4, 8192, NTW)
a(f'''
s_lshl_b32 s{sT0}, s{sGRP}, 23
s_lshl_b32 s{sT1}, s{sS}, 16
s_add_u32 s{sT0}, s{sT0}, s{sT1}
s_add_u32 s{sT0}, s{sT0}, 7340032
s_add_u32 s{SRD_V}, s12, s{sT0}
s_addc_u32 s{SRD_V+1}, s13, 0
s_mov_b32 s{SRD_V+2}, 65536
s_mov_b32 s{SRD_V+3}, 0x20000
s_add_u32 s{SRD_K}, s10, s{sT0}
s_addc_u32 s{SRD_K+1}, s11, 0
s_mov_b32 s{SRD_K+2}, 65536
s_mov_b32 s{SRD_K+3}, 0x20000
s_mov_b32 s{SRD_WS}, s30
s_mov_b32 s{SRD_WS+1}, s31
s_mov_b32 s{SRD_WS+2}, 0x20000000
s_mov_b32 s{SRD_WS+3}, 0x20000
; K voffset = w*8192 + i*256 + g*16
s_lshl_b32 s{sT0}, s{sW}, 13
v_lshlrev_b32 {v(T)}, 8, {v(vI)}
v_lshl_add_u32 {v(T)}, {v(vG)}, 4, {v(T)}
v_add_u32 {v(vKo)}, s{sT0}, {v(T)}
v_lshlrev_b32 {v(T)}, 1, {v(vG)}
v_xor_b32 {v(T)}, {v(T)}, {v(vI)}
v_lshlrev_b32 {v(T)}, 4, {v(T)}
v_lshl_add_u32 {v(vVoE)}, {v(vG)}, 8, {v(T)}
v_xor_b32 {v(vVoO)}, 128, {v(vVoE)}
''')
def k_tile(t):
    for kk in range(4):
        r=RK+(t*4+kk)*4
        so='0' if t==0 else f's{s4096}'
        a(f'buffer_load_dwordx4 {vr(r,4)}, {v(vKo)}, {srd(SRD_K)}, {so} offen offset:{kk*64} {NT}')
def k_first():
    l1=lbl('kf'); l2=lbl('kfd')
    a(f's_add_u32 s{sT0}, s{sW}, s{sS}\ns_bitcmp1_b32 s{sT0}, 0\ns_cbranch_scc1 {l1}')
    k_tile(0); a(f's_branch {l2}\n{l1}:'); k_tile(1); a(f'{l2}:')
def k_second():
    l1=lbl('ks'); l2=lbl('ksd')
    a(f's_add_u32 s{sT0}, s{sW}, s{sS}\ns_bitcmp1_b32 s{sT0}, 0\ns_cbranch_scc1 {l1}')
    k_tile(1); a(f's_branch {l2}\n{l1}:'); k_tile(0); a(f'{l2}:')
def k_dma():
    a(f'''v_xor_b32 {v(T+62)}, {v(vI)}, {v(vG)}
v_lshlrev_b32 {v(T+62)}, 4, {v(T+62)}
v_lshl_add_u32 {v(T+62)}, {v(vG)}, 8, {v(T+62)}
s_add_u32 s{sT2}, s{sW}, s{sS}
s_lshl_b32 s{sT3}, s{sW}, 13''')
    for n in range(8):
        a(f'''s_add_u32 s{sT0}, s{sT2}, {n}
s_and_b32 s{sT0}, s{sT0}, 7
s_and_b32 s{sT1}, s{sT0}, 3
s_lshl_b32 s{sT1}, s{sT1}, 6
v_xor_b32 {v(T+63)}, s{sT1}, {v(T+62)}
s_lshl_b32 s{sT0}, s{sT0}, 10
s_add_u32 s{sT0}, s{sT0}, s{sT3}
s_add_u32 m0, s{sT0}, {LW}
s_nop 0
buffer_load_dwordx4 {v(T+63)}, {srd(SRD_K)}, s{sT0} offen {NT} lds''')
def k_frags():
    a(f'''v_xor_b32 {v(T+62)}, {v(vI)}, {v(vG)}
v_lshlrev_b32 {v(T+62)}, 4, {v(T+62)}
v_lshl_add_u32 {v(T+62)}, {v(vI)}, 8, {v(T+62)}
s_lshl_b32 s{sT0}, s{sW}, 13
s_add_u32 s{sT0}, s{sT0}, {LW}
v_add_u32 {v(T+62)}, s{sT0}, {v(T+62)}''')
    for kk in range(4):
        if kk: a(f'v_xor_b32 {v(T+63)}, {64*kk}, {v(T+62)}')
        r=T+62 if kk==0 else T+63
        for t in range(2): a(f'ds_read_b128 {vr(RK+(t*4+kk)*4,4)}, {v(r)} offset:{t*4096}')
def e_load(dst):
    a(f's_lshl_b32 s{sT0}, s{sB}, 7\ns_add_u32 s{sT0}, s{sT0}, {EB}\nv_mov_b32 {v(dst)}, s{sT0}\nbuffer_load_dword {v(dst)}, {v(dst)}, {srd(SRD_WS)}, 0 offen sc1')
vE=T+30
def v_dma(n0,n1,owner=None):
    if owner is not None:
        a(f's_add_u32 s{sT2}, s{sS}, {owner}\ns_and_b32 s{sT2}, s{sT2}, 3\ns_lshl_b32 s{sT2}, s{sT2}, 1\ns_mov_b32 s{sT3}, {owner<<13}')
    else:
        a(f's_add_u32 s{sT2}, s{sW}, s{sS}\ns_and_b32 s{sT2}, s{sT2}, 3\ns_lshl_b32 s{sT2}, s{sT2}, 1\ns_lshl_b32 s{sT3}, s{sW}, 13')
    for n in range(n0,n1):
        a(f's_add_u32 s{sT0}, s{sT2}, {n}\ns_and_b32 s{sT0}, s{sT0}, 7\ns_lshl_b32 s{sT0}, s{sT0}, 10\ns_add_u32 s{sT0}, s{sT0}, s{sT3}')
        a(f's_add_u32 m0, s{sT0}, {LV}\ns_nop 0')
        a(f'buffer_load_dwordx4 {v(vVoE if n%2==0 else vVoO)}, {srd(SRD_V)}, s{sT0} offen {NT} lds')
def v_pos(hi, n0, n1):
    if n1<=n0: return
    a(f's_add_u32 s{sT2}, s{sW}, s{sS}\ns_lshl_b32 s{sT2}, s{sT2}, 1\ns_lshl_b32 s{sT3}, s{sW}, 13')
    for n in range(n0,n1):
        a(f's_add_u32 s{sT0}, s{sT2}, {n}\ns_and_b32 s{sT0}, s{sT0}, 3\ns_add_u32 s{sT0}, s{sT0}, {4 if hi else 0}\ns_lshl_b32 s{sT0}, s{sT0}, 10\ns_add_u32 s{sT0}, s{sT0}, s{sT3}')
        a(f's_add_u32 m0, s{sT0}, {LV}\ns_nop 0')
        a(f'buffer_load_dwordx4 {v(vVoE if n%2==0 else vVoO)}, {srd(SRD_V)}, s{sT0} offen {NT} lds')
def v_rest():
    if KF:
        v_pos(True,NVE,4); v_pos(False,0,4)
    else: v_dma(NVA,8)
def wq_one(n):
    a(f's_lshl_b32 s{sT0}, s{sW}, 13\ns_add_u32 m0, s{sT0}, {LW}\ns_mov_b32 s{sT1}, {n*(16*8192-1024)}')
    a(f'buffer_load_dwordx4 {v(vWqo)}, {srd(SRD_WQ)}, s{sT1} offen offset:{n*1024} {NTW} lds')
def ilv_issue():
    nv=0
    for n in range(4):
        wq_one(n)
        k=min(ILV, NVA-nv) if n<3 else NVA-nv
        v_dma(nv,nv+k); nv+=k
    return k
if ILV:
    a(f's_cmp_eq_u32 s{sW}, 0\ns_cbranch_scc1 L_proto')
    a(f's_cmp_lg_u32 s{sW}, 7\ns_cbranch_scc1 L_va')
    e_load(vE)
    a('L_va:')
    NTAIL=ilv_issue()
    a('s_branch L_pre_p1')
elif PFW:
    v_dma(0,NV1)
    a(f's_waitcnt vmcnt({NV1})')
    w_dma(SRD_WQ, vWqo, 0, 4, 8192, NTW)
else:
    v_dma(0,NV1)
if KE:
    if QBAR: a('s_barrier')
    a(f's_cmp_lg_u32 s{sW}, 7\ns_cbranch_scc1 L_va')
    e_load(vE)
    a('L_va:')
    if KF:
        k_dma(); v_pos(True,0,NVE); NTAIL=8+NVE
    else:
        v_dma(0,NVA)
        k_first(); k_second()
        NTAIL=NVA+8
    a('s_branch L_pre_p1')
elif not ILV:
    if QBAR: a('s_barrier')
    a(f's_cmp_eq_u32 s{sW}, 0\ns_cbranch_scc1 L_proto')
    a(f's_cmp_lg_u32 s{sW}, 7\ns_cbranch_scc1 L_va')
    e_load(vE)
    a('L_va:')
    v_dma(NV1,NVA)
    a('s_branch L_pre_p1')
    NTAIL=NVA-NV1
OLDCPF='' if CPF else '''; code prefetch into L2: (r&7)*2KB + lane*128 (16 lanes), clamped to the code size
s_getpc_b64 s[74:75]
L_pc:
s_sub_u32 s74, s74, L_pc-'''+NAME+'''
s_subb_u32 s75, s75, 0
s_and_b32 s84, s5, 7
s_lshl_b32 s84, s84, 11
v_and_b32 v45, 15, v1
v_lshl_add_u32 v45, v45, 7, s84
v_min_u32 v45, L_end-'''+NAME+''', v45
global_load_dword v84, v45, s[74:75]
'''
a('L_proto:')
e_load(vE)
a(f'''
s_mul_i32 s{sT0}, s{sGRP}, {GRPSZ}
s_mul_i32 s{sT1}, s{sS}, 3072
s_add_u32 s{sT0}, s{sT0}, s{sT1}
v_lshl_add_u32 {v(T)}, {v(vL)}, 4, s{sT0}
v_mov_b32 {v(T+4)}, -1
v_mov_b32 {v(T+5)}, -1
v_mov_b32 {v(T+6)}, -1
v_mov_b32 {v(T+7)}, -1
buffer_store_dwordx4 {vr(T+4,4)}, {v(T)}, {srd(SRD_WS)}, 0 offen sc1
buffer_store_dwordx4 {vr(T+4,4)}, {v(T)}, {srd(SRD_WS)}, 0 offen offset:1024 sc1
buffer_store_dwordx4 {vr(T+4,4)}, {v(T)}, {srd(SRD_WS)}, 0 offen offset:2048 sc1
; my four 64-byte partial-sum pieces: D1B + b*0x2000 + (s/2)*1024 + c*128 + (s%2)*64 + (l>>2)*0x4000 + (l&3)*16
s_lshl_b32 s{sT0}, s{sB}, 13
s_lshr_b32 s{sT1}, s{sS}, 1
s_lshl_b32 s{sT1}, s{sT1}, 10
s_add_u32 s{sT0}, s{sT0}, s{sT1}
s_lshl_b32 s{sT1}, s{sC}, 7
s_add_u32 s{sT0}, s{sT0}, s{sT1}
s_and_b32 s{sT1}, s{sS}, 1
s_lshl_b32 s{sT1}, s{sT1}, 6
s_add_u32 s{sT0}, s{sT0}, s{sT1}
s_add_u32 s{sT0}, s{sT0}, {D1B}
v_lshrrev_b32 {v(T+1)}, 2, {v(vL)}
v_lshlrev_b32 {v(T+1)}, 14, {v(T+1)}
v_and_b32 {v(T+2)}, 3, {v(vL)}
v_lshl_add_u32 {v(T+1)}, {v(T+2)}, 4, {v(T+1)}
v_add_u32 {v(T+1)}, s{sT0}, {v(T+1)}
s_mov_b64 exec, 0xffff
buffer_store_dwordx4 {vr(T+4,4)}, {v(T+1)}, {srd(SRD_WS)}, 0 offen sc1
s_mov_b64 exec, -1
{OLDCPF}
''')
if ILV: ilv_issue()
if KE: a('s_branch L_proto_ret')
a('L_pre_p1:')
stamp('issued0')
a(f's_getreg_b32 s{sXCC}, hwreg(HW_REG_XCC_ID, 0, 4)')
MLFIX=f'''v_and_b32 {v(T)}, 7, {v(vI)}
v_lshl_add_u32 {v(vMLr)}, {v(T)}, 3, {v(vMLr)}''' if P2O else ''
if MO:
    MLFIX=f'''s_lshl_b32 s{sT2}, s{sW}, 5
s_add_u32 s{sT2}, s{sT2}, {LDUM}
v_lshlrev_b32 {v(T)}, 8, {v(vI)}
v_add_u32 {v(T)}, s{sT2}, {v(T)}
v_lshl_add_u32 {v(vMLw)}, {v(vG)}, 2, {v(T)}
v_and_b32 {v(T)}, 7, {v(vI)}
v_lshlrev_b32 {v(T)}, 5, {v(T)}
v_lshl_add_u32 {v(T)}, {v(vG)}, 8, {v(T)}
v_add_u32 {v(vMLr)}, {LDUM}, {v(T)}'''
QS=320 if QPAD else 256
a(f'''
v_lshlrev_b32 {v(vXw)}, 1, v0
v_add_u32 {v(vXw)}, {LX}, {v(vXw)}
s_lshl_b32 s{sT0}, s{sW}, 7
v_lshl_add_u32 {v(vXr)}, {v(vG)}, 4, s{sT0}
v_add_u32 {v(vXr)}, {LX}, {v(vXr)}
v_cmp_eq_u32 vcc, 0, {v(vI)}
v_mov_b32 {v(T)}, {LZ}
s_lshl_b32 s{sT1}, s{sW}, 3
v_cndmask_b32 {v(vXr)}, {v(T)}, {v(vXr)}, vcc
s_lshl_b32 s{sT2}, s{sW}, 2
s_add_u32 s{sT2}, s{sT2}, {LPART+32*48}
v_mov_b32 {v(vPw)}, s{sT2}
v_min_u32 {v(T)}, 33, {v(vL)}
v_mul_u32_u24 {v(T)}, 48, {v(T)}
v_add_u32 {v(vPr)}, {LPART}, {v(T)}
s_lshl_b32 s{sT0}, s{sW}, 8
v_lshlrev_b32 {v(T)}, 6, {v(vI)}
v_lshl_add_u32 {v(T)}, {v(vG)}, 4, {v(T)}
v_add_u32 {v(T)}, s{sT0}, {v(T)}
v_add_u32 {v(vPLw)}, {LPL}, {v(T)}
v_lshrrev_b32 {v(T)}, 2, {v(vI)}
v_lshlrev_b32 {v(T)}, 6, {v(T)}
v_lshl_add_u32 {v(T)}, {v(vG)}, 4, {v(T)}
v_add_u32 {v(vPLr)}, {LPL}, {v(T)}
v_lshlrev_b32 {v(T)}, 6, {v(vI)}
v_add_u32 {v(T)}, s{sT1}, {v(T)}
v_add_u32 {v(vMLw)}, {LML}, {v(T)}
v_lshlrev_b32 {v(T)}, 6, {v(vG)}
v_add_u32 {v(vMLr)}, {LML}, {v(T)}
{MLFIX}
v_lshrrev_b32 {v(T)}, 5, {v(vL)}
v_lshl_add_u32 {v(T)}, {v(T)}, 4, {v(vI)}
v_mul_u32_u24 {v(T)}, 48, {v(T)}
s_lshl_b32 s{sT0}, s{sW}, 2
v_add_u32 {v(T)}, s{sT0}, {v(T)}
v_add_u32 {v(vP3w)}, {LP3}, {v(T)}
v_and_b32 {v(T+1)}, 31, {v(vL)}
v_mul_u32_u24 {v(T)}, 48, {v(T+1)}
v_add_u32 {v(vP3r)}, {LP3}, {v(T)}
v_add_u32 {v(vP5r)}, {LP5}, {v(T)}
v_mul_u32_u24 {v(T)}, 48, {v(vI)}
v_add_u32 {v(T)}, s{sT0}, {v(T)}
v_add_u32 {v(vP5w)}, {LP5}, {v(T)}
; H bounce: write LHB + w*64 + (l%32)*2 ; read LHB + w*64 + g*16
s_lshl_b32 s{sT0}, s{sW}, 6
v_lshl_add_u32 {v(T)}, {v(T+1)}, 1, s{sT0}
v_add_u32 {v(vHw)}, {LHB}, {v(T)}
v_lshl_add_u32 {v(T)}, {v(vG)}, 4, s{sT0}
v_add_u32 {v(vHr)}, {LHB}, {v(T)}
v_and_b32 {v(T)}, 1, {v(vL)}
v_lshlrev_b32 {v(T)}, 4, {v(T)}
v_sub_u32 {v(vSh)}, 16, {v(T)}
v_lshrrev_b32 {v(T)}, 2, {v(vI)}
v_lshl_add_u32 {v(T)}, {v(vG)}, 3, {v(T)}
v_lshlrev_b32 {v(T)}, 6, {v(T)}
v_and_b32 {v(T+2)}, 3, {v(vI)}
v_lshrrev_b32 {v(T+3)}, 1, {v(T+2)}
v_and_b32 {v(T+4)}, 1, {v(vG)}
v_lshlrev_b32 {v(T+4)}, 1, {v(T+4)}
v_xor_b32 {v(T+3)}, {v(T+3)}, {v(T+4)}
v_lshl_add_u32 {v(T)}, {v(T+3)}, 4, {v(T)}
v_and_b32 {v(T+3)}, 1, {v(T+2)}
v_lshl_add_u32 {v(T)}, {v(T+3)}, 3, {v(T)}
s_lshl_b32 s{sT0}, s{sW}, 13
s_add_u32 s{sT0}, s{sT0}, {LW}
v_add_u32 {v(vWN0)}, s{sT0}, {v(T)}
v_xor_b32 {v(vWN1)}, 32, {v(vWN0)}
v_lshrrev_b32 {v(T)}, 2, {v(vI)}                 ; r
v_lshl_add_u32 {v(T+3)}, {v(vG)}, 2, {v(T)}      ; 4g+r
v_lshlrev_b32 {v(T+3)}, 8, {v(T+3)}
v_and_b32 {v(T+4)}, 1, {v(vG)}
v_lshlrev_b32 {v(T+4)}, 2, {v(T+4)}
v_add_u32 {v(T+4)}, {v(T+4)}, {v(T)}
v_lshlrev_b32 {v(T+4)}, 1, {v(T+4)}              ; 8*(g&1)+2r
v_lshrrev_b32 {v(T+5)}, 1, {v(T+2)}
s_lshl_b32 s{sT0}, s{sW}, 1
v_add_u32 {v(T+5)}, s{sT0}, {v(T+5)}
v_xor_b32 {v(T+5)}, {v(T+5)}, {v(T+4)}
v_lshl_add_u32 {v(T+3)}, {v(T+5)}, 4, {v(T+3)}
v_and_b32 {v(T+5)}, 1, {v(T+2)}
v_lshl_add_u32 {v(vVr)}, {v(T+5)}, 3, {v(T+3)}
s_lshl_b32 s{sT0}, s{sW}, 11
v_and_b32 {v(T)}, 7, {v(vI)}
v_xor_b32 {v(T)}, {v(T)}, {v(vG)}
v_lshlrev_b32 {v(T)}, 4, {v(T)}
v_lshl_add_u32 {v(T)}, {v(vI)}, 7, {v(T)}
v_add_u32 {v(T)}, s{sT0}, {v(T)}
v_add_u32 {v(vOst0)}, {LV}, {v(T)}
v_xor_b32 {v(vOst1)}, 64, {v(vOst0)}
v_and_b32 {v(T)}, 3, {v(vI)}
v_mul_u32_u24 {v(T)}, {QS}, {v(T)}
v_lshl_add_u32 {v(T)}, {v(vG)}, 4, {v(T)}
v_add_u32 {v(vQl)}, {LQ}, {v(T)}
; D read: D1B + b*0x2000 + w*1024 + (i&7)*128 + (i>>3)*64 + g*16
s_lshl_b32 s{sT0}, s{sB}, 13
s_lshl_b32 s{sT1}, s{sW}, 10
s_add_u32 s{sT1}, s{sT1}, s{sT0}
s_add_u32 s{sT1}, s{sT1}, {D1B}
v_and_b32 {v(T)}, 7, {v(vI)}
v_lshlrev_b32 {v(T)}, 7, {v(T)}
v_lshrrev_b32 {v(T+1)}, 3, {v(vI)}
v_lshl_add_u32 {v(T)}, {v(T+1)}, 6, {v(T)}
v_lshl_add_u32 {v(T)}, {v(vG)}, 4, {v(T)}
v_add_u32 {v(vDrd)}, s{sT1}, {v(T)}
; D write: D1B + b*0x2000 + (s/2)*1024 + c*128 + (s%2)*64 + l*2
s_lshr_b32 s{sT1}, s{sS}, 1
s_lshl_b32 s{sT1}, s{sT1}, 10
s_add_u32 s{sT0}, s{sT0}, s{sT1}
s_lshl_b32 s{sT1}, s{sC}, 7
s_add_u32 s{sT0}, s{sT0}, s{sT1}
s_and_b32 s{sT1}, s{sS}, 1
s_lshl_b32 s{sT1}, s{sT1}, 6
s_add_u32 s{sT0}, s{sT0}, s{sT1}
s_add_u32 s{sT0}, s{sT0}, {D1B}
v_lshl_add_u32 {v(vDwr)}, {v(vL)}, 1, s{sT0}
s_mul_i32 s{sT0}, s{sGRP}, {GRPSZ}
s_add_u32 s{sT1}, s{sT0}, {QB}
v_lshl_add_u32 {v(vQrd)}, {v(vL)}, 4, s{sT1}
s_lshl_b32 s{sT2}, s{sS}, 6
s_add_u32 s{sT1}, s{sT1}, s{sT2}
v_lshl_add_u32 {v(vQwr)}, {v(vL)}, 1, s{sT1}
s_lshl_b32 s{sT1}, s{sS}, 6
s_add_u32 s{sT2}, s{sT1}, 64
s_cmp_lt_u32 s{sS}, 7
s_cselect_b32 s{sT1}, s{sT1}, s{sT2}
s_add_u32 s{sT1}, s{sT1}, s{sT0}
s_add_u32 s{sT1}, s{sT1}, {GUB}
v_lshl_add_u32 {v(vGUwr)}, {v(vL)}, 1, s{sT1}
v_and_b32 {v(T)}, 30, {v(vL)}
v_lshlrev_b32 {v(T)}, 1, {v(T)}
s_lshl_b32 s{sT1}, s{sW}, 6
s_add_u32 s{sT1}, s{sT1}, s{sT0}
s_add_u32 s{sT1}, s{sT1}, {GUB}
v_add_u32 {v(vGUrd)}, s{sT1}, {v(T)}
; O write: OB + s*1024 + (g*128 + 16w + i)*2 ; DMA read: OB + (l/8)*1024 + w*128 + ((l%8)^(l/8))*16
s_add_u32 s{sT0}, s{sT0}, {OB}
s_lshl_b32 s{sT1}, s{sS}, 10
s_add_u32 s{sT1}, s{sT1}, s{sT0}
s_lshl_b32 s{sT2}, s{sW}, 5
s_add_u32 s{sT1}, s{sT1}, s{sT2}
v_lshlrev_b32 {v(T)}, 8, {v(vG)}
v_lshl_add_u32 {v(T)}, {v(vI)}, 1, {v(T)}
v_add_u32 {v(vOwr)}, s{sT1}, {v(T)}
s_lshl_b32 s{sT2}, s{sW}, 7
s_add_u32 s{sT1}, s{sT0}, s{sT2}
v_lshrrev_b32 {v(T)}, 3, {v(vL)}
v_and_b32 {v(T+1)}, 7, {v(vL)}
v_xor_b32 {v(T+1)}, {v(T+1)}, {v(T)}
v_lshlrev_b32 {v(T)}, 10, {v(T)}
v_lshl_add_u32 {v(T)}, {v(T+1)}, 4, {v(T)}
v_add_u32 {v(vOrd)}, s{sT1}, {v(T)}
s_mul_i32 s{sT0}, s{sGRP}, {GRPSZ}
s_add_u32 s{sT0}, s{sT0}, {MLB}
s_lshl_b32 s{sT1}, s{sS}, 3
s_add_u32 s{sT1}, s{sT1}, s{sT0}
v_lshl_add_u32 {v(vMLwr)}, {v(vG)}, 7, s{sT1}
s_lshr_b32 s{sT1}, s{sW}, 1
s_lshl_b32 s{sT1}, s{sT1}, 7
s_add_u32 s{sT1}, s{sT1}, s{sT0}
v_lshl_add_u32 {v(vMLrd)}, {v(vG)}, 5, s{sT1}
s_mov_b32 s{mI4}, 0x000f000f
s_mov_b32 s{mI4+1}, 0x000f000f
s_mov_b32 s{mEVEN}, 0x55555555
s_mov_b32 s{mEVEN+1}, 0x55555555
s_mov_b32 s{mI0}, 0x00010001
s_mov_b32 s{mI0+1}, 0x00010001
s_mov_b32 s{sCS}, 0x3e0293ee          ; 128^-0.5 * log2(e)
s_mov_b32 s{sNL2E}, 0xbfb8aa3b        ; -log2(e)
s_mov_b32 s{sOGU}, 0
s_mov_b32 s{sOML}, 0
s_mov_b32 s{sOD1}, 0
s_mov_b32 s{sOD2}, 0x8000
s_mov_b32 s{sOD2P}, 0x8000
s_mov_b32 s{mLO}, -1
s_mov_b32 s{mLO+1}, 0
s_mov_b32 s{sOO}, 0
s_mov_b32 s{sOO2}, 7168
s_mov_b32 s{sSPIN}, 0
s_mov_b32 s{sFAST}, 0
s_lshl_b32 s{sT0}, s{sC}, 19
s_lshl_b32 s{sT1}, s{sS}, 6
s_add_u32 s{sT0}, s{sT0}, s{sT1}
s_add_u32 s{SRD_WO}, s16, s{sT0}
s_addc_u32 s{SRD_WO+1}, s17, 0
s_sub_u32 s{SRD_WO+2}, 4194304, s{sT0}
s_mov_b32 s{SRD_WO+3}, 0x20000
s_mul_i32 s{sT0}, s{sC}, 229376
s_add_u32 s{sT0}, s{sT0}, s{sT1}
s_add_u32 s{SRD_WD}, s24, s{sT0}
s_addc_u32 s{SRD_WD+1}, s25, 0
s_sub_u32 s{SRD_WD+2}, 1835008, s{sT0}
s_mov_b32 s{SRD_WD+3}, 0x20000
s_mul_i32 s{sT0}, s{sC}, 448
s_sub_u32 s{sT2}, s{sT1}, 448
s_cmp_lt_u32 s{sS}, 7
s_cselect_b32 s{sT1}, s{sT1}, s{sT2}
s_cselect_b32 s{sT2}, s20, s22
s_cselect_b32 s{sT3}, s21, s23
s_add_u32 s{sT0}, s{sT0}, s{sT1}
s_add_u32 s{SRD_WGU}, s{sT2}, s{sT0}
s_addc_u32 s{SRD_WGU+1}, s{sT3}, 0
s_sub_u32 s{SRD_WGU+2}, 1835008, s{sT0}
s_mov_b32 s{SRD_WGU+3}, 0x20000
s_mov_b32 s{SRD_OUT}, s26
s_mov_b32 s{SRD_OUT+1}, s27
s_mov_b32 s{SRD_OUT+2}, 2048
s_mov_b32 s{SRD_OUT+3}, 0x20000
v_mov_b32 {v(T)}, 0
v_and_b32 {v(T+1)}, 31, {v(vL)}
v_lshlrev_b32 {v(T+1)}, 2, {v(T+1)}
v_add_u32 {v(T+1)}, {LZ}, {v(T+1)}
ds_write_b32 {v(T+1)}, {v(T)}
v_mov_b32 {v(T)}, 0x3f80
v_lshlrev_b32 {v(T+1)}, 3, {v(vG)}
v_sub_u32 {v(T+1)}, {v(vI)}, {v(T+1)}
v_add_u32 {v(T+2)}, 16, {v(T+1)}
v_mov_b32 {v(T+3)}, 0x3f800000
''')
for blk,src in ((0,T+1),(1,T+2)):
    for r2 in range(4):
        d=RID+blk*4+r2
        a(f'''v_cmp_eq_u32 vcc, {2*r2}, {v(src)}
v_mov_b32 {v(d)}, 0
s_nop 0
v_cndmask_b32 {v(d)}, {v(d)}, {v(T)}, vcc
v_cmp_eq_u32 vcc, {2*r2+1}, {v(src)}
s_nop 1
v_cndmask_b32 {v(d)}, {v(d)}, {v(T+3)}, vcc''')
a(f'''
s_cmp_eq_u32 s{sW}, 0
s_cbranch_scc1 L_wq_w0
s_waitcnt vmcnt({NTAIL})
v_add_u32 {v(vE)}, {EPC}, {v(vE)}
s_nop 0
v_readfirstlane_b32 s{sTAG}, {v(vE)}
s_branch L_wq_landed
L_wq_w0:
s_waitcnt vmcnt({NTAIL if (ILV or KE) else 0})
v_add_u32 {v(vE)}, {EPC}, {v(vE)}
s_nop 0
v_readfirstlane_b32 s{sTAG}, {v(vE)}
s_lshl_b32 s{sT0}, s{sGRP}, 7
s_lshl_b32 s{sT2}, s{sS}, 2
s_add_u32 s{sT0}, s{sT0}, s{sT2}
s_add_u32 s{sT0}, s{sT0}, {FB}
v_mov_b32 {v(T+8)}, s{sT0}
v_add_u32 {v(T+9)}, s{sXCC}, {v(vE)}
s_mov_b64 exec, 1
buffer_store_dword {v(T+9)}, {v(T+8)}, {srd(SRD_WS)}, 0 offen sc1
s_mov_b64 exec, -1
''')
if not ILV and not KE: v_dma(NV1,NVA)
a('L_wq_landed:')
stamp('wq_landed')
w_tr(RWQ,3 if KF else 0,2)
if KMID:
    a('s_waitcnt lgkmcnt(0)')
    k_dma()
a(f'v_lshlrev_b32 {v(vX)}, 16, {v(vX)}')
a(f'v_lshrrev_b32 {v(XB)}, 16, {v(vX)}')
def x_update(delta):
    if MO:
        a(f'''v_add_f32 {v(vX)}, {v(vX)}, {v(delta)}
v_cvt_pk_bf16_f32 {v(XB)}, {v(vX)}, {v(vX)}
v_and_b32 {v(vX)}, 0xffff0000, {v(XB)}''')
        return
    a(f'''v_cvt_pk_bf16_f32 {v(delta)}, {v(delta)}, {v(delta)}
v_and_b32 {v(delta)}, 0xffff0000, {v(delta)}
v_add_f32 {v(vX)}, {v(vX)}, {v(delta)}
v_cvt_pk_bf16_f32 {v(XB)}, {v(vX)}, {v(vX)}
v_and_b32 {v(vX)}, 0xffff0000, {v(XB)}''')
R=T+24
def d_issue(soff): a(f'buffer_load_dwordx4 {vr(R,4)}, {v(vDrd)}, {srd(SRD_WS)}, s{soff} offen sc1')
def d_check(soff, tag=None):
    r=lbl('pd_r'); ok=lbl('pd_ok'); c=lbl('pd_c')
    a(f'{c}:')
    check_valid(range(R,R+4), ok, T+40)
    spin_check(r)
    a(f'{r}:'); d_issue(soff); a(f's_waitcnt vmcnt(0)\ns_branch {c}')
    a(f'{ok}:')
    if tag: stamp(tag)
I1,I2=T+28,T+32
def ident_mfma():
    a(f'v_mfma_f32_16x16x32_bf16 {vr(I1,4)}, {vr(R,4)}, {vr(RID,4)}, 0\nv_mfma_f32_16x16x32_bf16 {vr(I2,4)}, {vr(R,4)}, {vr(RID+4,4)}, 0')
def d_sum():
    a(f'''v_add_f32 {v(I1)}, {v(I1)}, {v(I1+1)}
v_add_f32 {v(I1+2)}, {v(I1+2)}, {v(I1+3)}
v_add_f32 {v(I2)}, {v(I2)}, {v(I2+1)}
v_add_f32 {v(I2+2)}, {v(I2+2)}, {v(I2+3)}
v_add_f32 {v(I1)}, {v(I1)}, {v(I1+2)}
v_add_f32 {v(I2)}, {v(I2)}, {v(I2+2)}
v_permlane16_swap_b32 {v(I1)}, {v(I2)}
v_add_f32 {v(I1)}, {v(I1)}, {v(I2)}''')
    return I1
D00,D01,D10,D11=T+8,T+12,T+16,T+20
def ln_prev(W, colsum_if_l0):
    a(f'ds_read_b128 {vr(T,4)}, {v(vXr)}\nds_read_b128 {vr(T+4,4)}, {v(vXr)} offset:64\ns_waitcnt lgkmcnt(0)')
    a(f'v_mfma_f32_16x16x32_bf16 {vr(D00,4)}, {vr(T,4)}, {vr(W,4)}, 0')
    a(f'v_mfma_f32_16x16x32_bf16 {vr(D01,4)}, {vr(T,4)}, {vr(W+4,4)}, 0')
    a(f'v_mfma_f32_16x16x32_bf16 {vr(D00,4)}, {vr(T+4,4)}, {vr(W+8,4)}, {vr(D00,4)}')
    a(f'v_mfma_f32_16x16x32_bf16 {vr(D01,4)}, {vr(T+4,4)}, {vr(W+12,4)}, {vr(D01,4)}')
    l=lbl('cs')
    a(f's_cmp_lg_u32 s{sL}, 0\ns_cbranch_scc1 {l}')
    O1=T+40; C0,C1=T+44,T+48
    for j in range(4): a(f'v_mov_b32 {v(O1+j)}, 0x3f803f80')
    a(f'v_mfma_f32_16x16x32_bf16 {vr(C0,4)}, {vr(O1,4)}, {vr(W,4)}, 0')
    a(f'v_mfma_f32_16x16x32_bf16 {vr(C1,4)}, {vr(O1,4)}, {vr(W+4,4)}, 0')
    a(f'v_mfma_f32_16x16x32_bf16 {vr(C0,4)}, {vr(O1,4)}, {vr(W+8,4)}, {vr(C0,4)}')
    a(f'v_mfma_f32_16x16x32_bf16 {vr(C1,4)}, {vr(O1,4)}, {vr(W+12,4)}, {vr(C1,4)}')
    a(f's_nop 7\nv_cndmask_b32 {v(C0)}, {v(C1)}, {v(C0)}, s[{mLO}:{mLO+1}]')
    a('s_mov_b32 exec_lo, 0xffff\ns_mov_b32 exec_hi, 0xffff')
    a(f'ds_write_b32 {v(vP3w)}, {v(C0)} offset:{LPARTC-LP3 if LPARTC>=LP3 else 0}') if False else None
    a(f'v_add_u32 {v(C0+1)}, {(LPARTC-LP3)&0xffffffff}, {v(vP3w)}\nds_write_b32 {v(C0+1)}, {v(C0)}')
    a('s_mov_b64 exec, -1')
    a(f'{l}:')
def ln_post(W, pub, tag, cs):
    ident_mfma()
    a(f'v_mfma_f32_16x16x32_bf16 {vr(D00,4)}, {vr(R,4)}, {vr(W,4)}, {vr(D00,4)}')
    a(f'v_mfma_f32_16x16x32_bf16 {vr(D01,4)}, {vr(R,4)}, {vr(W+4,4)}, {vr(D01,4)}')
    a(f'v_mfma_f32_16x16x32_bf16 {vr(D10,4)}, {vr(R,4)}, {vr(W+8,4)}, 0')
    a(f'v_mfma_f32_16x16x32_bf16 {vr(D11,4)}, {vr(R,4)}, {vr(W+12,4)}, 0')
    x_update(d_sum())
    a(f'ds_write_b16 {v(vXw)}, {v(XB)}')
    sa,sq=T+38,T+39
    a(f'v_mov_b32 {v(sa)}, {v(vX)}\nv_mul_f32 {v(sq)}, {v(vX)}, {v(vX)}')
    steps=['quad_perm:[1,0,3,2] row_mask:0xf bank_mask:0xf','quad_perm:[2,3,0,1] row_mask:0xf bank_mask:0xf','row_half_mirror row_mask:0xf bank_mask:0xf','row_mirror row_mask:0xf bank_mask:0xf','row_bcast:15 row_mask:0xa bank_mask:0xf','row_bcast:31 row_mask:0xc bank_mask:0xf']
    fill=[f'v_add_f32 {v(D00)}, {v(D00)}, {v(D00+1)}', f'v_add_f32 {v(D00+2)}, {v(D00+2)}, {v(D00+3)}',
          f'v_add_f32 {v(D10)}, {v(D10)}, {v(D10+1)}', f'v_add_f32 {v(D10+2)}, {v(D10+2)}, {v(D10+3)}',
          f'v_add_f32 {v(D01)}, {v(D01)}, {v(D01+1)}', f'v_add_f32 {v(D01+2)}, {v(D01+2)}, {v(D01+3)}',
          f'v_add_f32 {v(D11)}, {v(D11)}, {v(D11+1)}', f'v_add_f32 {v(D11+2)}, {v(D11+2)}, {v(D11+3)}',
          f'v_add_f32 {v(D00)}, {v(D00)}, {v(D00+2)}', f'v_add_f32 {v(D10)}, {v(D10)}, {v(D10+2)}',
          f'v_add_f32 {v(D01)}, {v(D01)}, {v(D01+2)}', f'v_add_f32 {v(D11)}, {v(D11)}, {v(D11+2)}']
    for k,m in enumerate(steps):
        a(fill[2*k]); a(fill[2*k+1])
        a(f'v_add_f32_dpp {v(sa)}, {v(sa)}, {v(sa)} {m}\nv_add_f32_dpp {v(sq)}, {v(sq)}, {v(sq)} {m}')
    a(f'''v_cndmask_b32 {v(D00)}, {v(D10)}, {v(D00)}, s[{mLO}:{mLO+1}]
v_cndmask_b32 {v(D01)}, {v(D11)}, {v(D01)}, s[{mLO}:{mLO+1}]
s_mov_b32 exec_lo, 0
s_mov_b32 exec_hi, 0x80000000
ds_write2_b32 {v(vPw)}, {v(sa)}, {v(sq)} offset0:0 offset1:12
s_mov_b64 exec, -1
v_permlane32_swap_b32 {v(D00)}, {v(D01)}
v_add_f32 {v(D00)}, {v(D00)}, {v(D01)}
v_mov_b32 {v(D01)}, {v(D00)}
v_permlane16_swap_b32 {v(D00)}, {v(D01)}
v_add_f32 {v(D00)}, {v(D00)}, {v(D01)}
v_add_u32 {v(D01)}, {(LPART-LP3)&0xffffffff}, {v(vP3w)}
s_mov_b32 exec_lo, 0xffff
s_mov_b32 exec_hi, 0xffff
ds_write_b32 {v(D01)}, {v(D00)}
s_mov_b64 exec, -1
s_waitcnt lgkmcnt(0)
s_barrier''')
    stamp(tag+'_b2')
    done=lbl('lng_done'); nocs=lbl('nocs')
    a(f's_cmp_lg_u32 s{sW}, 0\ns_cbranch_scc1 {done}')
    a(f'ds_read_b128 {vr(T,4)}, {v(vPr)}\nds_read_b128 {vr(T+4,4)}, {v(vPr)} offset:16')
    a(f's_cmp_lg_u32 s{sL}, 0\ns_cbranch_scc1 {nocs}')
    a(f'''v_add_u32 {v(T+16)}, {(LPARTC-LPART)&0xffffffff}, {v(vPr)}
ds_read_b128 {vr(T+8,4)}, {v(T+16)}
ds_read_b128 {vr(T+12,4)}, {v(T+16)} offset:16
s_waitcnt lgkmcnt(0)
v_add_f32 {v(T+8)}, {v(T+8)}, {v(T+9)}
v_add_f32 {v(T+10)}, {v(T+10)}, {v(T+11)}
v_add_f32 {v(T+12)}, {v(T+12)}, {v(T+13)}
v_add_f32 {v(T+14)}, {v(T+14)}, {v(T+15)}
v_add_f32 {v(T+8)}, {v(T+8)}, {v(T+10)}
v_add_f32 {v(T+12)}, {v(T+12)}, {v(T+14)}
v_add_f32 {v(cs)}, {v(T+8)}, {v(T+12)}
{nocs}:
s_waitcnt lgkmcnt(0)
v_add_f32 {v(T)}, {v(T)}, {v(T+1)}
v_add_f32 {v(T+2)}, {v(T+2)}, {v(T+3)}
v_add_f32 {v(T+4)}, {v(T+4)}, {v(T+5)}
v_add_f32 {v(T+6)}, {v(T+6)}, {v(T+7)}
v_add_f32 {v(T)}, {v(T)}, {v(T+2)}
v_add_f32 {v(T+4)}, {v(T+4)}, {v(T+6)}
v_add_f32 {v(T)}, {v(T)}, {v(T+4)}
s_nop 0
v_readlane_b32 s{sT0}, {v(T)}, 32
v_readlane_b32 s{sT1}, {v(T)}, 33
s_nop 0
v_mov_b32 {v(T+2)}, s{sT0}
v_mov_b32 {v(T+3)}, s{sT1}
v_mul_f32 {v(T+2)}, 0x3b000000, {v(T+2)}          ; mean
v_mul_f32 {v(T+3)}, 0x3b000000, {v(T+3)}          ; E[x^2]
v_fma_f32 {v(T+3)}, -{v(T+2)}, {v(T+2)}, {v(T+3)}
v_fma_f32 {v(T+4)}, -{v(cs)}, {v(T+2)}, {v(T)}
v_max_f32 {v(T+3)}, 0, {v(T+3)}
v_add_f32 {v(T+3)}, 0x3727c5ac, {v(T+3)}          ; + 1e-5
v_rsq_f32 {v(T+3)}, {v(T+3)}
v_mul_f32 {v(T+4)}, {v(T+4)}, {v(T+3)}
v_mov_b32_dpp {v(T+5)}, {v(T+4)} quad_perm:[1,1,3,3] row_mask:0xf bank_mask:0xf
v_cvt_pk_bf16_f32 {v(T+12)}, {v(T+4)}, {v(T+5)}
v_min_u32 {v(T+12)}, -2, {v(T+12)}
s_mov_b32 exec_lo, 0x55555555
s_mov_b32 exec_hi, 0''')
    pub()
    exec_all()
    a(f'{done}:')
a(f'ds_write_b16 {v(vXw)}, {v(XB)}')
for j in range(4): a(f'v_mov_b32 {v(R+j)}, 0')
a('s_waitcnt lgkmcnt(0)')
ln_prev(RWQ, True)
a('s_branch L_p1_post')
a('L_layer:')
d_issue(sOD2P)
ln_prev(RWQ, False)
a('s_waitcnt vmcnt(0)')
d_check(sOD2P,'d2_ok')
a('L_p1_post:')
def q_pub():
    l1=lbl('qp1'); l2=lbl('qpd')
    a(f's_cmp_lg_u32 s{sL}, 0\ns_cbranch_scc1 {l1}')
    a(f'''s_lshl_b32 s{sT0}, s{sGRP}, 11
s_lshl_b32 s{sT1}, s{sS}, 7
s_add_u32 s{sT0}, s{sT0}, s{sT1}
s_add_u32 s{sT0}, s{sT0}, {Q0T}
v_lshl_add_u32 {v(T+14)}, {v(vL)}, 2, s{sT0}
s_add_u32 s{sT1}, s{sTAG}, s{sXCC}
v_mov_b32 {v(T+13)}, s{sT1}
buffer_store_dwordx2 {vr(T+12,2)}, {v(T+14)}, {srd(SRD_WS)}, 0 offen sc1
s_branch {l2}
{l1}:''')
    pub_store(f'buffer_store_dword {v(T+12)}, {v(vQwr)}, {srd(SRD_WS)}, 0 offen')
    a(f'{l2}:')
ln_post(RWQ, q_pub, 'p1', vCSQ)
stamp('p1_done')
a(f's_cmp_lg_u32 s{sL}, 0\ns_cbranch_scc1 L_h1_l1')
if not KE:
    if KDMA:
        if not KMID: k_dma()
    else:
        k_first(); k_second()
    if KBAR: a('s_barrier')
stamp('k_issued')
pf3('o',1,T+41); pf3('g',2,T+41); pf3('d',3,T+41)
a(f's_cmp_eq_u32 s{sW}, 0\ns_cbranch_scc1 L_h1_w0\ns_cmp_eq_u32 s{sW}, 7\ns_cbranch_scc1 L_h1_w7')
v_rest()
NVH=0
if VHELP:
    NVH=8-NVA
    a(f's_cmp_lg_u32 s{sW}, 1\ns_cbranch_scc1 L_vh1')
    v_dma(NVA,8,0)
    a(f's_waitcnt vmcnt({2*(8-NVA)})\ns_branch L_vh_k')
    a(f'L_vh1:\ns_cmp_lg_u32 s{sW}, 6\ns_cbranch_scc1 L_vh2')
    v_dma(NVA,8,7)
    a(f's_waitcnt vmcnt({2*(8-NVA)})\ns_branch L_vh_k')
    a('L_vh2:')
def late_w():
    if VBAR: a('s_barrier')
    w_dma(SRD_WO, vWoo, 1, 4, 1024, NTW)
    l1=lbl('lw1'); l2=lbl('lw2')
    a(f's_cmp_ge_u32 s{sS}, 14\ns_cbranch_scc1 {l1}')
    w_dma(SRD_WGU, vWguo, 0, 4, 3584, NTW)
    a(f'{l1}:\ns_cmp_eq_u32 s{sW}, 7\ns_cbranch_scc1 {l2}')
    w_dma(SRD_WD, vWdo, 2, 2, 1024, NTW)
    a(f'{l2}:')
NPO=0
if ALLW:
    NWO=4
    late_w()
else:
    NPO=pf_wo()
    NWO=0 if WOLATE else 4
    if not WOLATE: w_dma(SRD_WO, vWoo, 1, 4, 1024, NTW)
stamp('vw_issued')
if ALLW:
    l1=lbl('kw1'); l2=lbl('kw2')
    a(f's_cmp_ge_u32 s{sS}, 14\ns_cbranch_scc1 {l1}\ns_waitcnt vmcnt({8-NVA+10})\ns_branch {l2}\n{l1}:\ns_waitcnt vmcnt({8-NVA+6})\n{l2}:')
else:
    a(f's_waitcnt vmcnt({(8 if KF else 8-NVA)+NPO+NWO})')
if VHELP: a('L_vh_k:')
stamp('k_landed')
if KDMA: k_frags()
a('s_branch L_h1_bar')
a(f'''L_h1_w7:
s_lshl_b32 s{sT0}, s{sB}, 10
s_add_u32 s{sT0}, s{sT0}, {FB}
v_lshrrev_b32 {v(T+28)}, 3, {v(vL)}
v_lshlrev_b32 {v(T+28)}, 7, {v(T+28)}
v_and_b32 {v(T+29)}, 7, {v(vL)}
v_lshl_add_u32 {v(T+28)}, {v(T+29)}, 3, {v(T+28)}
v_add_u32 {v(T+28)}, s{sT0}, {v(T+28)}
L_f1_retry:
buffer_load_dwordx2 {vr(T+30,2)}, {v(T+28)}, {srd(SRD_WS)}, 0 offen sc1
s_waitcnt vmcnt(0)
v_subrev_u32 {v(T+30)}, s{sTAG}, {v(T+30)}
v_subrev_u32 {v(T+31)}, s{sTAG}, {v(T+31)}
v_max_u32 {v(T+30)}, {v(T+30)}, {v(T+31)}
v_cmp_lt_u32 vcc, 15, {v(T+30)}
s_cbranch_vccz L_h1_rest
''')
spin_check('L_f1_retry')
a(f'''L_h1_w0:
s_lshl_b32 s{sT0}, s{sGRP}, 11
s_add_u32 s{sT0}, s{sT0}, {Q0T}
v_lshl_add_u32 {v(T+16)}, {v(vL)}, 5, s{sT0}
L_q0_retry:
buffer_load_dwordx4 {vr(T,4)}, {v(T+16)}, {srd(SRD_WS)}, 0 offen sc1
buffer_load_dwordx4 {vr(T+4,4)}, {v(T+16)}, {srd(SRD_WS)}, 0 offen offset:16 sc1
s_waitcnt vmcnt(0)
v_subrev_u32 {v(T+1)}, s{sTAG}, {v(T+1)}
v_subrev_u32 {v(T+3)}, s{sTAG}, {v(T+3)}
v_subrev_u32 {v(T+5)}, s{sTAG}, {v(T+5)}
v_subrev_u32 {v(T+7)}, s{sTAG}, {v(T+7)}
v_max3_u32 {v(T+8)}, {v(T+1)}, {v(T+3)}, {v(T+5)}
v_max_u32 {v(T+8)}, {v(T+8)}, {v(T+7)}
v_cmp_lt_u32 vcc, 15, {v(T+8)}
s_cbranch_vccz L_q0_ok''')
spin_check('L_q0_retry')
a(f'''L_q0_ok:
v_min3_u32 {v(T+9)}, {v(T+1)}, {v(T+3)}, {v(T+5)}
v_min_u32 {v(T+9)}, {v(T+9)}, {v(T+7)}
v_cmp_ne_u32 vcc, s{sXCC}, {v(T+8)}
v_cmp_ne_u32 s[{sT2}:{sT3}], s{sXCC}, {v(T+9)}
s_or_b64 vcc, vcc, s[{sT2}:{sT3}]
s_cmp_eq_u64 vcc, 0
s_cselect_b32 s{sT0}, 1, 0
''')
if FORCESLOW: a(f's_mov_b32 s{sT0}, 0')
a(f'''v_mul_u32_u24 {v(T+10)}, {QS}, {v(vG)}
v_lshl_add_u32 {v(T+10)}, {v(vI)}, 4, {v(T+10)}
v_add_u32 {v(T+10)}, {LQ}, {v(T+10)}
ds_write2_b32 {v(T+10)}, {v(T)}, {v(T+2)} offset0:0 offset1:1
ds_write2_b32 {v(T+10)}, {v(T+4)}, {v(T+6)} offset0:2 offset1:3
v_mov_b32 {v(T+11)}, s{sT0}
v_mov_b32 {v(T+12)}, {LFAST}
ds_write_b32 {v(T+12)}, {v(T+11)}
L_h1_rest:''')
if KDMA: k_frags()
if not VHELP: v_rest()
if ALLW: late_w()
else:
    pf_wo()
    if not WOLATE: w_dma(SRD_WO, vWoo, 1, 4, 1024, NTW)
a('s_branch L_h1_bar')
a('L_h1_l1:')
a(f's_cmp_lg_u32 s{sW}, {H1W}\ns_cbranch_scc1 L_h1_bar')
if H1W==0: ack()
a(f'''L_q1_retry:
buffer_load_dwordx4 {vr(T,4)}, {v(vQrd)}, {srd(SRD_WS)}, 0 offen sc1
s_waitcnt vmcnt(0)''')
check_valid(range(T,T+4),'L_q1_ok',T+4)
spin_check('L_q1_retry')
a(f'''L_q1_ok:
v_mul_u32_u24 {v(T+10)}, {QS}, {v(vG)}
v_lshl_add_u32 {v(T+10)}, {v(vI)}, 4, {v(T+10)}
v_add_u32 {v(T+10)}, {LQ}, {v(T+10)}
ds_write_b128 {v(T+10)}, {vr(T,4)}
L_h1_bar:
s_waitcnt lgkmcnt(0)
s_barrier''')
stamp('q_ok')
if PT:
    a(f'''s_cmp_lg_u32 s{sL}, 0
s_cbranch_scc1 L_nopt
s_cmp_lg_u32 s{sW}, 6
s_cbranch_scc1 L_nopt
s_mul_i32 s{sT0}, s{sGRP}, {GRPSZ}
s_lshl_b32 s{sT1}, s{sS}, 10
s_add_u32 s{sT1}, s{sT1}, {OB}
v_and_b32 {v(T+70)}, 7, {v(vL)}
v_lshlrev_b32 {v(T+70)}, 7, {v(T+70)}
v_lshrrev_b32 {v(T+71)}, 3, {v(vL)}
v_and_b32 {v(T+71)}, 1, {v(T+71)}
v_lshl_add_u32 {v(T+70)}, {v(T+71)}, 14, {v(T+70)}
v_add_u32 {v(T+70)}, s{sT1}, {v(T+70)}
v_subrev_u32 {v(T+71)}, 16, {v(vL)}
s_lshl_b32 s{sT1}, s{sS}, 2
v_add_u32 {v(T+71)}, s{sT1}, {v(T+71)}
v_min_u32 {v(T+71)}, 39, {v(T+71)}
v_lshlrev_b32 {v(T+71)}, 7, {v(T+71)}
v_cmp_gt_u32 vcc, 16, {v(vL)}
s_nop 1
v_cndmask_b32 {v(T+70)}, {v(T+71)}, {v(T+70)}, vcc
s_mov_b32 exec_lo, 0xfffff
s_mov_b32 exec_hi, 0
buffer_load_dword {v(43 if False else T+83)}, {v(T+70)}, {srd(SRD_WS)}, s{sT0} offen sc1
s_mov_b64 exec, -1
L_nopt:''')
Q=T
for kk in range(4): a(f'ds_read_b128 {vr(Q+4*kk,4)}, {v(vQl)} offset:{kk*64}')
if not MO: a(f'v_mov_b32 {v(T+26)}, {LFAST}\nds_read_b32 {v(T+27)}, {v(T+26)}')
S0,S1=T+16,T+20
for kk in range(4):
    a(f's_waitcnt lgkmcnt({(3 if MO else 4)-kk})')
    for t,S in ((0,S0),(1,S1)):
        c='0' if kk==0 else vr(S,4)
        a(f'v_mfma_f32_16x16x32_bf16 {vr(S,4)}, {vr(RK+(t*4+kk)*4,4)}, {vr(Q+4*kk,4)}, {c}')
if WOS or MO:
    a(f's_cmp_lg_u32 s{sL}, 0\ns_cbranch_scc1 L_wos')
    if MO: a(f'v_mov_b32 {v(T+26)}, {LFAST}\nds_read_b32 {v(T+27)}, {v(T+26)}')
    if WOS: w_dma(SRD_WO, vWoo, 1, WOS, 1024, NTW)
    if MO: a(f's_waitcnt lgkmcnt(0)\nv_readfirstlane_b32 s{sFAST}, {v(T+27)}')
    a('L_wos:')
if not MO: a(f's_waitcnt lgkmcnt(0)\nv_readfirstlane_b32 s{sFAST}, {v(T+27)}')
m,m2,tt=T+24,T+25,T+26
MC,LS=T+28,T+29
a(f'''
v_max3_f32 {v(m)}, {v(S0)}, {v(S0+1)}, {v(S0+2)}
v_max3_f32 {v(m2)}, {v(S1)}, {v(S1+1)}, {v(S1+2)}
v_max3_f32 {v(m)}, {v(m)}, {v(S0+3)}, {v(S1+3)}
v_max_f32 {v(m)}, {v(m)}, {v(m2)}
v_mov_b32 {v(tt)}, {v(m)}
v_permlane16_swap_b32 {v(m)}, {v(tt)}
v_max_f32 {v(m)}, {v(m)}, {v(tt)}
v_mov_b32 {v(tt)}, {v(m)}
v_permlane32_swap_b32 {v(m)}, {v(tt)}
v_max_f32 {v(m)}, {v(m)}, {v(tt)}
v_mul_f32 {v(MC)}, s{sCS}, {v(m)}
''')
P=T+32
for t,S in ((0,S0),(1,S1)):
    for r in range(4): a(f'v_fma_f32 {v(P+4*t+r)}, {v(S+r)}, s{sCS}, -{v(MC)}')
for r in range(8): a(f'v_exp_f32 {v(P+r)}, {v(P+r)}')
PK=T+40
for r in range(4): a(f'v_cvt_pk_bf16_f32 {v(PK+r)}, {v(P+2*r)}, {v(P+2*r+1)}')
if ALLW:
    VWAIT=f'''s_cmp_ge_u32 s{sS}, 14
s_cbranch_scc1 L_vw_a
s_cmp_eq_u32 s{sW}, 7
s_cbranch_scc1 L_vw_b
s_waitcnt vmcnt(10)
s_branch L_p2_nov
L_vw_b:
s_waitcnt vmcnt(8)
s_branch L_p2_nov
L_vw_a:
s_cmp_eq_u32 s{sW}, 7
s_cbranch_scc1 L_vw_c
s_waitcnt vmcnt(6)
s_branch L_p2_nov
L_vw_c:
s_waitcnt vmcnt(4)'''
else:
    VWAIT=f's_waitcnt vmcnt({NPO+NWO+WOS})'
LML2=LDUM
if MO:
    LTAIL=f'''s_mov_b64 exec, s[{mI4}:{mI4+1}]
ds_write_b32 {v(vMLw)}, {v(LS)}
s_mov_b64 exec, 15
ds_write_b32 {v(vMLw)}, {v(MC)} offset:16
s_mov_b64 exec, -1'''
else:
    LTAIL=f'''v_mov_b32 {v(tt)}, {v(LS)}
v_permlane16_swap_b32 {v(LS)}, {v(tt)}
v_add_f32 {v(LS)}, {v(LS)}, {v(tt)}
v_mov_b32 {v(tt)}, {v(LS)}
v_permlane32_swap_b32 {v(LS)}, {v(tt)}
v_add_f32 {v(LS)}, {v(LS)}, {v(tt)}
s_mov_b64 exec, 15
ds_write_b64 {v(vMLw)}, {vr(MC,2)}
s_mov_b64 exec, -1'''
exec_mask(mI4)
a(f'ds_write_b128 {v(vPLw)}, {vr(PK,4)}')
exec_all()
a(f'''
v_add_f32 {v(P)}, {v(P)}, {v(P+1)}
v_add_f32 {v(P+2)}, {v(P+2)}, {v(P+3)}
v_add_f32 {v(P+4)}, {v(P+4)}, {v(P+5)}
v_add_f32 {v(P+6)}, {v(P+6)}, {v(P+7)}
v_add_f32 {v(P)}, {v(P)}, {v(P+2)}
v_add_f32 {v(P+4)}, {v(P+4)}, {v(P+6)}
v_add_f32 {v(LS)}, {v(P)}, {v(P+4)}
{LTAIL}
s_cmp_lg_u32 s{sL}, 0
s_cbranch_scc1 L_p2_nov
{VWAIT}
L_p2_nov:
s_waitcnt lgkmcnt(0)
s_barrier
''')
stamp('p2_bar')
a(f's_cmp_lg_u32 s{sL}, 0\ns_cbranch_scc1 L_p2_novt')
if WOLATE and not ALLW and WOS<4: w_dma(SRD_WO, vWoo, 1, 4, 1024, NTW, WOS)
pf_wgu()
if WGS:
    a(f's_cmp_ge_u32 s{sS}, 14\ns_cbranch_scc1 L_p2_nowgs')
    w_dma(SRD_WGU, vWguo, 0, WGS, 3584, NTW)
    a('L_p2_nowgs:')
if WGP2:
    a(f's_cmp_ge_u32 s{sS}, 14\ns_cbranch_scc1 L_p2_nowg')
    w_dma(SRD_WGU, vWguo, 0, 4, 3584, NTW)
    a('L_p2_nowg:')
for kk in range(8):
    for hh in range(2):
        a(f'ds_read_b64_tr_b16 {vr(RV+kk*4+hh*2,2)}, {v(vVr)} offset:{LV+kk*8192+hh*4096}')
a('s_waitcnt lgkmcnt(0)\ns_barrier')
a('L_p2_novt:')
PA=T; MLr=T+32; DO=T+48
OO=T+82
if not P2O:
    for k in range(4): a(f'ds_read_b128 {vr(MLr+4*k,4)}, {v(vMLr)} offset:{16*k}')
    for kk in range(8): a(f'ds_read_b128 {vr(PA+4*kk,4)}, {v(vPLr)} offset:{kk*256}')
    for kk in range(8):
        a(f's_waitcnt lgkmcnt({7-kk})')
        a(f'v_mfma_f32_16x16x32_bf16 {vr(DO+4*kk,4)}, {vr(PA+4*kk,4)}, {vr(RV+4*kk,4)}, 0')
        if kk==0:
            mc=[MLr+2*k for k in range(8)]
            a(f'''v_max3_f32 {v(T+80)}, {v(mc[0])}, {v(mc[1])}, {v(mc[2])}
    v_max3_f32 {v(T+81)}, {v(mc[3])}, {v(mc[4])}, {v(mc[5])}
    v_max3_f32 {v(T+80)}, {v(T+80)}, {v(mc[6])}, {v(mc[7])}
    v_max_f32 {v(T+80)}, {v(T+80)}, {v(T+81)}''')
        if kk==1:
            for k in range(8): a(f'v_sub_f32 {v(MLr+2*k)}, {v(MLr+2*k)}, {v(T+80)}')
        if kk==3:
            for k in range(8): a(f'v_exp_f32 {v(MLr+2*k)}, {v(MLr+2*k)}')
        if kk==6:
            a(f'v_mul_f32 {v(T+81)}, {v(MLr)}, {v(MLr+1)}')
            for k in range(1,8): a(f'v_fmac_f32 {v(T+81)}, {v(MLr+2*k)}, {v(MLr+2*k+1)}')
    OO=T+82
    a(f'v_mul_f32 {v(OO)}, {v(MLr)}, {v(DO)}\nv_mul_f32 {v(OO+1)}, {v(MLr+2)}, {v(DO+4)}')
    for k in range(2,8,2):
        a(f'v_fmac_f32 {v(OO)}, {v(MLr+2*k)}, {v(DO+4*k)}\nv_fmac_f32 {v(OO+1)}, {v(MLr+2*k+2)}, {v(DO+4*k+4)}')
else:
    mc,ll,FM,FL=MLr,MLr+1,T+80,T+81
    DP='row_mask:0xf bank_mask:0xf'
    if MO:
        mc,ll=MLr+4,MLr
        a(f'ds_read_b32 {v(mc)}, {v(vMLr)} offset:16\nds_read_b128 {vr(ll,4)}, {v(vMLr)}')
    else:
        a(f'ds_read_b64 {vr(mc,2)}, {v(vMLr)}')
    for kk in range(8): a(f'ds_read_b128 {vr(PA+4*kk,4)}, {v(vPLr)} offset:{kk*256}')
    for kk in range(8):
        a(f's_waitcnt lgkmcnt({7-kk})')
        a(f'v_mfma_f32_16x16x32_bf16 {vr(DO+4*kk,4)}, {vr(PA+4*kk,4)}, {vr(RV+4*kk,4)}, 0')
        if kk==0: a(f'v_max_f32_dpp {v(FM)}, {v(mc)}, {v(mc)} quad_perm:[1,0,3,2] {DP}')
        if kk==0 and MO: a(f'v_add_f32 {v(ll)}, {v(ll)}, {v(ll+1)}\nv_add_f32 {v(ll+2)}, {v(ll+2)}, {v(ll+3)}')
        if kk==1: a(f'v_max_f32_dpp {v(FM)}, {v(FM)}, {v(FM)} quad_perm:[2,3,0,1] {DP}')
        if kk==1 and MO: a(f'v_add_f32 {v(ll)}, {v(ll)}, {v(ll+2)}')
        if kk==2: a(f'v_max_f32_dpp {v(FM)}, {v(FM)}, {v(FM)} row_half_mirror {DP}\nv_sub_f32 {v(mc)}, {v(mc)}, {v(FM)}\nv_exp_f32 {v(mc)}, {v(mc)}')
        if kk==3: a(f'v_mul_f32 {v(FL)}, {v(mc)}, {v(ll)}')
        if kk==4: a(f'v_add_f32_dpp {v(FL)}, {v(FL)}, {v(FL)} quad_perm:[1,0,3,2] {DP}')
        if kk==5: a(f'v_add_f32_dpp {v(FL)}, {v(FL)}, {v(FL)} quad_perm:[2,3,0,1] {DP}\nv_mul_f32_dpp {v(OO)}, {v(mc)}, {v(DO)} row_newbcast:0 {DP}\nv_mul_f32_dpp {v(OO+1)}, {v(mc)}, {v(DO+4)} row_newbcast:1 {DP}')
        if kk==6: a(f'v_add_f32_dpp {v(FL)}, {v(FL)}, {v(FL)} row_half_mirror {DP}\nv_fmac_f32_dpp {v(OO)}, {v(mc)}, {v(DO+8)} row_newbcast:2 {DP}\nv_fmac_f32_dpp {v(OO+1)}, {v(mc)}, {v(DO+12)} row_newbcast:3 {DP}')
    for k in range(4,8):
        a(f'v_fmac_f32_dpp {v(OO+(k%2))}, {v(mc)}, {v(DO+4*k)} row_newbcast:{k} {DP}')
a(f'''
v_add_f32 {v(OO)}, {v(OO)}, {v(OO+1)}
v_mov_b32_dpp {v(OO+1)}, {v(OO)} quad_perm:[1,1,3,3] row_mask:0xf bank_mask:0xf
v_cvt_pk_bf16_f32 {v(OO)}, {v(OO)}, {v(OO+1)}
v_min_u32 {v(OO)}, -2, {v(OO)}
''')
exec_mask(mEVEN)
pub_store(f'buffer_store_dword {v(OO)}, {v(vOwr)}, {srd(SRD_WS)}, s{sOO} offen')
a(f's_cmp_lg_u32 s{sW}, 0\ns_cbranch_scc1 L_p2_noml')
a(f'v_min_u32 {v(T+80)}, -2, {v(T+80)}\nv_min_u32 {v(T+81)}, -2, {v(T+81)}')
exec_mask(mI0)
pub_store(f'buffer_store_dwordx2 {vr(T+80,2)}, {v(vMLwr)}, {srd(SRD_WS)}, s{sOML} offen')
a('L_p2_noml:')
exec_all()
stamp('p2_done')
A0,A1,ML0=T,T+4,T+8
def o_issue():
    a(f's_lshl_b32 s{sT0}, s{sW}, 11\ns_add_u32 m0, s{sT0}, {LV}\ns_nop 0')
    a(f'buffer_load_dwordx4 {v(vOrd)}, {srd(SRD_WS)}, s{sOO} offen sc1 lds')
    a(f'buffer_load_dwordx4 {v(vOrd)}, {srd(SRD_WS)}, s{sOO2} offen offset:1024 sc1 lds')
    a(f'buffer_load_dwordx4 {vr(ML0,4)}, {v(vMLrd)}, {srd(SRD_WS)}, s{sOML} offen sc1')
    a(f'buffer_load_dwordx4 {vr(ML0+4,4)}, {v(vMLrd)}, {srd(SRD_WS)}, s{sOML} offen offset:16 sc1')
if H2A: a('s_waitcnt vmcnt(0)')
else: a(f's_cmp_lg_u32 s{sL}, 0\ns_cbranch_scc1 L_o_noack\ns_waitcnt vmcnt(0)\nL_o_noack:')
if BG:
    MLX=LV+32768
    a(f's_cmp_lg_u32 s{sL}, 0\ns_cbranch_scc1 L_o_retry')
    w_tr(RWO,1,2)
    a(f's_cmp_ge_u32 s{sW}, 4\ns_cbranch_scc1 L_bg_b')
    a(f'''L_bg_retry:
s_lshl_b32 s{sT0}, s{sW}, 11
s_add_u32 m0, s{sT0}, {LV}
s_mov_b32 s{sT1}, 7168
buffer_load_dwordx4 {v(vOrd)}, {srd(SRD_WS)}, 0 offen sc1 lds
buffer_load_dwordx4 {v(vOrd)}, {srd(SRD_WS)}, s{sT1} offen offset:1024 sc1 lds
s_add_u32 m0, s{sT0}, {LV+8192}
s_mov_b32 s{sT1}, 512
s_mov_b32 s{sT2}, 7680
buffer_load_dwordx4 {v(vOrd)}, {srd(SRD_WS)}, s{sT1} offen sc1 lds
buffer_load_dwordx4 {v(vOrd)}, {srd(SRD_WS)}, s{sT2} offen offset:1024 sc1 lds
buffer_load_dwordx4 {vr(ML0,4)}, {v(vMLrd)}, {srd(SRD_WS)}, 0 offen sc1
buffer_load_dwordx4 {vr(ML0+4,4)}, {v(vMLrd)}, {srd(SRD_WS)}, 0 offen offset:16 sc1
buffer_load_dwordx4 {vr(T+32,4)}, {v(vMLrd)}, {srd(SRD_WS)}, 0 offen offset:256 sc1
buffer_load_dwordx4 {vr(T+36,4)}, {v(vMLrd)}, {srd(SRD_WS)}, 0 offen offset:272 sc1
s_waitcnt vmcnt(0)
ds_read_b128 {vr(A0,4)}, {v(vOst0)}
ds_read_b128 {vr(A1,4)}, {v(vOst1)}
ds_read_b128 {vr(T+16,4)}, {v(vOst0)} offset:8192
ds_read_b128 {vr(T+20,4)}, {v(vOst1)} offset:8192
s_waitcnt lgkmcnt(0)''')
    check_valid(list(range(T,T+24))+list(range(T+32,T+40)),'L_bg_ok',T+40)
    spin_check('L_bg_retry')
    a(f'''L_bg_ok:
s_lshl_b32 s{sT0}, s{sW}, 11
s_add_u32 s{sT0}, s{sT0}, {MLX}
v_lshl_add_u32 {v(T+40)}, {v(vL)}, 5, s{sT0}
ds_write_b128 {v(T+40)}, {vr(T+32,4)}
ds_write_b128 {v(T+40)}, {vr(T+36,4)} offset:16
s_waitcnt lgkmcnt(0)
s_barrier
s_branch L_o_ok
L_bg_b:''')
    for dt in (4,0):
        lg=lbl('bgg'); ld=lbl('bgd')
        a(f's_cmp_ge_u32 s{sS}, 14\ns_cbranch_scc1 {lg}')
        a(f'v_subrev_u32 {v(T+62)}, {dt*64*3584}, {v(vWguo)}\ns_sub_u32 s{sT0}, s{sW}, {dt}\ns_lshl_b32 s{sT0}, s{sT0}, 13\ns_add_u32 m0, s{sT0}, {LW}')
        for n in range(4):
            a(f's_mov_b32 s{sT1}, {n*(16*3584-1024)}\nbuffer_load_dwordx4 {v(T+62)}, {srd(SRD_WGU)}, s{sT1} offen offset:{n*1024} {NTW} lds')
        a(f'{lg}:')
        if dt==0: a(f's_cmp_eq_u32 s{sW}, 7\ns_cbranch_scc1 {ld}')
        a(f'v_subrev_u32 {v(T+63)}, {dt*32*1024}, {v(vWdo)}\ns_sub_u32 s{sT0}, s{sW}, {dt}\ns_lshl_b32 s{sT0}, s{sT0}, 11\ns_add_u32 m0, s{sT0}, {LWD}')
        for n in range(2):
            a(f's_mov_b32 s{sT1}, {n*(16*1024-1024)}\nbuffer_load_dwordx4 {v(T+63)}, {srd(SRD_WD)}, s{sT1} offen offset:{n*1024} {NTW} lds')
        a(f'{ld}:')
    a(f'''s_waitcnt lgkmcnt(0)
s_barrier
s_sub_u32 s{sT0}, s{sW}, 4
s_lshl_b32 s{sT0}, s{sT0}, 11
s_add_u32 s{sT0}, s{sT0}, {MLX}
v_lshl_add_u32 {v(T+40)}, {v(vL)}, 5, s{sT0}
ds_read_b128 {vr(A0,4)}, {v(vOst0)}
ds_read_b128 {vr(A1,4)}, {v(vOst1)}
ds_read_b128 {vr(ML0,4)}, {v(T+40)}
ds_read_b128 {vr(ML0+4,4)}, {v(T+40)} offset:16
s_waitcnt lgkmcnt(0)
s_branch L_o_ok''')
else:
    o_issue()
    a(f's_cmp_lg_u32 s{sL}, 0\ns_cbranch_scc1 L_o_wait')
    w_tr(RWO,1,2)
if WGP2:
    a('s_waitcnt lgkmcnt(4)')
    w_tr(RWG,0,2)
    a('s_branch L_o_wait')
elif ALLW:
    a('s_waitcnt lgkmcnt(4)')
    w_tr(RWG,0,2)
    a('s_waitcnt lgkmcnt(4)')
    w_tr(RWD,2,1)
    a('s_branch L_o_wait')
elif WGE:
    a(f's_cmp_ge_u32 s{sS}, 14\ns_cbranch_scc1 L_o_wait')
    w_dma(SRD_WGU, vWguo, 0, 4, 3584, NTW)
    a('s_waitcnt vmcnt(4)\ns_branch L_o_chk')
elif not BG:
    a('s_branch L_o_wait')
a('L_o_retry:')
o_issue()
a('L_o_wait:\ns_waitcnt vmcnt(0)')
a('L_o_chk:')
a(f'ds_read_b128 {vr(A0,4)}, {v(vOst0)}\nds_read_b128 {vr(A1,4)}, {v(vOst1)}\ns_waitcnt lgkmcnt(0)')
check_valid(range(T,T+16),'L_o_ok',T+16)
spin_check('L_o_retry')
a('L_o_ok:')
stamp('o_ok')
if WGP2 and WDO:
    a(f's_cmp_lg_u32 s{sL}, 0\ns_cbranch_scc1 L_p3_go\ns_cmp_eq_u32 s{sW}, 7\ns_cbranch_scc1 L_p3_go')
    w_dma(SRD_WD, vWdo, 2, 2, 1024, NTW)
    a('L_p3_go:')
elif not WGE and not ALLW and not WGP2 and not BG:
    if WDOK:
        a(f's_cmp_lg_u32 s{sL}, 0\ns_cbranch_scc1 L_p3_go\ns_cmp_ge_u32 s{sS}, 14\ns_cbranch_scc1 L_p3_nog')
        w_dma(SRD_WGU, vWguo, 0, 4, 3584, NTW, WGS)
        a(f'L_p3_nog:\ns_cmp_eq_u32 s{sW}, 7\ns_cbranch_scc1 L_p3_go')
        w_dma(SRD_WD, vWdo, 1, 2, 1024, NTW)
    else:
        a(f's_cmp_lg_u32 s{sL}, 0\ns_cbranch_scc1 L_p3_go\ns_cmp_ge_u32 s{sS}, 14\ns_cbranch_scc1 L_p3_go')
        w_dma(SRD_WGU, vWguo, 0, 4, 3584, NTW, WGS)
    if 'd' in PFX:
        a(f's_cmp_eq_u32 s{sW}, 7\ns_cbranch_scc1 L_p3_go')
        pf_wd()
    a('L_p3_go:')
E0,E1=T+16,T+20
a(f'v_mfma_f32_16x16x32_bf16 {vr(E0,4)}, {vr(A0,4)}, {vr(RWO,4)}, 0')
a(f'v_mfma_f32_16x16x32_bf16 {vr(E1,4)}, {vr(A0,4)}, {vr(RWO+4,4)}, 0')
a(f'v_mfma_f32_16x16x32_bf16 {vr(E0,4)}, {vr(A1,4)}, {vr(RWO+8,4)}, {vr(E0,4)}')
a(f'v_mfma_f32_16x16x32_bf16 {vr(E1,4)}, {vr(A1,4)}, {vr(RWO+12,4)}, {vr(E1,4)}')
Mx,tt,Lt=T+24,T+25,T+26
M=[ML0,ML0+2,ML0+4,ML0+6]; Lr=[x+1 for x in M]
a(f'''
v_max3_f32 {v(Mx)}, {v(M[0])}, {v(M[1])}, {v(M[2])}
v_max_f32 {v(Mx)}, {v(Mx)}, {v(M[3])}
v_mov_b32 {v(tt)}, {v(Mx)}
v_permlane16_swap_b32 {v(Mx)}, {v(tt)}
v_max_f32 {v(Mx)}, {v(Mx)}, {v(tt)}
v_mov_b32 {v(tt)}, {v(Mx)}
v_permlane32_swap_b32 {v(Mx)}, {v(tt)}
v_max_f32 {v(Mx)}, {v(Mx)}, {v(tt)}
''')
for r in range(4): a(f'v_sub_f32 {v(M[r])}, {v(M[r])}, {v(Mx)}')
for r in range(4): a(f'v_exp_f32 {v(M[r])}, {v(M[r])}')
a(f'v_mul_f32 {v(Lt)}, {v(M[0])}, {v(Lr[0])}')
for r in range(1,4): a(f'v_fmac_f32 {v(Lt)}, {v(M[r])}, {v(Lr[r])}')
Y0,Y1=T+27,T+28
a(f'''
v_mov_b32 {v(tt)}, {v(Lt)}
v_mul_f32 {v(Y0)}, {v(M[0])}, {v(E0)}
v_mul_f32 {v(Y1)}, {v(M[0])}, {v(E1)}
v_permlane16_swap_b32 {v(Lt)}, {v(tt)}
v_add_f32 {v(Lt)}, {v(Lt)}, {v(tt)}
v_fmac_f32 {v(Y0)}, {v(M[1])}, {v(E0+1)}
v_fmac_f32 {v(Y1)}, {v(M[1])}, {v(E1+1)}
v_mov_b32 {v(tt)}, {v(Lt)}
v_fmac_f32 {v(Y0)}, {v(M[2])}, {v(E0+2)}
v_fmac_f32 {v(Y1)}, {v(M[2])}, {v(E1+2)}
v_permlane32_swap_b32 {v(Lt)}, {v(tt)}
v_add_f32 {v(Lt)}, {v(Lt)}, {v(tt)}
v_fmac_f32 {v(Y0)}, {v(M[3])}, {v(E0+3)}
v_fmac_f32 {v(Y1)}, {v(M[3])}, {v(E1+3)}
v_rcp_f32 {v(Lt)}, {v(Lt)}
v_permlane32_swap_b32 {v(Y0)}, {v(Y1)}
v_add_f32 {v(Y0)}, {v(Y0)}, {v(Y1)}
v_mov_b32 {v(tt)}, {v(Y0)}
v_permlane16_swap_b32 {v(Y0)}, {v(tt)}
v_add_f32 {v(Y0)}, {v(Y0)}, {v(tt)}
v_mul_f32 {v(Y0)}, {v(Y0)}, {v(Lt)}
s_mov_b32 exec_lo, 0xffff
s_mov_b32 exec_hi, 0xffff
ds_write_b32 {v(vP3w)}, {v(Y0)}
s_mov_b64 exec, -1
s_waitcnt lgkmcnt(0)
s_barrier
''')
stamp('p3_bar')
def final8(rd, n, soff, lab, extra=None):
    if extra:
        l0=lbl('f8x')
        a(f's_cmp_eq_u32 s{sW}, 0\ns_cbranch_scc1 {l0}')
        extra(); a(f's_branch {lab}\n{l0}:')
    else:
        a(f's_cmp_lg_u32 s{sW}, 0\ns_cbranch_scc1 {lab}')
    a(f'ds_read_b128 {vr(T,4)}, {v(rd)}\nds_read_b128 {vr(T+4,4)}, {v(rd)} offset:16\ns_waitcnt lgkmcnt(0)')
    a(f'''v_add_f32 {v(T)}, {v(T)}, {v(T+1)}
v_add_f32 {v(T+2)}, {v(T+2)}, {v(T+3)}
v_add_f32 {v(T+4)}, {v(T+4)}, {v(T+5)}''')
    if n==8: a(f'v_add_f32 {v(T+6)}, {v(T+6)}, {v(T+7)}')
    a(f'''v_add_f32 {v(T)}, {v(T)}, {v(T+2)}
v_add_f32 {v(T+4)}, {v(T+4)}, {v(T+6)}
v_add_f32 {v(T)}, {v(T)}, {v(T+4)}
v_mov_b32_dpp {v(T+1)}, {v(T)} quad_perm:[1,1,3,3] row_mask:0xf bank_mask:0xf
v_cvt_pk_bf16_f32 {v(T)}, {v(T)}, {v(T+1)}
v_min_u32 {v(T)}, -2, {v(T)}
s_mov_b32 exec_lo, 0x55555555
s_mov_b32 exec_hi, 0
buffer_store_dword {v(T)}, {v(vDwr)}, {srd(SRD_WS)}, s{soff} offen sc1
s_mov_b64 exec, -1''')
    if extra: extra()
    ack()
    a(f'{lab}:')
    if ACK: a('s_barrier')
def wgu_pretr():
    l=lbl('ptr')
    if BG:
        a(f's_waitcnt vmcnt(0)\n{l}:'); return
    if WDOK:
        a(f's_cmp_lg_u32 s{sL}, 0\ns_cbranch_scc1 {l}')
        a('s_waitcnt vmcnt(0)')
        w_tr(RWG,0,2)
        a('s_waitcnt lgkmcnt(4)')
        w_tr(RWD,1,1)
    else:
        a(f's_cmp_lg_u32 s{sL}, 0\ns_cbranch_scc1 {l}\ns_cmp_ge_u32 s{sS}, 14\ns_cbranch_scc1 {l}')
        a('s_waitcnt vmcnt(0)')
        w_tr(RWG,0,2)
    a(f's_waitcnt lgkmcnt(0)\n{l}:')
final8(vP3r, 8, sOD1, 'L_p3_done', wgu_pretr if PRETR else None)
stamp('p3_done')
d_issue(sOD1)
if BG:
    a(f's_cmp_lg_u32 s{sL}, 0\ns_cbranch_scc1 L_bg_notr')
    w_tr(RWG,0,2)
    a('s_waitcnt lgkmcnt(4)')
    w_tr(RWD,2,1)
    a('s_waitcnt lgkmcnt(0)\nL_bg_notr:')
if not PRETR:
    a(f's_cmp_lg_u32 s{sL}, 0\ns_cbranch_scc1 L_p4_w')
    if WDE and not ALLW and not WGP2:
        a(f's_cmp_eq_u32 s{sW}, 7\ns_cbranch_scc1 L_p4_w7')
        w_dma(SRD_WD, vWdo, 1, 2, 1024, NTW)
        a('s_waitcnt vmcnt(2)\ns_branch L_p4_tr\nL_p4_w7:')
    if ALLW or WGP2:
        a(f's_cmp_ge_u32 s{sS}, 14\ns_cbranch_scc1 L_p4_idle0')
        ln_prev(RWG, True)
        a('s_waitcnt vmcnt(0)')
    else:
        a('s_waitcnt vmcnt(0)\nL_p4_tr:')
        a(f's_cmp_ge_u32 s{sS}, 14\ns_cbranch_scc1 L_p4_idle')
        w_tr(RWG,0,2)
        a('s_waitcnt lgkmcnt(0)')
        ln_prev(RWG, True)
    a('s_branch L_p4_chk')
else:
    a('s_branch L_p4_w\nL_p4_idle:\ns_branch L_p4_idle9')
a('L_p4_w:')
a(f's_cmp_ge_u32 s{sS}, 14\ns_cbranch_scc1 L_p4_idle0')
ln_prev(RWG, False)
a('s_waitcnt vmcnt(0)')
if not PRETR: a('L_p4_chk:')
d_check(sOD1,'d1_ok')
if not BG and not WDOK and ((not WDE and not ALLW and not WGP2) or (WGP2 and not WDO)):
    a(f's_cmp_lg_u32 s{sL}, 0\ns_cbranch_scc1 L_p4_nowd\ns_cmp_eq_u32 s{sW}, 7\ns_cbranch_scc1 L_p4_nowd')
    w_dma(SRD_WD, vWdo, 2 if WGP2 else 1, 2, 1024, NTW)
    a('L_p4_nowd:')
def gu_pub():
    pub_store(f'buffer_store_dword {v(T+12)}, {v(vGUwr)}, {srd(SRD_WS)}, s{sOGU} offen')
    if ACK and H4A:
        l=lbl('gua')
        a(f's_cmp_eq_u32 s{sL}, 0\ns_cbranch_scc1 {l}\ns_waitcnt vmcnt(0)\n{l}:')
ln_post(RWG, gu_pub, 'p4', vCSG)
if ACK and H4A: a('s_barrier')
a('s_branch L_p4_done')
a('L_p4_idle0:\ns_waitcnt vmcnt(0)\n'+('L_p4_idle9:' if PRETR else 'L_p4_idle:'))
d_check(sOD1)
if not BG and not WDOK and ((not WDE and not ALLW and not WGP2) or (WGP2 and not WDO)):
    a(f's_cmp_lg_u32 s{sL}, 0\ns_cbranch_scc1 L_p4_nowd2\ns_cmp_eq_u32 s{sW}, 7\ns_cbranch_scc1 L_p4_nowd2')
    w_dma(SRD_WD, vWdo, 2 if WGP2 else 1, 2, 1024, NTW)
    a('L_p4_nowd2:')
ident_mfma()
x_update(d_sum())
a(f'ds_write_b16 {v(vXw)}, {v(XB)}')
a('L_p4_done:')
stamp('p4_done')
a(f's_cmp_eq_u32 s{sW}, 7\ns_cbranch_scc1 L_p5_bar')
def gu_issue():
    a(f'buffer_load_dword {v(T)}, {v(vGUrd)}, {srd(SRD_WS)}, s{sOGU} offen sc1')
    a(f'buffer_load_dword {v(T+1)}, {v(vGUrd)}, {srd(SRD_WS)}, s{sOGU} offen offset:512 sc1')
a('L_gu_retry:')
gu_issue()
a('L_gu_wait:\ns_waitcnt vmcnt(0)')
check_valid([T,T+1],'L_gu_ok',T+2)
spin_check('L_gu_retry')
a('L_gu_ok:')
if not ALLW and not WDOK and not BG:
    a(f's_cmp_lg_u32 s{sL}, 0\ns_cbranch_scc1 L_gu_nowd')
    w_tr(RWD,2 if WGP2 else 1,1)
    a('L_gu_nowd:')
stamp('gu_ok')
a(f'''
v_lshlrev_b32 {v(T)}, {v(vSh)}, {v(T)}
v_lshlrev_b32 {v(T+1)}, {v(vSh)}, {v(T+1)}
v_and_b32 {v(T)}, 0xffff0000, {v(T)}
v_and_b32 {v(T+1)}, 0xffff0000, {v(T+1)}
v_mul_f32 {v(T)}, s{sNL2E}, {v(T)}
v_exp_f32 {v(T)}, {v(T)}
v_add_f32 {v(T)}, 1.0, {v(T)}
v_rcp_f32 {v(T)}, {v(T)}
v_mul_f32 {v(T)}, {v(T)}, {v(T+1)}
v_cvt_pk_bf16_f32 {v(T)}, {v(T)}, {v(T)}
ds_write_b16 {v(vHw)}, {v(T)}
s_waitcnt lgkmcnt(0)
ds_read_b128 {vr(T+4,4)}, {v(vHr)}
s_waitcnt lgkmcnt(0)
v_mfma_f32_16x16x32_bf16 {vr(T+8,4)}, {vr(T+4,4)}, {vr(RWD,4)}, 0
v_mfma_f32_16x16x32_bf16 {vr(T+12,4)}, {vr(T+4,4)}, {vr(RWD+4,4)}, 0
s_mov_b64 exec, 0xffff
ds_write_b32 {v(vP5w)}, {v(T+8)}
ds_write_b32 {v(vP5w)}, {v(T+12)} offset:{16*48}
s_mov_b64 exec, -1
L_p5_bar:
s_waitcnt lgkmcnt(0)
s_barrier
''')
stamp('p5_bar')
final8(vP5r, 7, sOD2, 'L_p5_done')
stamp('p5_done')
a(f's_cmp_lg_u32 s{sL}, 0\ns_cbranch_scc1 L_final')
a(f'''
s_mov_b32 s{sL}, 1
s_mov_b32 s{sOGU}, 0x400
s_mov_b32 s{sOML}, 0x200
s_mov_b32 s{sOD1}, 0x4000
s_mov_b32 s{sOD2}, 0xC000
s_mov_b32 s{sOO}, 0x4000
s_mov_b32 s{sOO2}, {0x4000+7168}
s_waitcnt lgkmcnt(0)
s_branch L_layer
''')
a('L_final:')
a(f'''
s_cmp_lg_u32 s{sC}, 0
s_cbranch_scc1 L_fin_stamps
s_lshr_b32 s{sT0}, s{sS}, 1
s_cmp_lg_u32 s{sW}, s{sT0}
s_cbranch_scc1 L_fin_stamps
''')
d_issue(sOD2)
a('s_waitcnt vmcnt(0)')
d_check(sOD2)
ident_mfma()
x_update(d_sum())
a(f'''
s_and_b32 s{sT0}, s{sS}, 1
s_cmp_eq_u32 s{sT0}, 0
s_cselect_b32 exec_lo, -1, 0
s_cselect_b32 exec_hi, 0, -1
s_lshl_b32 s{sT0}, s{sB}, 10
v_lshl_add_u32 {v(T)}, v0, 1, s{sT0}
buffer_store_short {v(XB)}, {v(T)}, {srd(SRD_OUT)}, 0 offen
s_mov_b64 exec, -1
s_cmp_lg_u32 s{sS}, 0
s_cbranch_scc1 L_fin_stamps
s_lshl_b32 s{sT0}, s{sB}, 7
s_add_u32 s{sT0}, s{sT0}, {EB}
v_mov_b32 {v(T+2)}, s{sT0}
v_mov_b32 {v(T+1)}, s{sTAG}
s_mov_b64 exec, 1
buffer_store_dword {v(T+1)}, {v(T+2)}, {srd(SRD_WS)}, 0 offen sc1
s_mov_b64 exec, -1
L_fin_stamps:
''')
if int(opt.get('dbgfast',0)):
    a(f'''s_cmp_lg_u32 s{sW}, 0
s_cbranch_scc1 L_nodbg
s_lshl_b32 s{sT0}, s2, 2
s_add_u32 s{sT0}, s{sT0}, 0xE2000
v_mov_b32 {v(T+2)}, s{sT0}
s_lshl_b32 s{sT1}, s{sXCC}, 4
s_or_b32 s{sT1}, s{sT1}, s{sFAST}
v_mov_b32 {v(T+1)}, s{sT1}
s_mov_b64 exec, 1
buffer_store_dword {v(T+1)}, {v(T+2)}, {srd(SRD_WS)}, 0 offen
s_mov_b64 exec, -1
L_nodbg:''')
if STAMPS:
    stamp('end')
    a(f'''
s_lshl_b32 s{sT0}, s2, 3
s_add_u32 s{sT0}, s{sT0}, s{sW}
s_lshl_b32 s{sT0}, s{sT0}, 8
s_add_u32 s{sT0}, s{sT0}, {STAMP_OFF}
v_lshl_add_u32 {v(T)}, {v(vL)}, 2, s{sT0}
buffer_store_dword {v(vSTAMP)}, {v(T)}, {srd(SRD_WS)}, 0 offen
''')
a('s_branch L_end')
a('L_bail:')
a('L_end:\ns_endpgm')
lines=a.text().split('\n')
lines,added=haz.fix(lines)
sys.stderr.write(f'auto nops: {added}; stamps: {stamp_names}\n')
open(sys.argv[1],'w').write(wrap('\n'.join(lines),256,512,LDS_BYTES,nvgpr=256,nsgpr=102))
if STAMPS: open(sys.argv[1]+'.stamps','w').write(','.join(stamp_names))
```

```python
import sys
from asmlib import *
import haz
opt=dict(a.split('=') for a in sys.argv[2:])
STAMPS=int(opt.get('stamps',0)); CPF=int(opt.get('cpf',1))
NT=opt.get('nt','nt'); NTW=opt.get('ntw','nt')
ROLE=opt.get('role','xcd')
FORCESLOW=int(opt.get('slow',0))
SPIN=int(opt.get('spin',1<<17))
ACK=int(opt.get('ack',1))
a=Asm()
GRPSZ=0xC000; QB=0x0400; GUB=0x0800; MLB=0x1000; OB=0x2000
D1B=0xC0000
Q0T=0xD0000; FB=0xE0000; EB=0xE1000; EPC=0x9E3779B9
STAMP_OFF=0x10000000
LV=0; LW=65536; SB=131072
LX=SB; LZ=SB+1024; LPARTC=SB+1280; LPART=SB+2816+0; LPL=SB+4864; LML=SB+6912; LP3=SB+7168; LHB=SB+8704; LP5=SB+9216; LFAST=SB+10752; LQ=SB+10880; LDUM=SB+12288; LWD=SB+12288
LDS_BYTES=SB+12288+16384
MRT=int(opt.get('mrt',0)); LNF=int(opt.get('lnf',0)); EP=int(opt.get('ep',0)); ROTW=int(opt.get('rotw',0)); BG=int(opt.get('bg',0)); QPAD=int(opt.get('qpad',0)); WDOK=int(opt.get('wdok',0)); VHELP=int(opt.get('vhelp',0)); MO=int(opt.get('mo',0)); H1W=int(opt.get('h1w',0)); H4A=int(opt.get('h4a',1)); H2A=int(opt.get('h2a',1)); WOS=int(opt.get('wos',0)); PFX=opt.get('pfx',''); KMID=int(opt.get('kmid',0)); PT=int(opt.get('pt',0)); P2O=int(opt.get('p2o',0)); PRETR=int(opt.get('pretr',0)); WGS=int(opt.get('wgs',0)); KF=int(opt.get('kf',0)); NVE=int(opt.get('nve',0)); KDMA=int(opt.get('kdma',0)); KE=int(opt.get('ke',0)) or KF; PF3=opt.get('pf3','q'); WGP2=int(opt.get('wgp2',0)); WDO=int(opt.get('wdo',0)); ALLW=int(opt.get('allw',0)); VBAR=int(opt.get('vbar',1)); WGE=int(opt.get('wge',1)); WDE=int(opt.get('wde',1)); ILV=int(opt.get('ilv',0)); PF=int(opt.get('pf',1)); NVA=int(opt.get('nva',4)); NV1=int(opt.get('nv1',0)); PFW=int(opt.get('pfw',0)); QBAR=int(opt.get('qbar',1)); WOLATE=int(opt.get('wolate',1)); WGLATE=int(opt.get('wglate',1)); KBAR=int(opt.get('kbar',1)); NTP=opt.get('ntp','')
sW,sC,sR,sB,sS=3,4,5,6,7
SRD_K,SRD_V,SRD_WQ,SRD_WO,SRD_WGU,SRD_WD,SRD_WS,SRD_OUT,SRD_X=32,36,40,44,48,52,56,64,68
sTAG,sXCC,sOO2,sOD2P=60,61,62,63
sL,sFAST,sOGU,sOML,sOD1,sOD2,sOO,sSPIN,s4096,sCS=72,73,76,77,78,79,80,81,82,83
sT0,sT1=84,85
mI4,mEVEN,mI0=86,88,90
sT2,sT3=92,93
mLO=100; sNL2E=94; sGRP=95; sT4,sT5=96,97; sSTP=98
def srd(n): return f's[{n}:{n+3}]'
vTID,vL,vI,vG=0,1,2,3
(vXw,vXr,vPw,vPr,vDrd,vDwr,vQrd,vQwr,vGUwr,vGUrd,vOwr,vOrd,vMLwr,vMLrd,vPLw,vPLr,vMLw,vMLr,vP3w,vP3r,vHw,vHr,vP5w,vP5r,vSh,vX,vSTAMP,vWN0,vWN1,vVr)=range(4,34)
vKo,vVoE,vVoO,vWqo,vWoo,vWguo,vWdo,vOst0,vOst1,vQl=range(34,44)
T=44
XB=T+36
vCSQ,vCSG=37,34
RK,RV,RWQ,RWO,RWG,RWD,RID=128,160,192,208,224,240,248
def v(n): return f'v{n}'
def vr(n,k): return f'v[{n}:{n+k-1}]'
nstamp=[0]; stamp_names=[]
STSEL=opt.get('stsel','')
def spinstamp(lane):
    if STAMPS and int(opt.get('spins',0)): a(f'v_writelane_b32 {v(vSTAMP)}, s{sSPIN}, {lane}')
def stamp(name):
    if not STAMPS: return
    if STAMPS==2 and name!='end' and name not in STSEL.split(','): return
    i=nstamp[0]; nstamp[0]+=1; stamp_names.append(name)
    a(f's_memtime s[{sSTP}:{sSTP+1}]\ns_mul_i32 m0, s{sL}, 30\ns_add_u32 m0, m0, {i+2}\ns_waitcnt lgkmcnt(0)\nv_writelane_b32 {v(vSTAMP)}, s{sSTP}, m0')
uid=[0]
def lbl(p):
    uid[0]+=1; return f'L_{p}_{uid[0]}'
def spin_check(retry):
    a(f's_add_u32 s{sSPIN}, s{sSPIN}, 1\ns_cmp_lt_u32 s{sSPIN}, {SPIN}\ns_cbranch_scc1 {retry}\ns_branch L_bail')
def check_valid(regs_, ok, tmp):
    rs=list(regs_)
    if len(rs)==2:
        a(f'v_max_u32 {v(tmp)}, {v(rs[0])}, {v(rs[1])}')
    else:
        a(f'v_max3_u32 {v(tmp)}, {v(rs[0])}, {v(rs[1])}, {v(rs[2])}')
        k=3; alt=[tmp,tmp+1]; used2=False
        if len(rs)>=8:
            a(f'v_max3_u32 {v(tmp+1)}, {v(rs[3])}, {v(rs[4])}, {v(rs[5])}'); k=6; used2=True
        tog=0
        while k<len(rs):
            d=alt[tog%2] if used2 else tmp
            if k+1<len(rs):
                a(f'v_max3_u32 {v(d)}, {v(d)}, {v(rs[k])}, {v(rs[k+1])}'); k+=2
            else:
                a(f'v_max_u32 {v(d)}, {v(d)}, {v(rs[k])}'); k+=1
            tog+=1
        if used2: a(f'v_max_u32 {v(tmp)}, {v(tmp)}, {v(tmp+1)}')
    a(f'v_cmp_eq_u32 vcc, -1, {v(tmp)}')
    a(f's_cbranch_vccz {ok}')
def exec_all(): a('s_mov_b64 exec, -1')
def exec_mask(m): a(f's_mov_b64 exec, s[{m}:{m+1}]')
def pub_store(instr):
    l1=lbl('pubs'); l2=lbl('pubd')
    a(f's_cmp_eq_u32 s{sFAST}, 0\ns_cbranch_scc1 {l1}')
    a(instr); a(f's_branch {l2}'); a(f'{l1}:'); a(instr+' sc1'); a(f'{l2}:')
def ack():
    if ACK: a('s_waitcnt vmcnt(0)')

a(f'''
s_cmp_ge_u32 s2, 256
s_cbranch_scc1 L_end
s_load_dwordx16 s[8:23], s[0:1], 0
s_load_dwordx8 s[24:31], s[0:1], 64
''')
if CPF:
    a(f'''s_getpc_b64 s[74:75]
L_pc:
s_sub_u32 s74, s74, L_pc-{NAME}
s_subb_u32 s75, s75, 0
s_lshr_b32 s76, s2, 3
s_and_b32 s76, s76, {CPF if CPF>1 else 1}
s_lshl_b32 s76, s76, 13
v_lshlrev_b32 v126, 7, v0
v_add_u32 v126, s76, v126
v_min_u32 v126, L_end-{NAME}, v126
v_cmp_gt_u32 vcc, 64, v0
s_and_saveexec_b64 s[76:77], vcc
s_cbranch_execz L_cpf_done
global_load_dword v127, v126, s[74:75]
L_cpf_done:
s_mov_b64 exec, s[76:77]''')
if STAMPS:
    a(f's_memrealtime s[{sT4}:{sT5}]\ns_memtime s[{sSTP}:{sSTP+1}]')
a(f'''
v_lshrrev_b32 {v(T)}, 6, v0
v_and_b32 {v(vL)}, 63, v0
v_and_b32 {v(vI)}, 15, v0
v_readfirstlane_b32 s{sW}, {v(T)}
v_lshrrev_b32 {v(vG)}, 4, {v(vL)}
''')
if ROLE=='xcd':
    a(f's_and_b32 s{sC}, s2, 7\ns_lshr_b32 s{sR}, s2, 3')
else:
    a(f's_lshr_b32 s{sC}, s2, 3\ns_and_b32 s{sC}, s{sC}, 7\ns_and_b32 s{sR}, s2, 7\ns_lshr_b32 s{sT0}, s2, 6\ns_lshl_b32 s{sT0}, s{sT0}, 3\ns_or_b32 s{sR}, s{sR}, s{sT0}')
a(f'''
s_lshr_b32 s{sB}, s{sR}, 4
s_and_b32 s{sS}, s{sR}, 15
s_lshl_b32 s{sGRP}, s{sB}, 3
s_add_u32 s{sGRP}, s{sGRP}, s{sC}       ; grp = b*8+c
s_mov_b32 s{s4096}, 4096
s_mov_b32 s{sL}, 0
; weight staging voffsets: row = l/4, chunk = (l%4) ^ (2*(l/32))
v_lshrrev_b32 {v(T)}, 2, {v(vL)}
v_and_b32 {v(T+1)}, 3, {v(vL)}
v_lshrrev_b32 {v(T+2)}, 5, {v(vL)}
v_lshlrev_b32 {v(T+2)}, 1, {v(T+2)}
v_xor_b32 {v(T+1)}, {v(T+1)}, {v(T+2)}
v_lshlrev_b32 {v(T+1)}, 4, {v(T+1)}          ; chunk*16
s_lshl_b32 s{sT0}, s{sW}, 6
v_add_u32 {v(T+2)}, s{sT0}, {v(T)}           ; row = 64w + l/4
v_lshl_add_u32 {v(vWqo)}, {v(T+2)}, 13, {v(T+1)}
v_lshl_add_u32 {v(vWoo)}, {v(T+2)}, 10, {v(T+1)}
s_mov_b32 s{sT1}, 3584
v_mul_lo_u32 {v(T+3)}, {v(T+2)}, s{sT1}
v_add_u32 {v(vWguo)}, {v(T+3)}, {v(T+1)}
s_lshl_b32 s{sT0}, s{sW}, 5
v_add_u32 {v(T+2)}, s{sT0}, {v(T)}           ; row = 32w + l/4
v_lshl_add_u32 {v(vWdo)}, {v(T+2)}, 10, {v(T+1)}
v_lshlrev_b32 {v(T+4)}, 1, v0
''')
if STAMPS:
    a(f's_waitcnt lgkmcnt(0)\nv_mov_b32 {v(vSTAMP)}, 0\nv_writelane_b32 {v(vSTAMP)}, s{sT4}, 0\nv_writelane_b32 {v(vSTAMP)}, s{sSTP}, 1')
a('s_waitcnt lgkmcnt(0)')
a(f'''
s_lshl_b32 s{sT0}, s{sB}, 10
s_add_u32 s{SRD_X}, s8, s{sT0}
s_addc_u32 s{SRD_X+1}, s9, 0
s_mov_b32 s{SRD_X+2}, 1024
s_mov_b32 s{SRD_X+3}, 0x20000
s_lshl_b32 s{sT0}, s{sC}, 10
s_lshl_b32 s{sT1}, s{sS}, 6
s_add_u32 s{sT0}, s{sT0}, s{sT1}
s_add_u32 s{SRD_WQ}, s14, s{sT0}
s_addc_u32 s{SRD_WQ+1}, s15, 0
s_sub_u32 s{SRD_WQ+2}, 4194304, s{sT0}
s_mov_b32 s{SRD_WQ+3}, 0x20000
buffer_load_ushort {v(vX)}, {v(T+4)}, {srd(SRD_X)}, 0 offen
''')
def w_dma(srd_, voff, slot, nins, rowstride, nt, n0=0):
    base={2:LWD,3:LV}.get(slot, LW+slot*4096); sh=11 if slot==2 else 13
    if ROTW and n0==0 and nins in (2,4):
        a(f's_lshl_b32 s{sT2}, s{sB}, 1\ns_and_b32 s{sT3}, s{sS}, 1\ns_add_u32 s{sT2}, s{sT2}, s{sT3}\ns_lshl_b32 s{sT3}, s{sW}, {sh}\ns_add_u32 s{sT3}, s{sT3}, {base}')
        for n in range(nins):
            a(f's_add_u32 s{sT0}, s{sT2}, {n}\ns_and_b32 s{sT0}, s{sT0}, {nins-1}\ns_mul_i32 s{sT1}, s{sT0}, {16*rowstride}\ns_lshl_b32 s{sT0}, s{sT0}, 10\ns_add_u32 m0, s{sT3}, s{sT0}\ns_nop 0')
            a(f'buffer_load_dwordx4 {v(voff)}, {srd(srd_)}, s{sT1} offen {nt} lds')
        return
    a(f's_lshl_b32 s{sT0}, s{sW}, {sh}\ns_add_u32 m0, s{sT0}, {base}')
    for n in range(n0,nins):
        if n==0:
            a('s_nop 0'); so='0'
        else:
            a(f's_mov_b32 s{sT1}, {n*(16*rowstride-1024)}'); so=f's{sT1}'
        a(f'buffer_load_dwordx4 {v(voff)}, {srd(srd_)}, {so} offen offset:{n*1024} {nt} lds')
SRD_PF=SRD_X
def pf_setup(ptr_lo, size):
    a(f's_mov_b32 s{SRD_PF}, s{ptr_lo}\ns_mov_b32 s{SRD_PF+1}, s{ptr_lo+1}\ns_mov_b32 s{SRD_PF+2}, {size}\ns_mov_b32 s{SRD_PF+3}, 0x20000')
def pf_m0():
    a(f's_lshl_b32 s{sT0}, s{sW}, 10\ns_add_u32 m0, s{sT0}, {LDUM}')
def pf_load(voff, soff):
    a(f'buffer_load_dwordx4 {v(voff)}, {srd(SRD_PF)}, {soff} offen {NTP} lds')
def pf_wq():
    if 'q' not in PFX: return 0
    pf_setup(14, 4194304); pf_m0()
    a(f's_lshl_b32 s{sT0}, s{sR}, 4\ns_lshl_b32 s{sT1}, s{sW}, 1\ns_add_u32 s{sT0}, s{sT0}, s{sT1}\ns_lshl_b32 s{sT0}, s{sT0}, 13\ns_lshl_b32 s{sT1}, s{sC}, 10\ns_add_u32 s{sT0}, s{sT0}, s{sT1}')
    a(f'v_lshlrev_b32 {v(T+10)}, 4, {v(vL)}')
    pf_load(T+10, f's{sT0}')
    a(f's_add_u32 s{sT0}, s{sT0}, 8192'); pf_load(T+10, f's{sT0}')
    return 2
def pf_wo():
    if 'o' not in PFX: return 0
    pf_setup(16, 4194304); pf_m0()
    a(f's_lshl_b32 s{sT0}, s{sC}, 19\ns_lshl_b32 s{sT1}, s{sR}, 14\ns_add_u32 s{sT0}, s{sT0}, s{sT1}\ns_lshl_b32 s{sT1}, s{sW}, 11\ns_add_u32 s{sT0}, s{sT0}, s{sT1}')
    a(f'v_lshlrev_b32 {v(T+62)}, 4, {v(vL)}')
    pf_load(T+62, f's{sT0}')
    a(f's_add_u32 s{sT0}, s{sT0}, 1024'); pf_load(T+62, f's{sT0}')
    return 2
def pf_wgu():
    if 'g' not in PFX: return 0
    pf_m0()
    a(f's_lshl_b32 s{sT0}, s{sR}, 4\ns_lshl_b32 s{sT1}, s{sW}, 1\ns_add_u32 s{sT0}, s{sT0}, s{sT1}\ns_mul_i32 s{sT0}, s{sT0}, 3584\ns_mul_i32 s{sT1}, s{sC}, 448\ns_add_u32 s{sT2}, s{sT0}, s{sT1}')
    a(f'v_lshrrev_b32 {v(T+62)}, 5, {v(vL)}\nv_mul_u32_u24 {v(T+62)}, 3584, {v(T+62)}\nv_and_b32 {v(T+63)}, 31, {v(vL)}\nv_lshl_add_u32 {v(T+62)}, {v(T+63)}, 4, {v(T+62)}')
    pf_setup(20, 1835008); pf_load(T+62, f's{sT2}')
    pf_setup(22, 1835008); pf_load(T+62, f's{sT2}')
    return 2
def pf_wd():
    if 'd' not in PFX: return 0
    pf_setup(24, 1835008); pf_m0()
    a(f's_mul_i32 s{sT0}, s{sC}, 229376\ns_mul_i32 s{sT1}, s{sR}, 7168\ns_add_u32 s{sT0}, s{sT0}, s{sT1}\ns_lshl_b32 s{sT1}, s{sW}, 10\ns_add_u32 s{sT0}, s{sT0}, s{sT1}')
    a(f'v_lshlrev_b32 {v(T+62)}, 4, {v(vL)}')
    pf_load(T+62, f's{sT0}')
    return 1
def pf3(which, wave, dst):
    if which not in PF3: return
    l=lbl('pf3')
    a(f's_cmp_lg_u32 s{sW}, {wave}\ns_cbranch_scc1 {l}')
    t0,t1=T+60,T+61
    if which=='q':
        pf_setup(14, 4194304)
        a(f'v_and_b32 {v(t0)}, 15, {v(vL)}\ns_lshl_b32 s{sT0}, s{sR}, 4\nv_add_u32 {v(t0)}, s{sT0}, {v(t0)}\nv_lshlrev_b32 {v(t0)}, 13, {v(t0)}\ns_lshl_b32 s{sT0}, s{sC}, 10\ns_add_u32 s{sT0}, s{sT0}, 384')
    elif which=='o':
        pf_setup(16, 4194304)
        a(f'v_and_b32 {v(t0)}, 15, {v(vL)}\ns_lshl_b32 s{sT0}, s{sR}, 4\nv_add_u32 {v(t0)}, s{sT0}, {v(t0)}\nv_lshlrev_b32 {v(t0)}, 10, {v(t0)}\ns_lshl_b32 s{sT0}, s{sC}, 19\ns_add_u32 s{sT0}, s{sT0}, 384')
    elif which=='d':
        pf_setup(24, 1835008)
        a(f'v_and_b32 {v(t0)}, 15, {v(vL)}\nv_min_u32 {v(t0)}, 6, {v(t0)}\ns_mul_i32 s{sT0}, s{sR}, 7\nv_add_u32 {v(t0)}, s{sT0}, {v(t0)}\nv_lshlrev_b32 {v(t0)}, 10, {v(t0)}\ns_mul_i32 s{sT0}, s{sC}, 229376\ns_add_u32 s{sT0}, s{sT0}, 384')
    if which in 'qod':
        a(f'v_lshrrev_b32 {v(t1)}, 4, {v(vL)}\nv_and_b32 {v(t1)}, 1, {v(t1)}\nv_lshl_add_u32 {v(t0)}, {v(t1)}, 6, {v(t0)}')
        a(f's_mov_b32 exec_hi, 0\nbuffer_load_dword {v(dst)}, {v(t0)}, {srd(SRD_PF)}, s{sT0} offen\ns_mov_b32 exec_hi, -1')
    else:
        a(f'''v_and_b32 {v(t0)}, 15, {v(vL)}
s_lshl_b32 s{sT0}, s{sR}, 4
v_add_u32 {v(t0)}, s{sT0}, {v(t0)}
v_mul_u32_u24 {v(t0)}, 28, {v(t0)}
s_mul_i32 s{sT0}, s{sC}, 7
s_lshr_b32 s{sT0}, s{sT0}, 1
v_add_u32 {v(t0)}, s{sT0}, {v(t0)}
v_sub_u32 {v(t1)}, 3, {v(t0)}
v_and_b32 {v(t1)}, 7, {v(t1)}
v_min_u32 {v(t1)}, 4, {v(t1)}
v_add_u32 {v(t0)}, {v(t0)}, {v(t1)}
v_lshlrev_b32 {v(t0)}, 7, {v(t0)}
v_lshrrev_b32 {v(t1)}, 4, {v(vL)}
v_and_b32 {v(t1)}, 1, {v(t1)}
v_lshl_add_u32 {v(t0)}, {v(t1)}, 6, {v(t0)}
s_mov_b32 exec_hi, 0''')
        pf_setup(20, 1835008); a(f'buffer_load_dword {v(dst)}, {v(t0)}, {srd(SRD_PF)}, 0 offen')
        pf_setup(22, 1835008); a(f'buffer_load_dword {v(dst+1)}, {v(t0)}, {srd(SRD_PF)}, 0 offen')
        a('s_mov_b32 exec_hi, -1')
    a(f'{l}:')
def w_tr(dst, slot, nkk):
    if slot==3:
        a(f'v_add_u32 {v(T+60)}, {(LV-LW)&0xffffffff}, {v(vWN0)}\nv_xor_b32 {v(T+61)}, 32, {v(T+60)}')
        for kk in range(nkk):
            for nt_ in range(2):
                for hh in range(2):
                    r=dst+(kk*2+nt_)*4+hh*2
                    a(f'ds_read_b64_tr_b16 {vr(r,2)}, {v(T+60 if nt_==0 else T+61)} offset:{kk*2048+hh*256}')
        return
    if slot==2:
        a(f's_mul_i32 s{sT0}, s{sW}, {(2048-8192)&0xffffffff}\ns_add_u32 s{sT0}, s{sT0}, {(LWD-LW)&0xffffffff}\nv_add_u32 {v(T+60)}, s{sT0}, {v(vWN0)}\nv_xor_b32 {v(T+61)}, 32, {v(T+60)}')
        for nt_ in range(2):
            for hh in range(2):
                r=dst+nt_*4+hh*2
                a(f'ds_read_b64_tr_b16 {vr(r,2)}, {v(T+60 if nt_==0 else T+61)} offset:{hh*256}')
        return
    for kk in range(nkk):
        for nt_ in range(2):
            for hh in range(2):
                r=dst+(kk*2+nt_)*4+hh*2
                a(f'ds_read_b64_tr_b16 {vr(r,2)}, {v(vWN0 if nt_==0 else vWN1)} offset:{slot*4096+kk*2048+hh*256}')
if KE:
    a(f'''s_mov_b32 s{SRD_WS}, s30
s_mov_b32 s{SRD_WS+1}, s31
s_mov_b32 s{SRD_WS+2}, 0x20000000
s_mov_b32 s{SRD_WS+3}, 0x20000
s_cmp_eq_u32 s{sW}, 0
s_cbranch_scc1 L_proto
L_proto_ret:''')
pf3('q',1,T+41)
NPQ=pf_wq()
if not PFW and not ILV: w_dma(SRD_WQ, vWqo, 3 if KF else 0, 4, 8192, NTW)
a(f'''
s_lshl_b32 s{sT0}, s{sGRP}, 23
s_lshl_b32 s{sT1}, s{sS}, 16
s_add_u32 s{sT0}, s{sT0}, s{sT1}
s_add_u32 s{sT0}, s{sT0}, 7340032
s_add_u32 s{SRD_V}, s12, s{sT0}
s_addc_u32 s{SRD_V+1}, s13, 0
s_mov_b32 s{SRD_V+2}, 65536
s_mov_b32 s{SRD_V+3}, 0x20000
s_add_u32 s{SRD_K}, s10, s{sT0}
s_addc_u32 s{SRD_K+1}, s11, 0
s_mov_b32 s{SRD_K+2}, 65536
s_mov_b32 s{SRD_K+3}, 0x20000
s_mov_b32 s{SRD_WS}, s30
s_mov_b32 s{SRD_WS+1}, s31
s_mov_b32 s{SRD_WS+2}, 0x20000000
s_mov_b32 s{SRD_WS+3}, 0x20000
; K voffset = w*8192 + i*256 + g*16
s_lshl_b32 s{sT0}, s{sW}, 13
v_lshlrev_b32 {v(T)}, 8, {v(vI)}
v_lshl_add_u32 {v(T)}, {v(vG)}, 4, {v(T)}
v_add_u32 {v(vKo)}, s{sT0}, {v(T)}
v_lshlrev_b32 {v(T)}, 1, {v(vG)}
v_xor_b32 {v(T)}, {v(T)}, {v(vI)}
v_lshlrev_b32 {v(T)}, 4, {v(T)}
v_lshl_add_u32 {v(vVoE)}, {v(vG)}, 8, {v(T)}
v_xor_b32 {v(vVoO)}, 128, {v(vVoE)}
''')
def k_tile(t):
    for kk in range(4):
        r=RK+(t*4+kk)*4
        so='0' if t==0 else f's{s4096}'
        a(f'buffer_load_dwordx4 {vr(r,4)}, {v(vKo)}, {srd(SRD_K)}, {so} offen offset:{kk*64} {NT}')
def k_first():
    l1=lbl('kf'); l2=lbl('kfd')
    a(f's_add_u32 s{sT0}, s{sW}, s{sS}\ns_bitcmp1_b32 s{sT0}, 0\ns_cbranch_scc1 {l1}')
    k_tile(0); a(f's_branch {l2}\n{l1}:'); k_tile(1); a(f'{l2}:')
def k_second():
    l1=lbl('ks'); l2=lbl('ksd')
    a(f's_add_u32 s{sT0}, s{sW}, s{sS}\ns_bitcmp1_b32 s{sT0}, 0\ns_cbranch_scc1 {l1}')
    k_tile(1); a(f's_branch {l2}\n{l1}:'); k_tile(0); a(f'{l2}:')
def k_dma():
    a(f'''v_xor_b32 {v(T+62)}, {v(vI)}, {v(vG)}
v_lshlrev_b32 {v(T+62)}, 4, {v(T+62)}
v_lshl_add_u32 {v(T+62)}, {v(vG)}, 8, {v(T+62)}
s_add_u32 s{sT2}, s{sW}, s{sS}
s_lshl_b32 s{sT3}, s{sW}, 13''')
    for n in range(8):
        a(f'''s_add_u32 s{sT0}, s{sT2}, {n}
s_and_b32 s{sT0}, s{sT0}, 7
s_and_b32 s{sT1}, s{sT0}, 3
s_lshl_b32 s{sT1}, s{sT1}, 6
v_xor_b32 {v(T+63)}, s{sT1}, {v(T+62)}
s_lshl_b32 s{sT0}, s{sT0}, 10
s_add_u32 s{sT0}, s{sT0}, s{sT3}
s_add_u32 m0, s{sT0}, {LW}
s_nop 0
buffer_load_dwordx4 {v(T+63)}, {srd(SRD_K)}, s{sT0} offen {NT} lds''')
def k_frags():
    a(f'''v_xor_b32 {v(T+62)}, {v(vI)}, {v(vG)}
v_lshlrev_b32 {v(T+62)}, 4, {v(T+62)}
v_lshl_add_u32 {v(T+62)}, {v(vI)}, 8, {v(T+62)}
s_lshl_b32 s{sT0}, s{sW}, 13
s_add_u32 s{sT0}, s{sT0}, {LW}
v_add_u32 {v(T+62)}, s{sT0}, {v(T+62)}''')
    for kk in range(4):
        if kk: a(f'v_xor_b32 {v(T+63)}, {64*kk}, {v(T+62)}')
        r=T+62 if kk==0 else T+63
        for t in range(2): a(f'ds_read_b128 {vr(RK+(t*4+kk)*4,4)}, {v(r)} offset:{t*4096}')
def e_load(dst):
    a(f's_lshl_b32 s{sT0}, s{sB}, 7\ns_add_u32 s{sT0}, s{sT0}, {EB}\nv_mov_b32 {v(dst)}, s{sT0}\nbuffer_load_dword {v(dst)}, {v(dst)}, {srd(SRD_WS)}, 0 offen sc1')
vE=T+30
def v_dma(n0,n1,owner=None):
    if owner is not None:
        a(f's_add_u32 s{sT2}, s{sS}, {owner}\ns_and_b32 s{sT2}, s{sT2}, 3\ns_lshl_b32 s{sT2}, s{sT2}, 1\ns_mov_b32 s{sT3}, {owner<<13}')
    else:
        a(f's_add_u32 s{sT2}, s{sW}, s{sS}\ns_and_b32 s{sT2}, s{sT2}, 3\ns_lshl_b32 s{sT2}, s{sT2}, 1\ns_lshl_b32 s{sT3}, s{sW}, 13')
    for n in range(n0,n1):
        a(f's_add_u32 s{sT0}, s{sT2}, {n}\ns_and_b32 s{sT0}, s{sT0}, 7\ns_lshl_b32 s{sT0}, s{sT0}, 10\ns_add_u32 s{sT0}, s{sT0}, s{sT3}')
        a(f's_add_u32 m0, s{sT0}, {LV}\ns_nop 0')
        a(f'buffer_load_dwordx4 {v(vVoE if n%2==0 else vVoO)}, {srd(SRD_V)}, s{sT0} offen {NT} lds')
def v_pos(hi, n0, n1):
    if n1<=n0: return
    a(f's_add_u32 s{sT2}, s{sW}, s{sS}\ns_lshl_b32 s{sT2}, s{sT2}, 1\ns_lshl_b32 s{sT3}, s{sW}, 13')
    for n in range(n0,n1):
        a(f's_add_u32 s{sT0}, s{sT2}, {n}\ns_and_b32 s{sT0}, s{sT0}, 3\ns_add_u32 s{sT0}, s{sT0}, {4 if hi else 0}\ns_lshl_b32 s{sT0}, s{sT0}, 10\ns_add_u32 s{sT0}, s{sT0}, s{sT3}')
        a(f's_add_u32 m0, s{sT0}, {LV}\ns_nop 0')
        a(f'buffer_load_dwordx4 {v(vVoE if n%2==0 else vVoO)}, {srd(SRD_V)}, s{sT0} offen {NT} lds')
def v_rest():
    if KF:
        v_pos(True,NVE,4); v_pos(False,0,4)
    else: v_dma(NVA,8)
def wq_one(n):
    a(f's_lshl_b32 s{sT0}, s{sW}, 13\ns_add_u32 m0, s{sT0}, {LW}\ns_mov_b32 s{sT1}, {n*(16*8192-1024)}')
    a(f'buffer_load_dwordx4 {v(vWqo)}, {srd(SRD_WQ)}, s{sT1} offen offset:{n*1024} {NTW} lds')
def ilv_issue():
    nv=0
    for n in range(4):
        wq_one(n)
        k=min(ILV, NVA-nv) if n<3 else NVA-nv
        v_dma(nv,nv+k); nv+=k
    return k
if ILV:
    a(f's_cmp_eq_u32 s{sW}, 0\ns_cbranch_scc1 L_proto')
    a(f's_cmp_lg_u32 s{sW}, 7\ns_cbranch_scc1 L_va')
    e_load(vE)
    a('L_va:')
    NTAIL=ilv_issue()
    a('s_branch L_pre_p1')
elif PFW:
    v_dma(0,NV1)
    a(f's_waitcnt vmcnt({NV1})')
    w_dma(SRD_WQ, vWqo, 0, 4, 8192, NTW)
else:
    v_dma(0,NV1)
if KE:
    if QBAR: a('s_barrier')
    a(f's_cmp_lg_u32 s{sW}, 7\ns_cbranch_scc1 L_va')
    e_load(vE)
    a('L_va:')
    if KF:
        k_dma(); v_pos(True,0,NVE); NTAIL=8+NVE
    else:
        v_dma(0,NVA)
        k_first(); k_second()
        NTAIL=NVA+8
    a('s_branch L_pre_p1')
elif not ILV:
    if QBAR: a('s_barrier')
    a(f's_cmp_eq_u32 s{sW}, 0\ns_cbranch_scc1 L_proto')
    a(f's_cmp_lg_u32 s{sW}, 7\ns_cbranch_scc1 L_va')
    e_load(vE)
    a('L_va:')
    v_dma(NV1,NVA)
    a('s_branch L_pre_p1')
    NTAIL=NVA-NV1
OLDCPF='' if CPF else '''; code prefetch into L2: (r&7)*2KB + lane*128 (16 lanes), clamped to the code size
s_getpc_b64 s[74:75]
L_pc:
s_sub_u32 s74, s74, L_pc-'''+NAME+'''
s_subb_u32 s75, s75, 0
s_and_b32 s84, s5, 7
s_lshl_b32 s84, s84, 11
v_and_b32 v45, 15, v1
v_lshl_add_u32 v45, v45, 7, s84
v_min_u32 v45, L_end-'''+NAME+''', v45
global_load_dword v84, v45, s[74:75]
'''
a('L_proto:')
e_load(vE)
a(f'''
s_mul_i32 s{sT0}, s{sGRP}, {GRPSZ}
s_mul_i32 s{sT1}, s{sS}, 3072
s_add_u32 s{sT0}, s{sT0}, s{sT1}
v_lshl_add_u32 {v(T)}, {v(vL)}, 4, s{sT0}
v_mov_b32 {v(T+4)}, -1
v_mov_b32 {v(T+5)}, -1
v_mov_b32 {v(T+6)}, -1
v_mov_b32 {v(T+7)}, -1
buffer_store_dwordx4 {vr(T+4,4)}, {v(T)}, {srd(SRD_WS)}, 0 offen sc1
buffer_store_dwordx4 {vr(T+4,4)}, {v(T)}, {srd(SRD_WS)}, 0 offen offset:1024 sc1
buffer_store_dwordx4 {vr(T+4,4)}, {v(T)}, {srd(SRD_WS)}, 0 offen offset:2048 sc1
; my four 64-byte partial-sum pieces: D1B + b*0x2000 + (s/2)*1024 + c*128 + (s%2)*64 + (l>>2)*0x4000 + (l&3)*16
s_lshl_b32 s{sT0}, s{sB}, 13
s_lshr_b32 s{sT1}, s{sS}, 1
s_lshl_b32 s{sT1}, s{sT1}, 10
s_add_u32 s{sT0}, s{sT0}, s{sT1}
s_lshl_b32 s{sT1}, s{sC}, 7
s_add_u32 s{sT0}, s{sT0}, s{sT1}
s_and_b32 s{sT1}, s{sS}, 1
s_lshl_b32 s{sT1}, s{sT1}, 6
s_add_u32 s{sT0}, s{sT0}, s{sT1}
s_add_u32 s{sT0}, s{sT0}, {D1B}
v_lshrrev_b32 {v(T+1)}, 2, {v(vL)}
v_lshlrev_b32 {v(T+1)}, 14, {v(T+1)}
v_and_b32 {v(T+2)}, 3, {v(vL)}
v_lshl_add_u32 {v(T+1)}, {v(T+2)}, 4, {v(T+1)}
v_add_u32 {v(T+1)}, s{sT0}, {v(T+1)}
s_mov_b64 exec, 0xffff
buffer_store_dwordx4 {vr(T+4,4)}, {v(T+1)}, {srd(SRD_WS)}, 0 offen sc1
s_mov_b64 exec, -1
{OLDCPF}
''')
if ILV: ilv_issue()
if KE: a('s_branch L_proto_ret')
a('L_pre_p1:')
stamp('issued0')
a(f's_getreg_b32 s{sXCC}, hwreg(HW_REG_XCC_ID, 0, 4)')
MLFIX=f'''v_and_b32 {v(T)}, 7, {v(vI)}
v_lshl_add_u32 {v(vMLr)}, {v(T)}, 3, {v(vMLr)}''' if P2O else ''
if MO:
    MLFIX=f'''s_lshl_b32 s{sT2}, s{sW}, 5
s_add_u32 s{sT2}, s{sT2}, {LDUM}
v_lshlrev_b32 {v(T)}, 8, {v(vI)}
v_add_u32 {v(T)}, s{sT2}, {v(T)}
v_lshl_add_u32 {v(vMLw)}, {v(vG)}, 2, {v(T)}
v_and_b32 {v(T)}, 7, {v(vI)}
v_lshlrev_b32 {v(T)}, 5, {v(T)}
v_lshl_add_u32 {v(T)}, {v(vG)}, 8, {v(T)}
v_add_u32 {v(vMLr)}, {LDUM}, {v(T)}'''
QS=320 if QPAD else 256
a(f'''
v_lshlrev_b32 {v(vXw)}, 1, v0
v_add_u32 {v(vXw)}, {LX}, {v(vXw)}
s_lshl_b32 s{sT0}, s{sW}, 7
v_lshl_add_u32 {v(vXr)}, {v(vG)}, 4, s{sT0}
v_add_u32 {v(vXr)}, {LX}, {v(vXr)}
v_cmp_eq_u32 vcc, 0, {v(vI)}
v_mov_b32 {v(T)}, {LZ}
s_lshl_b32 s{sT1}, s{sW}, 3
v_cndmask_b32 {v(vXr)}, {v(T)}, {v(vXr)}, vcc
s_lshl_b32 s{sT2}, s{sW}, 2
s_add_u32 s{sT2}, s{sT2}, {LPART+32*48}
v_mov_b32 {v(vPw)}, s{sT2}
v_min_u32 {v(T)}, 33, {v(vL)}
v_mul_u32_u24 {v(T)}, 48, {v(T)}
v_add_u32 {v(vPr)}, {LPART}, {v(T)}
s_lshl_b32 s{sT0}, s{sW}, 8
v_lshlrev_b32 {v(T)}, 6, {v(vI)}
v_lshl_add_u32 {v(T)}, {v(vG)}, 4, {v(T)}
v_add_u32 {v(T)}, s{sT0}, {v(T)}
v_add_u32 {v(vPLw)}, {LPL}, {v(T)}
v_lshrrev_b32 {v(T)}, 2, {v(vI)}
v_lshlrev_b32 {v(T)}, 6, {v(T)}
v_lshl_add_u32 {v(T)}, {v(vG)}, 4, {v(T)}
v_add_u32 {v(vPLr)}, {LPL}, {v(T)}
v_lshlrev_b32 {v(T)}, 6, {v(vI)}
v_add_u32 {v(T)}, s{sT1}, {v(T)}
v_add_u32 {v(vMLw)}, {LML}, {v(T)}
v_lshlrev_b32 {v(T)}, 6, {v(vG)}
v_add_u32 {v(vMLr)}, {LML}, {v(T)}
{MLFIX}
v_lshrrev_b32 {v(T)}, 5, {v(vL)}
v_lshl_add_u32 {v(T)}, {v(T)}, 4, {v(vI)}
v_mul_u32_u24 {v(T)}, 48, {v(T)}
s_lshl_b32 s{sT0}, s{sW}, 2
v_add_u32 {v(T)}, s{sT0}, {v(T)}
v_add_u32 {v(vP3w)}, {LP3}, {v(T)}
v_and_b32 {v(T+1)}, 31, {v(vL)}
v_mul_u32_u24 {v(T)}, 48, {v(T+1)}
v_add_u32 {v(vP3r)}, {LP3}, {v(T)}
v_add_u32 {v(vP5r)}, {LP5}, {v(T)}
v_mul_u32_u24 {v(T)}, 48, {v(vI)}
v_add_u32 {v(T)}, s{sT0}, {v(T)}
v_add_u32 {v(vP5w)}, {LP5}, {v(T)}
; H bounce: write LHB + w*64 + (l%32)*2 ; read LHB + w*64 + g*16
s_lshl_b32 s{sT0}, s{sW}, 6
v_lshl_add_u32 {v(T)}, {v(T+1)}, 1, s{sT0}
v_add_u32 {v(vHw)}, {LHB}, {v(T)}
v_lshl_add_u32 {v(T)}, {v(vG)}, 4, s{sT0}
v_add_u32 {v(vHr)}, {LHB}, {v(T)}
v_and_b32 {v(T)}, 1, {v(vL)}
v_lshlrev_b32 {v(T)}, 4, {v(T)}
v_sub_u32 {v(vSh)}, 16, {v(T)}
v_lshrrev_b32 {v(T)}, 2, {v(vI)}
v_lshl_add_u32 {v(T)}, {v(vG)}, 3, {v(T)}
v_lshlrev_b32 {v(T)}, 6, {v(T)}
v_and_b32 {v(T+2)}, 3, {v(vI)}
v_lshrrev_b32 {v(T+3)}, 1, {v(T+2)}
v_and_b32 {v(T+4)}, 1, {v(vG)}
v_lshlrev_b32 {v(T+4)}, 1, {v(T+4)}
v_xor_b32 {v(T+3)}, {v(T+3)}, {v(T+4)}
v_lshl_add_u32 {v(T)}, {v(T+3)}, 4, {v(T)}
v_and_b32 {v(T+3)}, 1, {v(T+2)}
v_lshl_add_u32 {v(T)}, {v(T+3)}, 3, {v(T)}
s_lshl_b32 s{sT0}, s{sW}, 13
s_add_u32 s{sT0}, s{sT0}, {LW}
v_add_u32 {v(vWN0)}, s{sT0}, {v(T)}
v_xor_b32 {v(vWN1)}, 32, {v(vWN0)}
v_lshrrev_b32 {v(T)}, 2, {v(vI)}                 ; r
v_lshl_add_u32 {v(T+3)}, {v(vG)}, 2, {v(T)}      ; 4g+r
v_lshlrev_b32 {v(T+3)}, 8, {v(T+3)}
v_and_b32 {v(T+4)}, 1, {v(vG)}
v_lshlrev_b32 {v(T+4)}, 2, {v(T+4)}
v_add_u32 {v(T+4)}, {v(T+4)}, {v(T)}
v_lshlrev_b32 {v(T+4)}, 1, {v(T+4)}              ; 8*(g&1)+2r
v_lshrrev_b32 {v(T+5)}, 1, {v(T+2)}
s_lshl_b32 s{sT0}, s{sW}, 1
v_add_u32 {v(T+5)}, s{sT0}, {v(T+5)}
v_xor_b32 {v(T+5)}, {v(T+5)}, {v(T+4)}
v_lshl_add_u32 {v(T+3)}, {v(T+5)}, 4, {v(T+3)}
v_and_b32 {v(T+5)}, 1, {v(T+2)}
v_lshl_add_u32 {v(vVr)}, {v(T+5)}, 3, {v(T+3)}
s_lshl_b32 s{sT0}, s{sW}, 11
v_and_b32 {v(T)}, 7, {v(vI)}
v_xor_b32 {v(T)}, {v(T)}, {v(vG)}
v_lshlrev_b32 {v(T)}, 4, {v(T)}
v_lshl_add_u32 {v(T)}, {v(vI)}, 7, {v(T)}
v_add_u32 {v(T)}, s{sT0}, {v(T)}
v_add_u32 {v(vOst0)}, {LV}, {v(T)}
v_xor_b32 {v(vOst1)}, 64, {v(vOst0)}
v_and_b32 {v(T)}, 3, {v(vI)}
v_mul_u32_u24 {v(T)}, {QS}, {v(T)}
v_lshl_add_u32 {v(T)}, {v(vG)}, 4, {v(T)}
v_add_u32 {v(vQl)}, {LQ}, {v(T)}
; D read: D1B + b*0x2000 + w*1024 + (i&7)*128 + (i>>3)*64 + g*16
s_lshl_b32 s{sT0}, s{sB}, 13
s_lshl_b32 s{sT1}, s{sW}, 10
s_add_u32 s{sT1}, s{sT1}, s{sT0}
s_add_u32 s{sT1}, s{sT1}, {D1B}
v_and_b32 {v(T)}, 7, {v(vI)}
v_lshlrev_b32 {v(T)}, 7, {v(T)}
v_lshrrev_b32 {v(T+1)}, 3, {v(vI)}
v_lshl_add_u32 {v(T)}, {v(T+1)}, 6, {v(T)}
v_lshl_add_u32 {v(T)}, {v(vG)}, 4, {v(T)}
v_add_u32 {v(vDrd)}, s{sT1}, {v(T)}
; D write: D1B + b*0x2000 + (s/2)*1024 + c*128 + (s%2)*64 + l*2
s_lshr_b32 s{sT1}, s{sS}, 1
s_lshl_b32 s{sT1}, s{sT1}, 10
s_add_u32 s{sT0}, s{sT0}, s{sT1}
s_lshl_b32 s{sT1}, s{sC}, 7
s_add_u32 s{sT0}, s{sT0}, s{sT1}
s_and_b32 s{sT1}, s{sS}, 1
s_lshl_b32 s{sT1}, s{sT1}, 6
s_add_u32 s{sT0}, s{sT0}, s{sT1}
s_add_u32 s{sT0}, s{sT0}, {D1B}
v_lshl_add_u32 {v(vDwr)}, {v(vL)}, 1, s{sT0}
s_mul_i32 s{sT0}, s{sGRP}, {GRPSZ}
s_add_u32 s{sT1}, s{sT0}, {QB}
v_lshl_add_u32 {v(vQrd)}, {v(vL)}, 4, s{sT1}
s_lshl_b32 s{sT2}, s{sS}, 6
s_add_u32 s{sT1}, s{sT1}, s{sT2}
v_lshl_add_u32 {v(vQwr)}, {v(vL)}, 1, s{sT1}
s_lshl_b32 s{sT1}, s{sS}, 6
s_add_u32 s{sT2}, s{sT1}, 64
s_cmp_lt_u32 s{sS}, 7
s_cselect_b32 s{sT1}, s{sT1}, s{sT2}
s_add_u32 s{sT1}, s{sT1}, s{sT0}
s_add_u32 s{sT1}, s{sT1}, {GUB}
v_lshl_add_u32 {v(vGUwr)}, {v(vL)}, 1, s{sT1}
v_and_b32 {v(T)}, 30, {v(vL)}
v_lshlrev_b32 {v(T)}, 1, {v(T)}
s_lshl_b32 s{sT1}, s{sW}, 6
s_add_u32 s{sT1}, s{sT1}, s{sT0}
s_add_u32 s{sT1}, s{sT1}, {GUB}
v_add_u32 {v(vGUrd)}, s{sT1}, {v(T)}
; O write: OB + s*1024 + (g*128 + 16w + i)*2 ; DMA read: OB + (l/8)*1024 + w*128 + ((l%8)^(l/8))*16
s_add_u32 s{sT0}, s{sT0}, {OB}
s_lshl_b32 s{sT1}, s{sS}, 10
s_add_u32 s{sT1}, s{sT1}, s{sT0}
s_lshl_b32 s{sT2}, s{sW}, 5
s_add_u32 s{sT1}, s{sT1}, s{sT2}
v_lshlrev_b32 {v(T)}, 8, {v(vG)}
v_lshl_add_u32 {v(T)}, {v(vI)}, 1, {v(T)}
v_add_u32 {v(vOwr)}, s{sT1}, {v(T)}
s_lshl_b32 s{sT2}, s{sW}, 7
s_add_u32 s{sT1}, s{sT0}, s{sT2}
v_lshrrev_b32 {v(T)}, 3, {v(vL)}
v_and_b32 {v(T+1)}, 7, {v(vL)}
v_xor_b32 {v(T+1)}, {v(T+1)}, {v(T)}
v_lshlrev_b32 {v(T)}, 10, {v(T)}
v_lshl_add_u32 {v(T)}, {v(T+1)}, 4, {v(T)}
v_add_u32 {v(vOrd)}, s{sT1}, {v(T)}
s_mul_i32 s{sT0}, s{sGRP}, {GRPSZ}
s_add_u32 s{sT0}, s{sT0}, {MLB}
s_lshl_b32 s{sT1}, s{sS}, 3
s_add_u32 s{sT1}, s{sT1}, s{sT0}
v_lshl_add_u32 {v(vMLwr)}, {v(vG)}, 7, s{sT1}
s_lshr_b32 s{sT1}, s{sW}, 1
s_lshl_b32 s{sT1}, s{sT1}, 7
s_add_u32 s{sT1}, s{sT1}, s{sT0}
v_lshl_add_u32 {v(vMLrd)}, {v(vG)}, 5, s{sT1}
s_mov_b32 s{mI4}, 0x000f000f
s_mov_b32 s{mI4+1}, 0x000f000f
s_mov_b32 s{mEVEN}, 0x55555555
s_mov_b32 s{mEVEN+1}, 0x55555555
s_mov_b32 s{mI0}, 0x00010001
s_mov_b32 s{mI0+1}, 0x00010001
s_mov_b32 s{sCS}, 0x3e0293ee          ; 128^-0.5 * log2(e)
s_mov_b32 s{sNL2E}, 0xbfb8aa3b        ; -log2(e)
s_mov_b32 s{sOGU}, 0
s_mov_b32 s{sOML}, 0
s_mov_b32 s{sOD1}, 0
s_mov_b32 s{sOD2}, 0x8000
s_mov_b32 s{sOD2P}, 0x8000
s_mov_b32 s{mLO}, -1
s_mov_b32 s{mLO+1}, 0
s_mov_b32 s{sOO}, 0
s_mov_b32 s{sOO2}, 7168
s_mov_b32 s{sSPIN}, 0
s_mov_b32 s{sFAST}, 0
s_lshl_b32 s{sT0}, s{sC}, 19
s_lshl_b32 s{sT1}, s{sS}, 6
s_add_u32 s{sT0}, s{sT0}, s{sT1}
s_add_u32 s{SRD_WO}, s16, s{sT0}
s_addc_u32 s{SRD_WO+1}, s17, 0
s_sub_u32 s{SRD_WO+2}, 4194304, s{sT0}
s_mov_b32 s{SRD_WO+3}, 0x20000
s_mul_i32 s{sT0}, s{sC}, 229376
s_add_u32 s{sT0}, s{sT0}, s{sT1}
s_add_u32 s{SRD_WD}, s24, s{sT0}
s_addc_u32 s{SRD_WD+1}, s25, 0
s_sub_u32 s{SRD_WD+2}, 1835008, s{sT0}
s_mov_b32 s{SRD_WD+3}, 0x20000
s_mul_i32 s{sT0}, s{sC}, 448
s_sub_u32 s{sT2}, s{sT1}, 448
s_cmp_lt_u32 s{sS}, 7
s_cselect_b32 s{sT1}, s{sT1}, s{sT2}
s_cselect_b32 s{sT2}, s20, s22
s_cselect_b32 s{sT3}, s21, s23
s_add_u32 s{sT0}, s{sT0}, s{sT1}
s_add_u32 s{SRD_WGU}, s{sT2}, s{sT0}
s_addc_u32 s{SRD_WGU+1}, s{sT3}, 0
s_sub_u32 s{SRD_WGU+2}, 1835008, s{sT0}
s_mov_b32 s{SRD_WGU+3}, 0x20000
s_mov_b32 s{SRD_OUT}, s26
s_mov_b32 s{SRD_OUT+1}, s27
s_mov_b32 s{SRD_OUT+2}, 2048
s_mov_b32 s{SRD_OUT+3}, 0x20000
v_mov_b32 {v(T)}, 0
v_and_b32 {v(T+1)}, 31, {v(vL)}
v_lshlrev_b32 {v(T+1)}, 2, {v(T+1)}
v_add_u32 {v(T+1)}, {LZ}, {v(T+1)}
ds_write_b32 {v(T+1)}, {v(T)}
v_mov_b32 {v(T)}, 0x3f80
v_lshlrev_b32 {v(T+1)}, 3, {v(vG)}
v_sub_u32 {v(T+1)}, {v(vI)}, {v(T+1)}
v_add_u32 {v(T+2)}, 16, {v(T+1)}
v_mov_b32 {v(T+3)}, 0x3f800000
''')
for blk,src in ((0,T+1),(1,T+2)):
    for r2 in range(4):
        d=RID+blk*4+r2
        a(f'''v_cmp_eq_u32 vcc, {2*r2}, {v(src)}
v_mov_b32 {v(d)}, 0
s_nop 0
v_cndmask_b32 {v(d)}, {v(d)}, {v(T)}, vcc
v_cmp_eq_u32 vcc, {2*r2+1}, {v(src)}
s_nop 1
v_cndmask_b32 {v(d)}, {v(d)}, {v(T+3)}, vcc''')
a(f'''
s_cmp_eq_u32 s{sW}, 0
s_cbranch_scc1 L_wq_w0
s_waitcnt vmcnt({NTAIL})
v_add_u32 {v(vE)}, {EPC}, {v(vE)}
s_nop 0
v_readfirstlane_b32 s{sTAG}, {v(vE)}
s_branch L_wq_landed
L_wq_w0:
s_waitcnt vmcnt({NTAIL if (ILV or KE) else 0})
v_add_u32 {v(vE)}, {EPC}, {v(vE)}
s_nop 0
v_readfirstlane_b32 s{sTAG}, {v(vE)}
s_lshl_b32 s{sT0}, s{sGRP}, 7
s_lshl_b32 s{sT2}, s{sS}, 2
s_add_u32 s{sT0}, s{sT0}, s{sT2}
s_add_u32 s{sT0}, s{sT0}, {FB}
v_mov_b32 {v(T+8)}, s{sT0}
v_add_u32 {v(T+9)}, s{sXCC}, {v(vE)}
s_mov_b64 exec, 1
buffer_store_dword {v(T+9)}, {v(T+8)}, {srd(SRD_WS)}, 0 offen sc1
s_mov_b64 exec, -1
''')
if not ILV and not KE: v_dma(NV1,NVA)
a('L_wq_landed:')
stamp('wq_landed')
w_tr(RWQ,3 if KF else 0,2)
if KMID:
    a('s_waitcnt lgkmcnt(0)')
    k_dma()
a(f'v_lshlrev_b32 {v(vX)}, 16, {v(vX)}')
a(f'v_lshrrev_b32 {v(XB)}, 16, {v(vX)}')
def x_update(delta):
    if MO:
        a(f'''v_add_f32 {v(vX)}, {v(vX)}, {v(delta)}
v_cvt_pk_bf16_f32 {v(XB)}, {v(vX)}, {v(vX)}
v_and_b32 {v(vX)}, 0xffff0000, {v(XB)}''')
        return
    a(f'''v_cvt_pk_bf16_f32 {v(delta)}, {v(delta)}, {v(delta)}
v_and_b32 {v(delta)}, 0xffff0000, {v(delta)}
v_add_f32 {v(vX)}, {v(vX)}, {v(delta)}
v_cvt_pk_bf16_f32 {v(XB)}, {v(vX)}, {v(vX)}
v_and_b32 {v(vX)}, 0xffff0000, {v(XB)}''')
R=T+24
def d_issue(soff): a(f'buffer_load_dwordx4 {vr(R,4)}, {v(vDrd)}, {srd(SRD_WS)}, s{soff} offen sc1')
def d_check(soff, tag=None):
    r=lbl('pd_r'); ok=lbl('pd_ok'); c=lbl('pd_c')
    a(f'{c}:')
    check_valid(range(R,R+4), ok, T+40)
    spin_check(r)
    a(f'{r}:')
    if MRT: a('s_mov_b64 exec, vcc')
    d_issue(soff)
    if MRT: a('s_mov_b64 exec, -1')
    a(f's_waitcnt vmcnt(0)\ns_branch {c}')
    a(f'{ok}:')
    if tag: stamp(tag)
I1,I2=T+28,T+32
def ident_mfma():
    a(f'v_mfma_f32_16x16x32_bf16 {vr(I1,4)}, {vr(R,4)}, {vr(RID,4)}, 0\nv_mfma_f32_16x16x32_bf16 {vr(I2,4)}, {vr(R,4)}, {vr(RID+4,4)}, 0')
def d_sum():
    a(f'''v_add_f32 {v(I1)}, {v(I1)}, {v(I1+1)}
v_add_f32 {v(I1+2)}, {v(I1+2)}, {v(I1+3)}
v_add_f32 {v(I2)}, {v(I2)}, {v(I2+1)}
v_add_f32 {v(I2+2)}, {v(I2+2)}, {v(I2+3)}
v_add_f32 {v(I1)}, {v(I1)}, {v(I1+2)}
v_add_f32 {v(I2)}, {v(I2)}, {v(I2+2)}
v_permlane16_swap_b32 {v(I1)}, {v(I2)}
v_add_f32 {v(I1)}, {v(I1)}, {v(I2)}''')
    return I1
D00,D01,D10,D11=T+8,T+12,T+16,T+20
def ln_prev(W, colsum_if_l0):
    a(f'ds_read_b128 {vr(T,4)}, {v(vXr)}\nds_read_b128 {vr(T+4,4)}, {v(vXr)} offset:64\ns_waitcnt lgkmcnt(0)')
    a(f'v_mfma_f32_16x16x32_bf16 {vr(D00,4)}, {vr(T,4)}, {vr(W,4)}, 0')
    a(f'v_mfma_f32_16x16x32_bf16 {vr(D01,4)}, {vr(T,4)}, {vr(W+4,4)}, 0')
    a(f'v_mfma_f32_16x16x32_bf16 {vr(D00,4)}, {vr(T+4,4)}, {vr(W+8,4)}, {vr(D00,4)}')
    a(f'v_mfma_f32_16x16x32_bf16 {vr(D01,4)}, {vr(T+4,4)}, {vr(W+12,4)}, {vr(D01,4)}')
    l=lbl('cs')
    a(f's_cmp_lg_u32 s{sL}, 0\ns_cbranch_scc1 {l}')
    O1=T+40; C0,C1=T+44,T+48
    for j in range(4): a(f'v_mov_b32 {v(O1+j)}, 0x3f803f80')
    a(f'v_mfma_f32_16x16x32_bf16 {vr(C0,4)}, {vr(O1,4)}, {vr(W,4)}, 0')
    a(f'v_mfma_f32_16x16x32_bf16 {vr(C1,4)}, {vr(O1,4)}, {vr(W+4,4)}, 0')
    a(f'v_mfma_f32_16x16x32_bf16 {vr(C0,4)}, {vr(O1,4)}, {vr(W+8,4)}, {vr(C0,4)}')
    a(f'v_mfma_f32_16x16x32_bf16 {vr(C1,4)}, {vr(O1,4)}, {vr(W+12,4)}, {vr(C1,4)}')
    a(f's_nop 7\nv_cndmask_b32 {v(C0)}, {v(C1)}, {v(C0)}, s[{mLO}:{mLO+1}]')
    a('s_mov_b32 exec_lo, 0xffff\ns_mov_b32 exec_hi, 0xffff')
    a(f'ds_write_b32 {v(vP3w)}, {v(C0)} offset:{LPARTC-LP3 if LPARTC>=LP3 else 0}') if False else None
    a(f'v_add_u32 {v(C0+1)}, {(LPARTC-LP3)&0xffffffff}, {v(vP3w)}\nds_write_b32 {v(C0+1)}, {v(C0)}')
    a('s_mov_b64 exec, -1')
    a(f'{l}:')
def ln_post(W, pub, tag, cs):
    ident_mfma()
    a(f'v_mfma_f32_16x16x32_bf16 {vr(D00,4)}, {vr(R,4)}, {vr(W,4)}, {vr(D00,4)}')
    a(f'v_mfma_f32_16x16x32_bf16 {vr(D01,4)}, {vr(R,4)}, {vr(W+4,4)}, {vr(D01,4)}')
    a(f'v_mfma_f32_16x16x32_bf16 {vr(D10,4)}, {vr(R,4)}, {vr(W+8,4)}, 0')
    a(f'v_mfma_f32_16x16x32_bf16 {vr(D11,4)}, {vr(R,4)}, {vr(W+12,4)}, 0')
    x_update(d_sum())
    a(f'ds_write_b16 {v(vXw)}, {v(XB)}')
    sa,sq=T+38,T+39
    a(f'v_mov_b32 {v(sa)}, {v(vX)}\nv_mul_f32 {v(sq)}, {v(vX)}, {v(vX)}')
    steps=['quad_perm:[1,0,3,2] row_mask:0xf bank_mask:0xf','quad_perm:[2,3,0,1] row_mask:0xf bank_mask:0xf','row_half_mirror row_mask:0xf bank_mask:0xf','row_mirror row_mask:0xf bank_mask:0xf','row_bcast:15 row_mask:0xa bank_mask:0xf','row_bcast:31 row_mask:0xc bank_mask:0xf']
    fill=[f'v_add_f32 {v(D00)}, {v(D00)}, {v(D00+1)}', f'v_add_f32 {v(D00+2)}, {v(D00+2)}, {v(D00+3)}',
          f'v_add_f32 {v(D10)}, {v(D10)}, {v(D10+1)}', f'v_add_f32 {v(D10+2)}, {v(D10+2)}, {v(D10+3)}',
          f'v_add_f32 {v(D01)}, {v(D01)}, {v(D01+1)}', f'v_add_f32 {v(D01+2)}, {v(D01+2)}, {v(D01+3)}',
          f'v_add_f32 {v(D11)}, {v(D11)}, {v(D11+1)}', f'v_add_f32 {v(D11+2)}, {v(D11+2)}, {v(D11+3)}',
          f'v_add_f32 {v(D00)}, {v(D00)}, {v(D00+2)}', f'v_add_f32 {v(D10)}, {v(D10)}, {v(D10+2)}',
          f'v_add_f32 {v(D01)}, {v(D01)}, {v(D01+2)}', f'v_add_f32 {v(D11)}, {v(D11)}, {v(D11+2)}']
    for k,m in enumerate(steps):
        a(fill[2*k]); a(fill[2*k+1])
        a(f'v_add_f32_dpp {v(sa)}, {v(sa)}, {v(sa)} {m}\nv_add_f32_dpp {v(sq)}, {v(sq)}, {v(sq)} {m}')
    a(f'''v_cndmask_b32 {v(D00)}, {v(D10)}, {v(D00)}, s[{mLO}:{mLO+1}]
v_cndmask_b32 {v(D01)}, {v(D11)}, {v(D01)}, s[{mLO}:{mLO+1}]
s_mov_b32 exec_lo, 0
s_mov_b32 exec_hi, 0x80000000
ds_write2_b32 {v(vPw)}, {v(sa)}, {v(sq)} offset0:0 offset1:12
s_mov_b64 exec, -1
v_permlane32_swap_b32 {v(D00)}, {v(D01)}
v_add_f32 {v(D00)}, {v(D00)}, {v(D01)}
v_mov_b32 {v(D01)}, {v(D00)}
v_permlane16_swap_b32 {v(D00)}, {v(D01)}
v_add_f32 {v(D00)}, {v(D00)}, {v(D01)}
v_add_u32 {v(D01)}, {(LPART-LP3)&0xffffffff}, {v(vP3w)}
s_mov_b32 exec_lo, 0xffff
s_mov_b32 exec_hi, 0xffff
ds_write_b32 {v(D01)}, {v(D00)}
s_mov_b64 exec, -1
s_waitcnt lgkmcnt(0)
s_barrier''')
    stamp(tag+'_b2')
    done=lbl('lng_done'); nocs=lbl('nocs')
    a(f's_cmp_lg_u32 s{sW}, 0\ns_cbranch_scc1 {done}')
    a(f'ds_read_b128 {vr(T,4)}, {v(vPr)}\nds_read_b128 {vr(T+4,4)}, {v(vPr)} offset:16')
    a(f's_cmp_lg_u32 s{sL}, 0\ns_cbranch_scc1 {nocs}')
    a(f'''v_add_u32 {v(T+16)}, {(LPARTC-LPART)&0xffffffff}, {v(vPr)}
ds_read_b128 {vr(T+8,4)}, {v(T+16)}
ds_read_b128 {vr(T+12,4)}, {v(T+16)} offset:16
s_waitcnt lgkmcnt(0)
v_add_f32 {v(T+8)}, {v(T+8)}, {v(T+9)}
v_add_f32 {v(T+10)}, {v(T+10)}, {v(T+11)}
v_add_f32 {v(T+12)}, {v(T+12)}, {v(T+13)}
v_add_f32 {v(T+14)}, {v(T+14)}, {v(T+15)}
v_add_f32 {v(T+8)}, {v(T+8)}, {v(T+10)}
v_add_f32 {v(T+12)}, {v(T+12)}, {v(T+14)}
v_add_f32 {v(cs)}, {v(T+8)}, {v(T+12)}
{nocs}:
s_waitcnt lgkmcnt(0)
v_add_f32 {v(T)}, {v(T)}, {v(T+1)}
v_add_f32 {v(T+2)}, {v(T+2)}, {v(T+3)}
v_add_f32 {v(T+4)}, {v(T+4)}, {v(T+5)}
v_add_f32 {v(T+6)}, {v(T+6)}, {v(T+7)}
v_add_f32 {v(T)}, {v(T)}, {v(T+2)}
v_add_f32 {v(T+4)}, {v(T+4)}, {v(T+6)}
v_add_f32 {v(T)}, {v(T)}, {v(T+4)}
s_nop 0
v_readlane_b32 s{sT0}, {v(T)}, 32
v_readlane_b32 s{sT1}, {v(T)}, 33
s_nop 0
v_mov_b32 {v(T+2)}, s{sT0}
v_mov_b32 {v(T+3)}, s{sT1}
v_mul_f32 {v(T+2)}, 0x3b000000, {v(T+2)}          ; mean
v_mul_f32 {v(T+3)}, 0x3b000000, {v(T+3)}          ; E[x^2]
v_fma_f32 {v(T+3)}, -{v(T+2)}, {v(T+2)}, {v(T+3)}
v_fma_f32 {v(T+4)}, -{v(cs)}, {v(T+2)}, {v(T)}
v_max_f32 {v(T+3)}, 0, {v(T+3)}
v_add_f32 {v(T+3)}, 0x3727c5ac, {v(T+3)}          ; + 1e-5
v_rsq_f32 {v(T+3)}, {v(T+3)}
v_mul_f32 {v(T+4)}, {v(T+4)}, {v(T+3)}
v_mov_b32_dpp {v(T+5)}, {v(T+4)} quad_perm:[1,1,3,3] row_mask:0xf bank_mask:0xf
v_cvt_pk_bf16_f32 {v(T+12)}, {v(T+4)}, {v(T+5)}
v_min_u32 {v(T+12)}, -2, {v(T+12)}
s_mov_b32 exec_lo, 0x55555555
s_mov_b32 exec_hi, 0''')
    pub()
    exec_all()
    a(f'{done}:')
a(f'ds_write_b16 {v(vXw)}, {v(XB)}')
for j in range(4): a(f'v_mov_b32 {v(R+j)}, 0')
a('s_waitcnt lgkmcnt(0)')
ln_prev(RWQ, True)
a('s_branch L_p1_post')
a('L_layer:')
if LNF&1:
    ln_prev(RWQ, False)
    d_issue(sOD2P)
else:
    d_issue(sOD2P)
    ln_prev(RWQ, False)
a('s_waitcnt vmcnt(0)')
spinstamp(56)
d_check(sOD2P,'d2_ok')
spinstamp(57)
a('L_p1_post:')
def q_pub():
    l1=lbl('qp1'); l2=lbl('qpd')
    a(f's_cmp_lg_u32 s{sL}, 0\ns_cbranch_scc1 {l1}')
    a(f'''s_lshl_b32 s{sT0}, s{sGRP}, 11
s_lshl_b32 s{sT1}, s{sS}, 7
s_add_u32 s{sT0}, s{sT0}, s{sT1}
s_add_u32 s{sT0}, s{sT0}, {Q0T}
v_lshl_add_u32 {v(T+14)}, {v(vL)}, 2, s{sT0}
s_add_u32 s{sT1}, s{sTAG}, s{sXCC}
v_mov_b32 {v(T+13)}, s{sT1}
buffer_store_dwordx2 {vr(T+12,2)}, {v(T+14)}, {srd(SRD_WS)}, 0 offen sc1
s_branch {l2}
{l1}:''')
    pub_store(f'buffer_store_dword {v(T+12)}, {v(vQwr)}, {srd(SRD_WS)}, 0 offen')
    a(f'{l2}:')
ln_post(RWQ, q_pub, 'p1', vCSQ)
stamp('p1_done')
a(f's_cmp_lg_u32 s{sL}, 0\ns_cbranch_scc1 L_h1_l1')
if not KE:
    if KDMA:
        if not KMID: k_dma()
    else:
        k_first(); k_second()
    if KBAR: a('s_barrier')
stamp('k_issued')
pf3('o',1,T+41); pf3('g',2,T+41); pf3('d',3,T+41)
a(f's_cmp_eq_u32 s{sW}, 0\ns_cbranch_scc1 L_h1_w0\ns_cmp_eq_u32 s{sW}, 7\ns_cbranch_scc1 L_h1_w7')
v_rest()
NVH=0
if VHELP:
    NVH=8-NVA
    a(f's_cmp_lg_u32 s{sW}, 1\ns_cbranch_scc1 L_vh1')
    v_dma(NVA,8,0)
    a(f's_waitcnt vmcnt({2*(8-NVA)})\ns_branch L_vh_k')
    a(f'L_vh1:\ns_cmp_lg_u32 s{sW}, 6\ns_cbranch_scc1 L_vh2')
    v_dma(NVA,8,7)
    a(f's_waitcnt vmcnt({2*(8-NVA)})\ns_branch L_vh_k')
    a('L_vh2:')
def late_w():
    if VBAR: a('s_barrier')
    w_dma(SRD_WO, vWoo, 1, 4, 1024, NTW)
    l1=lbl('lw1'); l2=lbl('lw2')
    a(f's_cmp_ge_u32 s{sS}, 14\ns_cbranch_scc1 {l1}')
    w_dma(SRD_WGU, vWguo, 0, 4, 3584, NTW)
    a(f'{l1}:\ns_cmp_eq_u32 s{sW}, 7\ns_cbranch_scc1 {l2}')
    w_dma(SRD_WD, vWdo, 2, 2, 1024, NTW)
    a(f'{l2}:')
NPO=0
if ALLW:
    NWO=4
    late_w()
else:
    NPO=pf_wo()
    NWO=0 if WOLATE else 4
    if not WOLATE: w_dma(SRD_WO, vWoo, 1, 4, 1024, NTW)
stamp('vw_issued')
if ALLW:
    l1=lbl('kw1'); l2=lbl('kw2')
    a(f's_cmp_ge_u32 s{sS}, 14\ns_cbranch_scc1 {l1}\ns_waitcnt vmcnt({8-NVA+10})\ns_branch {l2}\n{l1}:\ns_waitcnt vmcnt({8-NVA+6})\n{l2}:')
else:
    a(f's_waitcnt vmcnt({(8 if KF else 8-NVA)+NPO+NWO})')
if VHELP: a('L_vh_k:')
stamp('k_landed')
if KDMA: k_frags()
a('s_branch L_h1_bar')
a(f'''L_h1_w7:
s_lshl_b32 s{sT0}, s{sB}, 10
s_add_u32 s{sT0}, s{sT0}, {FB}
v_lshrrev_b32 {v(T+28)}, 3, {v(vL)}
v_lshlrev_b32 {v(T+28)}, 7, {v(T+28)}
v_and_b32 {v(T+29)}, 7, {v(vL)}
v_lshl_add_u32 {v(T+28)}, {v(T+29)}, 3, {v(T+28)}
v_add_u32 {v(T+28)}, s{sT0}, {v(T+28)}
L_f1_retry:
buffer_load_dwordx2 {vr(T+30,2)}, {v(T+28)}, {srd(SRD_WS)}, 0 offen sc1
s_waitcnt vmcnt(0)
v_subrev_u32 {v(T+30)}, s{sTAG}, {v(T+30)}
v_subrev_u32 {v(T+31)}, s{sTAG}, {v(T+31)}
v_max_u32 {v(T+30)}, {v(T+30)}, {v(T+31)}
v_cmp_lt_u32 vcc, 15, {v(T+30)}
s_cbranch_vccz L_h1_rest
''')
spin_check('L_f1_retry')
a(f'''L_h1_w0:
s_lshl_b32 s{sT0}, s{sGRP}, 11
s_add_u32 s{sT0}, s{sT0}, {Q0T}
v_lshl_add_u32 {v(T+16)}, {v(vL)}, 5, s{sT0}
L_q0_retry:
buffer_load_dwordx4 {vr(T,4)}, {v(T+16)}, {srd(SRD_WS)}, 0 offen sc1
buffer_load_dwordx4 {vr(T+4,4)}, {v(T+16)}, {srd(SRD_WS)}, 0 offen offset:16 sc1
s_waitcnt vmcnt(0)
v_subrev_u32 {v(T+1)}, s{sTAG}, {v(T+1)}
v_subrev_u32 {v(T+3)}, s{sTAG}, {v(T+3)}
v_subrev_u32 {v(T+5)}, s{sTAG}, {v(T+5)}
v_subrev_u32 {v(T+7)}, s{sTAG}, {v(T+7)}
v_max3_u32 {v(T+8)}, {v(T+1)}, {v(T+3)}, {v(T+5)}
v_max_u32 {v(T+8)}, {v(T+8)}, {v(T+7)}
v_cmp_lt_u32 vcc, 15, {v(T+8)}
s_cbranch_vccz L_q0_ok''')
spin_check('L_q0_retry')
a(f'''L_q0_ok:
v_min3_u32 {v(T+9)}, {v(T+1)}, {v(T+3)}, {v(T+5)}
v_min_u32 {v(T+9)}, {v(T+9)}, {v(T+7)}
v_cmp_ne_u32 vcc, s{sXCC}, {v(T+8)}
v_cmp_ne_u32 s[{sT2}:{sT3}], s{sXCC}, {v(T+9)}
s_or_b64 vcc, vcc, s[{sT2}:{sT3}]
s_cmp_eq_u64 vcc, 0
s_cselect_b32 s{sT0}, 1, 0
''')
if FORCESLOW: a(f's_mov_b32 s{sT0}, 0')
a(f'''v_mul_u32_u24 {v(T+10)}, {QS}, {v(vG)}
v_lshl_add_u32 {v(T+10)}, {v(vI)}, 4, {v(T+10)}
v_add_u32 {v(T+10)}, {LQ}, {v(T+10)}
ds_write2_b32 {v(T+10)}, {v(T)}, {v(T+2)} offset0:0 offset1:1
ds_write2_b32 {v(T+10)}, {v(T+4)}, {v(T+6)} offset0:2 offset1:3
v_mov_b32 {v(T+11)}, s{sT0}
v_mov_b32 {v(T+12)}, {LFAST}
ds_write_b32 {v(T+12)}, {v(T+11)}
L_h1_rest:''')
if KDMA: k_frags()
if not VHELP: v_rest()
if ALLW: late_w()
else:
    pf_wo()
    if not WOLATE: w_dma(SRD_WO, vWoo, 1, 4, 1024, NTW)
a('s_branch L_h1_bar')
a('L_h1_l1:')
a(f's_cmp_lg_u32 s{sW}, {H1W}\ns_cbranch_scc1 L_h1_bar')
if H1W==0: ack()
a(f'''L_q1_retry:
buffer_load_dwordx4 {vr(T,4)}, {v(vQrd)}, {srd(SRD_WS)}, 0 offen sc1
s_waitcnt vmcnt(0)''')
check_valid(range(T,T+4),'L_q1_ok',T+4)
spin_check('L_q1_retry')
a(f'''L_q1_ok:
v_mul_u32_u24 {v(T+10)}, {QS}, {v(vG)}
v_lshl_add_u32 {v(T+10)}, {v(vI)}, 4, {v(T+10)}
v_add_u32 {v(T+10)}, {LQ}, {v(T+10)}
ds_write_b128 {v(T+10)}, {vr(T,4)}
L_h1_bar:
s_waitcnt lgkmcnt(0)
s_barrier''')
spinstamp(58) if False else None
stamp('q_ok')
if PT:
    a(f'''s_cmp_lg_u32 s{sL}, 0
s_cbranch_scc1 L_nopt
s_cmp_lg_u32 s{sW}, 6
s_cbranch_scc1 L_nopt
s_mul_i32 s{sT0}, s{sGRP}, {GRPSZ}
s_lshl_b32 s{sT1}, s{sS}, 10
s_add_u32 s{sT1}, s{sT1}, {OB}
v_and_b32 {v(T+70)}, 7, {v(vL)}
v_lshlrev_b32 {v(T+70)}, 7, {v(T+70)}
v_lshrrev_b32 {v(T+71)}, 3, {v(vL)}
v_and_b32 {v(T+71)}, 1, {v(T+71)}
v_lshl_add_u32 {v(T+70)}, {v(T+71)}, 14, {v(T+70)}
v_add_u32 {v(T+70)}, s{sT1}, {v(T+70)}
v_subrev_u32 {v(T+71)}, 16, {v(vL)}
s_lshl_b32 s{sT1}, s{sS}, 2
v_add_u32 {v(T+71)}, s{sT1}, {v(T+71)}
v_min_u32 {v(T+71)}, 39, {v(T+71)}
v_lshlrev_b32 {v(T+71)}, 7, {v(T+71)}
v_cmp_gt_u32 vcc, 16, {v(vL)}
s_nop 1
v_cndmask_b32 {v(T+70)}, {v(T+71)}, {v(T+70)}, vcc
s_mov_b32 exec_lo, 0xfffff
s_mov_b32 exec_hi, 0
buffer_load_dword {v(43 if False else T+83)}, {v(T+70)}, {srd(SRD_WS)}, s{sT0} offen sc1
s_mov_b64 exec, -1
L_nopt:''')
Q=T
for kk in range(4): a(f'ds_read_b128 {vr(Q+4*kk,4)}, {v(vQl)} offset:{kk*64}')
if not MO: a(f'v_mov_b32 {v(T+26)}, {LFAST}\nds_read_b32 {v(T+27)}, {v(T+26)}')
S0,S1=T+16,T+20
for kk in range(4):
    a(f's_waitcnt lgkmcnt({(3 if MO else 4)-kk})')
    for t,S in ((0,S0),(1,S1)):
        c='0' if kk==0 else vr(S,4)
        a(f'v_mfma_f32_16x16x32_bf16 {vr(S,4)}, {vr(RK+(t*4+kk)*4,4)}, {vr(Q+4*kk,4)}, {c}')
if WOS or MO:
    a(f's_cmp_lg_u32 s{sL}, 0\ns_cbranch_scc1 L_wos')
    if MO: a(f'v_mov_b32 {v(T+26)}, {LFAST}\nds_read_b32 {v(T+27)}, {v(T+26)}')
    if WOS: w_dma(SRD_WO, vWoo, 1, WOS, 1024, NTW)
    if MO: a(f's_waitcnt lgkmcnt(0)\nv_readfirstlane_b32 s{sFAST}, {v(T+27)}')
    a('L_wos:')
if not MO: a(f's_waitcnt lgkmcnt(0)\nv_readfirstlane_b32 s{sFAST}, {v(T+27)}')
m,m2,tt=T+24,T+25,T+26
MC,LS=T+28,T+29
a(f'''
v_max3_f32 {v(m)}, {v(S0)}, {v(S0+1)}, {v(S0+2)}
v_max3_f32 {v(m2)}, {v(S1)}, {v(S1+1)}, {v(S1+2)}
v_max3_f32 {v(m)}, {v(m)}, {v(S0+3)}, {v(S1+3)}
v_max_f32 {v(m)}, {v(m)}, {v(m2)}
v_mov_b32 {v(tt)}, {v(m)}
v_permlane16_swap_b32 {v(m)}, {v(tt)}
v_max_f32 {v(m)}, {v(m)}, {v(tt)}
v_mov_b32 {v(tt)}, {v(m)}
v_permlane32_swap_b32 {v(m)}, {v(tt)}
v_max_f32 {v(m)}, {v(m)}, {v(tt)}
v_mul_f32 {v(MC)}, s{sCS}, {v(m)}
''')
P=T+32
for t,S in ((0,S0),(1,S1)):
    for r in range(4): a(f'v_fma_f32 {v(P+4*t+r)}, {v(S+r)}, s{sCS}, -{v(MC)}')
for r in range(8): a(f'v_exp_f32 {v(P+r)}, {v(P+r)}')
PK=T+40
for r in range(4): a(f'v_cvt_pk_bf16_f32 {v(PK+r)}, {v(P+2*r)}, {v(P+2*r+1)}')
if ALLW:
    VWAIT=f'''s_cmp_ge_u32 s{sS}, 14
s_cbranch_scc1 L_vw_a
s_cmp_eq_u32 s{sW}, 7
s_cbranch_scc1 L_vw_b
s_waitcnt vmcnt(10)
s_branch L_p2_nov
L_vw_b:
s_waitcnt vmcnt(8)
s_branch L_p2_nov
L_vw_a:
s_cmp_eq_u32 s{sW}, 7
s_cbranch_scc1 L_vw_c
s_waitcnt vmcnt(6)
s_branch L_p2_nov
L_vw_c:
s_waitcnt vmcnt(4)'''
else:
    VWAIT=f's_waitcnt vmcnt({NPO+NWO+WOS})'
LML2=LDUM
if MO:
    LTAIL=f'''s_mov_b64 exec, s[{mI4}:{mI4+1}]
ds_write_b32 {v(vMLw)}, {v(LS)}
s_mov_b64 exec, 15
ds_write_b32 {v(vMLw)}, {v(MC)} offset:16
s_mov_b64 exec, -1'''
else:
    LTAIL=f'''v_mov_b32 {v(tt)}, {v(LS)}
v_permlane16_swap_b32 {v(LS)}, {v(tt)}
v_add_f32 {v(LS)}, {v(LS)}, {v(tt)}
v_mov_b32 {v(tt)}, {v(LS)}
v_permlane32_swap_b32 {v(LS)}, {v(tt)}
v_add_f32 {v(LS)}, {v(LS)}, {v(tt)}
s_mov_b64 exec, 15
ds_write_b64 {v(vMLw)}, {vr(MC,2)}
s_mov_b64 exec, -1'''
exec_mask(mI4)
a(f'ds_write_b128 {v(vPLw)}, {vr(PK,4)}')
exec_all()
a(f'''
v_add_f32 {v(P)}, {v(P)}, {v(P+1)}
v_add_f32 {v(P+2)}, {v(P+2)}, {v(P+3)}
v_add_f32 {v(P+4)}, {v(P+4)}, {v(P+5)}
v_add_f32 {v(P+6)}, {v(P+6)}, {v(P+7)}
v_add_f32 {v(P)}, {v(P)}, {v(P+2)}
v_add_f32 {v(P+4)}, {v(P+4)}, {v(P+6)}
v_add_f32 {v(LS)}, {v(P)}, {v(P+4)}
{LTAIL}
s_cmp_lg_u32 s{sL}, 0
s_cbranch_scc1 L_p2_nov
{VWAIT}
L_p2_nov:
s_waitcnt lgkmcnt(0)
s_barrier
''')
stamp('p2_bar')
a(f's_cmp_lg_u32 s{sL}, 0\ns_cbranch_scc1 L_p2_novt')
if WOLATE and not ALLW and WOS<4: w_dma(SRD_WO, vWoo, 1, 4, 1024, NTW, WOS)
pf_wgu()
if WGS:
    a(f's_cmp_ge_u32 s{sS}, 14\ns_cbranch_scc1 L_p2_nowgs')
    w_dma(SRD_WGU, vWguo, 0, WGS, 3584, NTW)
    a('L_p2_nowgs:')
if WGP2:
    a(f's_cmp_ge_u32 s{sS}, 14\ns_cbranch_scc1 L_p2_nowg')
    w_dma(SRD_WGU, vWguo, 0, 4, 3584, NTW)
    a('L_p2_nowg:')
for kk in range(8):
    for hh in range(2):
        a(f'ds_read_b64_tr_b16 {vr(RV+kk*4+hh*2,2)}, {v(vVr)} offset:{LV+kk*8192+hh*4096}')
a('s_waitcnt lgkmcnt(0)\ns_barrier')
a('L_p2_novt:')
PA=T; MLr=T+32; DO=T+48
OO=T+82
if not P2O:
    for k in range(4): a(f'ds_read_b128 {vr(MLr+4*k,4)}, {v(vMLr)} offset:{16*k}')
    for kk in range(8): a(f'ds_read_b128 {vr(PA+4*kk,4)}, {v(vPLr)} offset:{kk*256}')
    for kk in range(8):
        a(f's_waitcnt lgkmcnt({7-kk})')
        a(f'v_mfma_f32_16x16x32_bf16 {vr(DO+4*kk,4)}, {vr(PA+4*kk,4)}, {vr(RV+4*kk,4)}, 0')
        if kk==0:
            mc=[MLr+2*k for k in range(8)]
            a(f'''v_max3_f32 {v(T+80)}, {v(mc[0])}, {v(mc[1])}, {v(mc[2])}
    v_max3_f32 {v(T+81)}, {v(mc[3])}, {v(mc[4])}, {v(mc[5])}
    v_max3_f32 {v(T+80)}, {v(T+80)}, {v(mc[6])}, {v(mc[7])}
    v_max_f32 {v(T+80)}, {v(T+80)}, {v(T+81)}''')
        if kk==1:
            for k in range(8): a(f'v_sub_f32 {v(MLr+2*k)}, {v(MLr+2*k)}, {v(T+80)}')
        if kk==3:
            for k in range(8): a(f'v_exp_f32 {v(MLr+2*k)}, {v(MLr+2*k)}')
        if kk==6:
            a(f'v_mul_f32 {v(T+81)}, {v(MLr)}, {v(MLr+1)}')
            for k in range(1,8): a(f'v_fmac_f32 {v(T+81)}, {v(MLr+2*k)}, {v(MLr+2*k+1)}')
    OO=T+82
    a(f'v_mul_f32 {v(OO)}, {v(MLr)}, {v(DO)}\nv_mul_f32 {v(OO+1)}, {v(MLr+2)}, {v(DO+4)}')
    for k in range(2,8,2):
        a(f'v_fmac_f32 {v(OO)}, {v(MLr+2*k)}, {v(DO+4*k)}\nv_fmac_f32 {v(OO+1)}, {v(MLr+2*k+2)}, {v(DO+4*k+4)}')
else:
    mc,ll,FM,FL=MLr,MLr+1,T+80,T+81
    DP='row_mask:0xf bank_mask:0xf'
    if MO:
        mc,ll=MLr+4,MLr
        a(f'ds_read_b32 {v(mc)}, {v(vMLr)} offset:16\nds_read_b128 {vr(ll,4)}, {v(vMLr)}')
    else:
        a(f'ds_read_b64 {vr(mc,2)}, {v(vMLr)}')
    for kk in range(8): a(f'ds_read_b128 {vr(PA+4*kk,4)}, {v(vPLr)} offset:{kk*256}')
    for kk in range(8):
        a(f's_waitcnt lgkmcnt({7-kk})')
        a(f'v_mfma_f32_16x16x32_bf16 {vr(DO+4*kk,4)}, {vr(PA+4*kk,4)}, {vr(RV+4*kk,4)}, 0')
        if kk==0: a(f'v_max_f32_dpp {v(FM)}, {v(mc)}, {v(mc)} quad_perm:[1,0,3,2] {DP}')
        if kk==0 and MO: a(f'v_add_f32 {v(ll)}, {v(ll)}, {v(ll+1)}\nv_add_f32 {v(ll+2)}, {v(ll+2)}, {v(ll+3)}')
        if kk==1: a(f'v_max_f32_dpp {v(FM)}, {v(FM)}, {v(FM)} quad_perm:[2,3,0,1] {DP}')
        if kk==1 and MO: a(f'v_add_f32 {v(ll)}, {v(ll)}, {v(ll+2)}')
        if kk==2: a(f'v_max_f32_dpp {v(FM)}, {v(FM)}, {v(FM)} row_half_mirror {DP}\nv_sub_f32 {v(mc)}, {v(mc)}, {v(FM)}\nv_exp_f32 {v(mc)}, {v(mc)}')
        if kk==3: a(f'v_mul_f32 {v(FL)}, {v(mc)}, {v(ll)}')
        if kk==4: a(f'v_add_f32_dpp {v(FL)}, {v(FL)}, {v(FL)} quad_perm:[1,0,3,2] {DP}')
        if kk==5: a(f'v_add_f32_dpp {v(FL)}, {v(FL)}, {v(FL)} quad_perm:[2,3,0,1] {DP}\nv_mul_f32_dpp {v(OO)}, {v(mc)}, {v(DO)} row_newbcast:0 {DP}\nv_mul_f32_dpp {v(OO+1)}, {v(mc)}, {v(DO+4)} row_newbcast:1 {DP}')
        if kk==6: a(f'v_add_f32_dpp {v(FL)}, {v(FL)}, {v(FL)} row_half_mirror {DP}\nv_fmac_f32_dpp {v(OO)}, {v(mc)}, {v(DO+8)} row_newbcast:2 {DP}\nv_fmac_f32_dpp {v(OO+1)}, {v(mc)}, {v(DO+12)} row_newbcast:3 {DP}')
    for k in range(4,8):
        a(f'v_fmac_f32_dpp {v(OO+(k%2))}, {v(mc)}, {v(DO+4*k)} row_newbcast:{k} {DP}')
a(f'''
v_add_f32 {v(OO)}, {v(OO)}, {v(OO+1)}
v_mov_b32_dpp {v(OO+1)}, {v(OO)} quad_perm:[1,1,3,3] row_mask:0xf bank_mask:0xf
v_cvt_pk_bf16_f32 {v(OO)}, {v(OO)}, {v(OO+1)}
v_min_u32 {v(OO)}, -2, {v(OO)}
''')
exec_mask(mEVEN)
pub_store(f'buffer_store_dword {v(OO)}, {v(vOwr)}, {srd(SRD_WS)}, s{sOO} offen')
a(f's_cmp_lg_u32 s{sW}, 0\ns_cbranch_scc1 L_p2_noml')
a(f'v_min_u32 {v(T+80)}, -2, {v(T+80)}\nv_min_u32 {v(T+81)}, -2, {v(T+81)}')
exec_mask(mI0)
pub_store(f'buffer_store_dwordx2 {vr(T+80,2)}, {v(vMLwr)}, {srd(SRD_WS)}, s{sOML} offen')
a('L_p2_noml:')
exec_all()
stamp('p2_done')
A0,A1,ML0=T,T+4,T+8
def o_issue():
    a(f's_lshl_b32 s{sT0}, s{sW}, 11\ns_add_u32 m0, s{sT0}, {LV}\ns_nop 0')
    a(f'buffer_load_dwordx4 {v(vOrd)}, {srd(SRD_WS)}, s{sOO} offen sc1 lds')
    a(f'buffer_load_dwordx4 {v(vOrd)}, {srd(SRD_WS)}, s{sOO2} offen offset:1024 sc1 lds')
    a(f'buffer_load_dwordx4 {vr(ML0,4)}, {v(vMLrd)}, {srd(SRD_WS)}, s{sOML} offen sc1')
    a(f'buffer_load_dwordx4 {vr(ML0+4,4)}, {v(vMLrd)}, {srd(SRD_WS)}, s{sOML} offen offset:16 sc1')
if H2A: a('s_waitcnt vmcnt(0)')
else: a(f's_cmp_lg_u32 s{sL}, 0\ns_cbranch_scc1 L_o_noack\ns_waitcnt vmcnt(0)\nL_o_noack:')
if BG:
    MLX=LV+32768
    a(f's_cmp_lg_u32 s{sL}, 0\ns_cbranch_scc1 L_o_retry')
    w_tr(RWO,1,2)
    a(f's_cmp_ge_u32 s{sW}, 4\ns_cbranch_scc1 L_bg_b')
    a(f'''L_bg_retry:
s_lshl_b32 s{sT0}, s{sW}, 11
s_add_u32 m0, s{sT0}, {LV}
s_mov_b32 s{sT1}, 7168
buffer_load_dwordx4 {v(vOrd)}, {srd(SRD_WS)}, 0 offen sc1 lds
buffer_load_dwordx4 {v(vOrd)}, {srd(SRD_WS)}, s{sT1} offen offset:1024 sc1 lds
s_add_u32 m0, s{sT0}, {LV+8192}
s_mov_b32 s{sT1}, 512
s_mov_b32 s{sT2}, 7680
buffer_load_dwordx4 {v(vOrd)}, {srd(SRD_WS)}, s{sT1} offen sc1 lds
buffer_load_dwordx4 {v(vOrd)}, {srd(SRD_WS)}, s{sT2} offen offset:1024 sc1 lds
buffer_load_dwordx4 {vr(ML0,4)}, {v(vMLrd)}, {srd(SRD_WS)}, 0 offen sc1
buffer_load_dwordx4 {vr(ML0+4,4)}, {v(vMLrd)}, {srd(SRD_WS)}, 0 offen offset:16 sc1
buffer_load_dwordx4 {vr(T+32,4)}, {v(vMLrd)}, {srd(SRD_WS)}, 0 offen offset:256 sc1
buffer_load_dwordx4 {vr(T+36,4)}, {v(vMLrd)}, {srd(SRD_WS)}, 0 offen offset:272 sc1
s_waitcnt vmcnt(0)
ds_read_b128 {vr(A0,4)}, {v(vOst0)}
ds_read_b128 {vr(A1,4)}, {v(vOst1)}
ds_read_b128 {vr(T+16,4)}, {v(vOst0)} offset:8192
ds_read_b128 {vr(T+20,4)}, {v(vOst1)} offset:8192
s_waitcnt lgkmcnt(0)''')
    check_valid(list(range(T,T+24))+list(range(T+32,T+40)),'L_bg_ok',T+40)
    spin_check('L_bg_retry')
    a(f'''L_bg_ok:
s_lshl_b32 s{sT0}, s{sW}, 11
s_add_u32 s{sT0}, s{sT0}, {MLX}
v_lshl_add_u32 {v(T+40)}, {v(vL)}, 5, s{sT0}
ds_write_b128 {v(T+40)}, {vr(T+32,4)}
ds_write_b128 {v(T+40)}, {vr(T+36,4)} offset:16
s_waitcnt lgkmcnt(0)
s_barrier
s_branch L_o_ok
L_bg_b:''')
    for dt in (4,0):
        lg=lbl('bgg'); ld=lbl('bgd')
        a(f's_cmp_ge_u32 s{sS}, 14\ns_cbranch_scc1 {lg}')
        a(f'v_subrev_u32 {v(T+62)}, {dt*64*3584}, {v(vWguo)}\ns_sub_u32 s{sT0}, s{sW}, {dt}\ns_lshl_b32 s{sT0}, s{sT0}, 13\ns_add_u32 m0, s{sT0}, {LW}')
        for n in range(4):
            a(f's_mov_b32 s{sT1}, {n*(16*3584-1024)}\nbuffer_load_dwordx4 {v(T+62)}, {srd(SRD_WGU)}, s{sT1} offen offset:{n*1024} {NTW} lds')
        a(f'{lg}:')
        if dt==0: a(f's_cmp_eq_u32 s{sW}, 7\ns_cbranch_scc1 {ld}')
        a(f'v_subrev_u32 {v(T+63)}, {dt*32*1024}, {v(vWdo)}\ns_sub_u32 s{sT0}, s{sW}, {dt}\ns_lshl_b32 s{sT0}, s{sT0}, 11\ns_add_u32 m0, s{sT0}, {LWD}')
        for n in range(2):
            a(f's_mov_b32 s{sT1}, {n*(16*1024-1024)}\nbuffer_load_dwordx4 {v(T+63)}, {srd(SRD_WD)}, s{sT1} offen offset:{n*1024} {NTW} lds')
        a(f'{ld}:')
    a(f'''s_waitcnt lgkmcnt(0)
s_barrier
s_sub_u32 s{sT0}, s{sW}, 4
s_lshl_b32 s{sT0}, s{sT0}, 11
s_add_u32 s{sT0}, s{sT0}, {MLX}
v_lshl_add_u32 {v(T+40)}, {v(vL)}, 5, s{sT0}
ds_read_b128 {vr(A0,4)}, {v(vOst0)}
ds_read_b128 {vr(A1,4)}, {v(vOst1)}
ds_read_b128 {vr(ML0,4)}, {v(T+40)}
ds_read_b128 {vr(ML0+4,4)}, {v(T+40)} offset:16
s_waitcnt lgkmcnt(0)
s_branch L_o_ok''')
else:
    o_issue()
    a(f's_cmp_lg_u32 s{sL}, 0\ns_cbranch_scc1 L_o_wait')
    w_tr(RWO,1,2)
if WGP2:
    a('s_waitcnt lgkmcnt(4)')
    w_tr(RWG,0,2)
    a('s_branch L_o_wait')
elif ALLW:
    a('s_waitcnt lgkmcnt(4)')
    w_tr(RWG,0,2)
    a('s_waitcnt lgkmcnt(4)')
    w_tr(RWD,2,1)
    a('s_branch L_o_wait')
elif WGE:
    a(f's_cmp_ge_u32 s{sS}, 14\ns_cbranch_scc1 L_o_wait')
    w_dma(SRD_WGU, vWguo, 0, 4, 3584, NTW)
    a('s_waitcnt vmcnt(4)\ns_branch L_o_chk')
elif not BG:
    a('s_branch L_o_wait')
a('L_o_retry:')
o_issue()
a('L_o_wait:\ns_waitcnt vmcnt(0)')
a('L_o_chk:')
a(f'ds_read_b128 {vr(A0,4)}, {v(vOst0)}\nds_read_b128 {vr(A1,4)}, {v(vOst1)}\ns_waitcnt lgkmcnt(0)')
check_valid(range(T,T+16),'L_o_ok',T+16)
spin_check('L_o_retry')
a('L_o_ok:')
spinstamp(59)
stamp('o_ok')
if WGP2 and WDO:
    a(f's_cmp_lg_u32 s{sL}, 0\ns_cbranch_scc1 L_p3_go\ns_cmp_eq_u32 s{sW}, 7\ns_cbranch_scc1 L_p3_go')
    w_dma(SRD_WD, vWdo, 2, 2, 1024, NTW)
    a('L_p3_go:')
elif not WGE and not ALLW and not WGP2 and not BG:
    if WDOK:
        a(f's_cmp_lg_u32 s{sL}, 0\ns_cbranch_scc1 L_p3_go\ns_cmp_ge_u32 s{sS}, 14\ns_cbranch_scc1 L_p3_nog')
        w_dma(SRD_WGU, vWguo, 0, 4, 3584, NTW, WGS)
        a(f'L_p3_nog:\ns_cmp_eq_u32 s{sW}, 7\ns_cbranch_scc1 L_p3_go')
        w_dma(SRD_WD, vWdo, 1, 2, 1024, NTW)
    else:
        a(f's_cmp_lg_u32 s{sL}, 0\ns_cbranch_scc1 L_p3_go\ns_cmp_ge_u32 s{sS}, 14\ns_cbranch_scc1 L_p3_go')
        w_dma(SRD_WGU, vWguo, 0, 4, 3584, NTW, WGS)
    if 'd' in PFX:
        a(f's_cmp_eq_u32 s{sW}, 7\ns_cbranch_scc1 L_p3_go')
        pf_wd()
    a('L_p3_go:')
E0,E1=T+16,T+20
a(f'v_mfma_f32_16x16x32_bf16 {vr(E0,4)}, {vr(A0,4)}, {vr(RWO,4)}, 0')
a(f'v_mfma_f32_16x16x32_bf16 {vr(E1,4)}, {vr(A0,4)}, {vr(RWO+4,4)}, 0')
a(f'v_mfma_f32_16x16x32_bf16 {vr(E0,4)}, {vr(A1,4)}, {vr(RWO+8,4)}, {vr(E0,4)}')
a(f'v_mfma_f32_16x16x32_bf16 {vr(E1,4)}, {vr(A1,4)}, {vr(RWO+12,4)}, {vr(E1,4)}')
Mx,tt,Lt=T+24,T+25,T+26
M=[ML0,ML0+2,ML0+4,ML0+6]; Lr=[x+1 for x in M]
a(f'''
v_max3_f32 {v(Mx)}, {v(M[0])}, {v(M[1])}, {v(M[2])}
v_max_f32 {v(Mx)}, {v(Mx)}, {v(M[3])}
v_mov_b32 {v(tt)}, {v(Mx)}
v_permlane16_swap_b32 {v(Mx)}, {v(tt)}
v_max_f32 {v(Mx)}, {v(Mx)}, {v(tt)}
v_mov_b32 {v(tt)}, {v(Mx)}
v_permlane32_swap_b32 {v(Mx)}, {v(tt)}
v_max_f32 {v(Mx)}, {v(Mx)}, {v(tt)}
''')
for r in range(4): a(f'v_sub_f32 {v(M[r])}, {v(M[r])}, {v(Mx)}')
for r in range(4): a(f'v_exp_f32 {v(M[r])}, {v(M[r])}')
a(f'v_mul_f32 {v(Lt)}, {v(M[0])}, {v(Lr[0])}')
for r in range(1,4): a(f'v_fmac_f32 {v(Lt)}, {v(M[r])}, {v(Lr[r])}')
Y0,Y1=T+27,T+28
a(f'''
v_mov_b32 {v(tt)}, {v(Lt)}
v_mul_f32 {v(Y0)}, {v(M[0])}, {v(E0)}
v_mul_f32 {v(Y1)}, {v(M[0])}, {v(E1)}
v_permlane16_swap_b32 {v(Lt)}, {v(tt)}
v_add_f32 {v(Lt)}, {v(Lt)}, {v(tt)}
v_fmac_f32 {v(Y0)}, {v(M[1])}, {v(E0+1)}
v_fmac_f32 {v(Y1)}, {v(M[1])}, {v(E1+1)}
v_mov_b32 {v(tt)}, {v(Lt)}
v_fmac_f32 {v(Y0)}, {v(M[2])}, {v(E0+2)}
v_fmac_f32 {v(Y1)}, {v(M[2])}, {v(E1+2)}
v_permlane32_swap_b32 {v(Lt)}, {v(tt)}
v_add_f32 {v(Lt)}, {v(Lt)}, {v(tt)}
v_fmac_f32 {v(Y0)}, {v(M[3])}, {v(E0+3)}
v_fmac_f32 {v(Y1)}, {v(M[3])}, {v(E1+3)}
v_rcp_f32 {v(Lt)}, {v(Lt)}
v_permlane32_swap_b32 {v(Y0)}, {v(Y1)}
v_add_f32 {v(Y0)}, {v(Y0)}, {v(Y1)}
v_mov_b32 {v(tt)}, {v(Y0)}
v_permlane16_swap_b32 {v(Y0)}, {v(tt)}
v_add_f32 {v(Y0)}, {v(Y0)}, {v(tt)}
v_mul_f32 {v(Y0)}, {v(Y0)}, {v(Lt)}
s_mov_b32 exec_lo, 0xffff
s_mov_b32 exec_hi, 0xffff
ds_write_b32 {v(vP3w)}, {v(Y0)}
s_mov_b64 exec, -1
s_waitcnt lgkmcnt(0)
s_barrier
''')
stamp('p3_bar')
def final8(rd, n, soff, lab, extra=None, ep=None):
    if ep:
        l0=lbl('f8e')
        a(f's_cmp_eq_u32 s{sW}, 0\ns_cbranch_scc1 {l0}\ns_cmp_lg_u32 s{sL}, 0\ns_cbranch_scc1 {lab}\ns_branch {ep}\n{l0}:')
    elif extra:
        l0=lbl('f8x')
        a(f's_cmp_eq_u32 s{sW}, 0\ns_cbranch_scc1 {l0}')
        extra(); a(f's_branch {lab}\n{l0}:')
    else:
        a(f's_cmp_lg_u32 s{sW}, 0\ns_cbranch_scc1 {lab}')
    a(f'ds_read_b128 {vr(T,4)}, {v(rd)}\nds_read_b128 {vr(T+4,4)}, {v(rd)} offset:16\ns_waitcnt lgkmcnt(0)')
    a(f'''v_add_f32 {v(T)}, {v(T)}, {v(T+1)}
v_add_f32 {v(T+2)}, {v(T+2)}, {v(T+3)}
v_add_f32 {v(T+4)}, {v(T+4)}, {v(T+5)}''')
    if n==8: a(f'v_add_f32 {v(T+6)}, {v(T+6)}, {v(T+7)}')
    a(f'''v_add_f32 {v(T)}, {v(T)}, {v(T+2)}
v_add_f32 {v(T+4)}, {v(T+4)}, {v(T+6)}
v_add_f32 {v(T)}, {v(T)}, {v(T+4)}
v_mov_b32_dpp {v(T+1)}, {v(T)} quad_perm:[1,1,3,3] row_mask:0xf bank_mask:0xf
v_cvt_pk_bf16_f32 {v(T)}, {v(T)}, {v(T+1)}
v_min_u32 {v(T)}, -2, {v(T)}
s_mov_b32 exec_lo, 0x55555555
s_mov_b32 exec_hi, 0
buffer_store_dword {v(T)}, {v(vDwr)}, {srd(SRD_WS)}, s{soff} offen sc1
s_mov_b64 exec, -1''')
    if ep: a(f's_cmp_eq_u32 s{sL}, 0\ns_cbranch_scc1 {ep}')
    elif extra: extra()
    ack()
    a(f'{lab}:')
    if ACK: a('s_barrier')
def wgu_pretr():
    l=lbl('ptr')
    if BG:
        a(f's_waitcnt vmcnt(0)\n{l}:'); return
    if WDOK:
        a(f's_cmp_lg_u32 s{sL}, 0\ns_cbranch_scc1 {l}')
        a('s_waitcnt vmcnt(0)')
        w_tr(RWG,0,2)
        a('s_waitcnt lgkmcnt(4)')
        w_tr(RWD,1,1)
    else:
        a(f's_cmp_lg_u32 s{sL}, 0\ns_cbranch_scc1 {l}\ns_cmp_ge_u32 s{sS}, 14\ns_cbranch_scc1 {l}')
        a('s_waitcnt vmcnt(0)')
        w_tr(RWG,0,2)
    a(f's_waitcnt lgkmcnt(0)\n{l}:')
final8(vP3r, 8, sOD1, 'L_p3_done', wgu_pretr if PRETR else None, 'L_p3_ep' if EP else None)
stamp('p3_done')
if not (LNF&2): d_issue(sOD1)
if EP:
    a('s_branch L_p4_w\nL_p3_ep:')
    d_issue(sOD1)
    a(f's_cmp_ge_u32 s{sS}, 14\ns_cbranch_scc1 L_p4_idle0\ns_waitcnt vmcnt(1)')
    w_tr(RWG,0,2)
    a('s_waitcnt lgkmcnt(0)')
if BG:
    a(f's_cmp_lg_u32 s{sL}, 0\ns_cbranch_scc1 L_bg_notr')
    w_tr(RWG,0,2)
    a('s_waitcnt lgkmcnt(4)')
    w_tr(RWD,2,1)
    a('s_waitcnt lgkmcnt(0)\nL_bg_notr:')
if not PRETR:
    a(f's_cmp_lg_u32 s{sL}, 0\ns_cbranch_scc1 L_p4_w')
    if WDE and not ALLW and not WGP2:
        a(f's_cmp_eq_u32 s{sW}, 7\ns_cbranch_scc1 L_p4_w7')
        w_dma(SRD_WD, vWdo, 1, 2, 1024, NTW)
        a('s_waitcnt vmcnt(2)\ns_branch L_p4_tr\nL_p4_w7:')
    if ALLW or WGP2:
        a(f's_cmp_ge_u32 s{sS}, 14\ns_cbranch_scc1 L_p4_idle0')
        ln_prev(RWG, True)
        a('s_waitcnt vmcnt(0)')
    else:
        a('s_waitcnt vmcnt(0)\nL_p4_tr:')
        a(f's_cmp_ge_u32 s{sS}, 14\ns_cbranch_scc1 L_p4_idle')
        w_tr(RWG,0,2)
        a('s_waitcnt lgkmcnt(0)')
        ln_prev(RWG, True)
    a('s_branch L_p4_chk')
elif not EP:
    a('s_branch L_p4_w\nL_p4_idle:\ns_branch L_p4_idle9')
a('L_p4_w:')
if LNF&2:
    a(f's_cmp_ge_u32 s{sS}, 14\ns_cbranch_scc1 L_p4_idle1')
    ln_prev(RWG, False)
    d_issue(sOD1)
else:
    a(f's_cmp_ge_u32 s{sS}, 14\ns_cbranch_scc1 L_p4_idle0')
    ln_prev(RWG, False)
a('s_waitcnt vmcnt(0)')
if not PRETR: a('L_p4_chk:')
spinstamp(60)
d_check(sOD1,'d1_ok')
spinstamp(61)
if not BG and not WDOK and ((not WDE and not ALLW and not WGP2) or (WGP2 and not WDO)):
    a(f's_cmp_lg_u32 s{sL}, 0\ns_cbranch_scc1 L_p4_nowd\ns_cmp_eq_u32 s{sW}, 7\ns_cbranch_scc1 L_p4_nowd')
    w_dma(SRD_WD, vWdo, 2 if WGP2 else 1, 2, 1024, NTW)
    a('L_p4_nowd:')
def gu_pub():
    pub_store(f'buffer_store_dword {v(T+12)}, {v(vGUwr)}, {srd(SRD_WS)}, s{sOGU} offen')
    if ACK and H4A:
        l=lbl('gua')
        a(f's_cmp_eq_u32 s{sL}, 0\ns_cbranch_scc1 {l}\ns_waitcnt vmcnt(0)\n{l}:')
ln_post(RWG, gu_pub, 'p4', vCSG)
if ACK and H4A: a('s_barrier')
a('s_branch L_p4_done')
if LNF&2:
    a('L_p4_idle1:'); d_issue(sOD1)
a('L_p4_idle0:\ns_waitcnt vmcnt(0)\n'+('L_p4_idle9:' if PRETR else 'L_p4_idle:'))
d_check(sOD1)
if not BG and not WDOK and ((not WDE and not ALLW and not WGP2) or (WGP2 and not WDO)):
    a(f's_cmp_lg_u32 s{sL}, 0\ns_cbranch_scc1 L_p4_nowd2\ns_cmp_eq_u32 s{sW}, 7\ns_cbranch_scc1 L_p4_nowd2')
    w_dma(SRD_WD, vWdo, 2 if WGP2 else 1, 2, 1024, NTW)
    a('L_p4_nowd2:')
ident_mfma()
x_update(d_sum())
a(f'ds_write_b16 {v(vXw)}, {v(XB)}')
a('L_p4_done:')
stamp('p4_done')
a(f's_cmp_eq_u32 s{sW}, 7\ns_cbranch_scc1 L_p5_bar')
def gu_issue():
    a(f'buffer_load_dword {v(T)}, {v(vGUrd)}, {srd(SRD_WS)}, s{sOGU} offen sc1')
    a(f'buffer_load_dword {v(T+1)}, {v(vGUrd)}, {srd(SRD_WS)}, s{sOGU} offen offset:512 sc1')
a('L_gu_retry:')
gu_issue()
a('L_gu_wait:\ns_waitcnt vmcnt(0)')
check_valid([T,T+1],'L_gu_ok',T+2)
spin_check('L_gu_retry')
a('L_gu_ok:')
if not ALLW and not WDOK and not BG:
    a(f's_cmp_lg_u32 s{sL}, 0\ns_cbranch_scc1 L_gu_nowd')
    w_tr(RWD,2 if WGP2 else 1,1)
    a('L_gu_nowd:')
stamp('gu_ok')
a(f'''
v_lshlrev_b32 {v(T)}, {v(vSh)}, {v(T)}
v_lshlrev_b32 {v(T+1)}, {v(vSh)}, {v(T+1)}
v_and_b32 {v(T)}, 0xffff0000, {v(T)}
v_and_b32 {v(T+1)}, 0xffff0000, {v(T+1)}
v_mul_f32 {v(T)}, s{sNL2E}, {v(T)}
v_exp_f32 {v(T)}, {v(T)}
v_add_f32 {v(T)}, 1.0, {v(T)}
v_rcp_f32 {v(T)}, {v(T)}
v_mul_f32 {v(T)}, {v(T)}, {v(T+1)}
v_cvt_pk_bf16_f32 {v(T)}, {v(T)}, {v(T)}
ds_write_b16 {v(vHw)}, {v(T)}
s_waitcnt lgkmcnt(0)
ds_read_b128 {vr(T+4,4)}, {v(vHr)}
s_waitcnt lgkmcnt(0)
v_mfma_f32_16x16x32_bf16 {vr(T+8,4)}, {vr(T+4,4)}, {vr(RWD,4)}, 0
v_mfma_f32_16x16x32_bf16 {vr(T+12,4)}, {vr(T+4,4)}, {vr(RWD+4,4)}, 0
s_mov_b64 exec, 0xffff
ds_write_b32 {v(vP5w)}, {v(T+8)}
ds_write_b32 {v(vP5w)}, {v(T+12)} offset:{16*48}
s_mov_b64 exec, -1
L_p5_bar:
s_waitcnt lgkmcnt(0)
s_barrier
''')
stamp('p5_bar')
final8(vP5r, 7, sOD2, 'L_p5_done')
stamp('p5_done')
a(f's_cmp_lg_u32 s{sL}, 0\ns_cbranch_scc1 L_final')
a(f'''
s_mov_b32 s{sL}, 1
s_mov_b32 s{sOGU}, 0x400
s_mov_b32 s{sOML}, 0x200
s_mov_b32 s{sOD1}, 0x4000
s_mov_b32 s{sOD2}, 0xC000
s_mov_b32 s{sOO}, 0x4000
s_mov_b32 s{sOO2}, {0x4000+7168}
s_waitcnt lgkmcnt(0)
s_branch L_layer
''')
a('L_final:')
a(f'''
s_cmp_lg_u32 s{sC}, 0
s_cbranch_scc1 L_fin_stamps
s_lshr_b32 s{sT0}, s{sS}, 1
s_cmp_lg_u32 s{sW}, s{sT0}
s_cbranch_scc1 L_fin_stamps
''')
d_issue(sOD2)
a('s_waitcnt vmcnt(0)')
d_check(sOD2)
ident_mfma()
x_update(d_sum())
a(f'''
s_and_b32 s{sT0}, s{sS}, 1
s_cmp_eq_u32 s{sT0}, 0
s_cselect_b32 exec_lo, -1, 0
s_cselect_b32 exec_hi, 0, -1
s_lshl_b32 s{sT0}, s{sB}, 10
v_lshl_add_u32 {v(T)}, v0, 1, s{sT0}
buffer_store_short {v(XB)}, {v(T)}, {srd(SRD_OUT)}, 0 offen
s_mov_b64 exec, -1
s_cmp_lg_u32 s{sS}, 0
s_cbranch_scc1 L_fin_stamps
s_lshl_b32 s{sT0}, s{sB}, 7
s_add_u32 s{sT0}, s{sT0}, {EB}
v_mov_b32 {v(T+2)}, s{sT0}
v_mov_b32 {v(T+1)}, s{sTAG}
s_mov_b64 exec, 1
buffer_store_dword {v(T+1)}, {v(T+2)}, {srd(SRD_WS)}, 0 offen sc1
s_mov_b64 exec, -1
L_fin_stamps:
''')
if int(opt.get('dbgfast',0)):
    a(f'''s_cmp_lg_u32 s{sW}, 0
s_cbranch_scc1 L_nodbg
s_lshl_b32 s{sT0}, s2, 2
s_add_u32 s{sT0}, s{sT0}, 0xE2000
v_mov_b32 {v(T+2)}, s{sT0}
s_lshl_b32 s{sT1}, s{sXCC}, 4
s_or_b32 s{sT1}, s{sT1}, s{sFAST}
v_mov_b32 {v(T+1)}, s{sT1}
s_mov_b64 exec, 1
buffer_store_dword {v(T+1)}, {v(T+2)}, {srd(SRD_WS)}, 0 offen
s_mov_b64 exec, -1
L_nodbg:''')
if STAMPS:
    spinstamp(62)
    stamp('end')
    a(f'''
s_lshl_b32 s{sT0}, s2, 3
s_add_u32 s{sT0}, s{sT0}, s{sW}
s_lshl_b32 s{sT0}, s{sT0}, 8
s_add_u32 s{sT0}, s{sT0}, {STAMP_OFF}
v_lshl_add_u32 {v(T)}, {v(vL)}, 2, s{sT0}
buffer_store_dword {v(vSTAMP)}, {v(T)}, {srd(SRD_WS)}, 0 offen
''')
a('s_branch L_end')
a('L_bail:')
a('L_end:\ns_endpgm')
lines=a.text().split('\n')
lines,added=haz.fix(lines)
sys.stderr.write(f'auto nops: {added}; stamps: {stamp_names}\n')
open(sys.argv[1],'w').write(wrap('\n'.join(lines),256,512,LDS_BYTES,nvgpr=256,nsgpr=102))
if STAMPS: open(sys.argv[1]+'.stamps','w').write(','.join(stamp_names))
```

```python
import sys
from asmlib import *
import haz
opt=dict(a.split('=') for a in sys.argv[2:])
STAMPS=int(opt.get('stamps',0)); CPF=int(opt.get('cpf',1))
NT=opt.get('nt','nt'); NTW=opt.get('ntw','nt')
ROLE=opt.get('role','xcd')
FORCESLOW=int(opt.get('slow',0))
SPIN=int(opt.get('spin',1<<17))
ACK=int(opt.get('ack',1))
a=Asm()
GRPSZ=0xC000; QB=0x0400; GUB=0x0800; MLB=0x1000; OB=0x2000
D1B=0xC0000
Q0T=0xD0000; FB=0xE0000; EB=0xE1000; EPC=0x9E3779B9
STAMP_OFF=0x10000000
LV=0; LW=65536; SB=131072
LX=SB; LZ=SB+1024; LPARTC=SB+1280; LPART=SB+2816+0; LPL=SB+4864; LML=SB+6912; LP3=SB+7168; LHB=SB+8704; LP5=SB+9216; LFAST=SB+10752; LQ=SB+10880; LDUM=SB+12288; LWD=SB+12288
LDS_BYTES=SB+12288+16384
FP1=int(opt.get('fp1',0)); CSL=int(opt.get('csl',0)); MRT=int(opt.get('mrt',0)); LNF=int(opt.get('lnf',0)); EP=int(opt.get('ep',0)); ROTW=int(opt.get('rotw',0)); BG=int(opt.get('bg',0)); QPAD=int(opt.get('qpad',0)); WDOK=int(opt.get('wdok',0)); VHELP=int(opt.get('vhelp',0)); MO=int(opt.get('mo',0)); H1W=int(opt.get('h1w',0)); H4A=int(opt.get('h4a',1)); H2A=int(opt.get('h2a',1)); WOS=int(opt.get('wos',0)); PFX=opt.get('pfx',''); KMID=int(opt.get('kmid',0)); PT=int(opt.get('pt',0)); P2O=int(opt.get('p2o',0)); PRETR=int(opt.get('pretr',0)); WGS=int(opt.get('wgs',0)); KF=int(opt.get('kf',0)); NVE=int(opt.get('nve',0)); KDMA=int(opt.get('kdma',0)); KE=int(opt.get('ke',0)) or KF; PF3=opt.get('pf3','q'); WGP2=int(opt.get('wgp2',0)); WDO=int(opt.get('wdo',0)); ALLW=int(opt.get('allw',0)); VBAR=int(opt.get('vbar',1)); WGE=int(opt.get('wge',1)); WDE=int(opt.get('wde',1)); ILV=int(opt.get('ilv',0)); PF=int(opt.get('pf',1)); NVA=int(opt.get('nva',4)); NV1=int(opt.get('nv1',0)); PFW=int(opt.get('pfw',0)); QBAR=int(opt.get('qbar',1)); WOLATE=int(opt.get('wolate',1)); WGLATE=int(opt.get('wglate',1)); KBAR=int(opt.get('kbar',1)); NTP=opt.get('ntp','')
sW,sC,sR,sB,sS=3,4,5,6,7
SRD_K,SRD_V,SRD_WQ,SRD_WO,SRD_WGU,SRD_WD,SRD_WS,SRD_OUT,SRD_X=32,36,40,44,48,52,56,64,68
sTAG,sXCC,sOO2,sOD2P=60,61,62,63
sL,sFAST,sOGU,sOML,sOD1,sOD2,sOO,sSPIN,s4096,sCS=72,73,76,77,78,79,80,81,82,83
sT0,sT1=84,85
mI4,mEVEN,mI0=86,88,90
sT2,sT3=92,93
mLO=100; sNL2E=94; sGRP=95; sT4,sT5=96,97; sSTP=98
def srd(n): return f's[{n}:{n+3}]'
vTID,vL,vI,vG=0,1,2,3
(vXw,vXr,vPw,vPr,vDrd,vDwr,vQrd,vQwr,vGUwr,vGUrd,vOwr,vOrd,vMLwr,vMLrd,vPLw,vPLr,vMLw,vMLr,vP3w,vP3r,vHw,vHr,vP5w,vP5r,vSh,vX,vSTAMP,vWN0,vWN1,vVr)=range(4,34)
vKo,vVoE,vVoO,vWqo,vWoo,vWguo,vWdo,vOst0,vOst1,vQl=range(34,44)
T=44
XB=T+36
vCSQ,vCSG=37,34
RK,RV,RWQ,RWO,RWG,RWD,RID=128,160,192,208,224,240,248
def v(n): return f'v{n}'
def vr(n,k): return f'v[{n}:{n+k-1}]'
nstamp=[0]; stamp_names=[]
STSEL=opt.get('stsel','')
def spinstamp(lane):
    if STAMPS and int(opt.get('spins',0)): a(f'v_writelane_b32 {v(vSTAMP)}, s{sSPIN}, {lane}')
def stamp(name):
    if not STAMPS: return
    if STAMPS==2 and name!='end' and name not in STSEL.split(','): return
    i=nstamp[0]; nstamp[0]+=1; stamp_names.append(name)
    a(f's_memtime s[{sSTP}:{sSTP+1}]\ns_mul_i32 m0, s{sL}, 30\ns_add_u32 m0, m0, {i+2}\ns_waitcnt lgkmcnt(0)\nv_writelane_b32 {v(vSTAMP)}, s{sSTP}, m0')
uid=[0]
def lbl(p):
    uid[0]+=1; return f'L_{p}_{uid[0]}'
def spin_check(retry):
    a(f's_add_u32 s{sSPIN}, s{sSPIN}, 1\ns_cmp_lt_u32 s{sSPIN}, {SPIN}\ns_cbranch_scc1 {retry}\ns_branch L_bail')
def check_valid(regs_, ok, tmp):
    rs=list(regs_)
    if len(rs)==2:
        a(f'v_max_u32 {v(tmp)}, {v(rs[0])}, {v(rs[1])}')
    else:
        a(f'v_max3_u32 {v(tmp)}, {v(rs[0])}, {v(rs[1])}, {v(rs[2])}')
        k=3; alt=[tmp,tmp+1]; used2=False
        if len(rs)>=8:
            a(f'v_max3_u32 {v(tmp+1)}, {v(rs[3])}, {v(rs[4])}, {v(rs[5])}'); k=6; used2=True
        tog=0
        while k<len(rs):
            d=alt[tog%2] if used2 else tmp
            if k+1<len(rs):
                a(f'v_max3_u32 {v(d)}, {v(d)}, {v(rs[k])}, {v(rs[k+1])}'); k+=2
            else:
                a(f'v_max_u32 {v(d)}, {v(d)}, {v(rs[k])}'); k+=1
            tog+=1
        if used2: a(f'v_max_u32 {v(tmp)}, {v(tmp)}, {v(tmp+1)}')
    a(f'v_cmp_eq_u32 vcc, -1, {v(tmp)}')
    a(f's_cbranch_vccz {ok}')
def exec_all(): a('s_mov_b64 exec, -1')
def exec_mask(m): a(f's_mov_b64 exec, s[{m}:{m+1}]')
def pub_store(instr):
    l1=lbl('pubs'); l2=lbl('pubd')
    a(f's_cmp_eq_u32 s{sFAST}, 0\ns_cbranch_scc1 {l1}')
    a(instr); a(f's_branch {l2}'); a(f'{l1}:'); a(instr+' sc1'); a(f'{l2}:')
def ack():
    if ACK: a('s_waitcnt vmcnt(0)')

XROW=f'''v_lshlrev_b32 {v(T+5)}, 4, {v(vL)}
buffer_load_dwordx4 {vr(T+56,4)}, {v(T+5)}, {srd(SRD_X)}, 0 offen''' if FP1 else ''
a(f'''
s_cmp_ge_u32 s2, 256
s_cbranch_scc1 L_end
s_load_dwordx16 s[8:23], s[0:1], 0
s_load_dwordx8 s[24:31], s[0:1], 64
''')
if CPF:
    a(f'''s_getpc_b64 s[74:75]
L_pc:
s_sub_u32 s74, s74, L_pc-{NAME}
s_subb_u32 s75, s75, 0
s_lshr_b32 s76, s2, 3
s_and_b32 s76, s76, {CPF if CPF>1 else 1}
s_lshl_b32 s76, s76, 13
v_lshlrev_b32 v126, 7, v0
v_add_u32 v126, s76, v126
v_min_u32 v126, L_end-{NAME}, v126
v_cmp_gt_u32 vcc, 64, v0
s_and_saveexec_b64 s[76:77], vcc
s_cbranch_execz L_cpf_done
global_load_dword v127, v126, s[74:75]
L_cpf_done:
s_mov_b64 exec, s[76:77]''')
if STAMPS:
    a(f's_memrealtime s[{sT4}:{sT5}]\ns_memtime s[{sSTP}:{sSTP+1}]')
a(f'''
v_lshrrev_b32 {v(T)}, 6, v0
v_and_b32 {v(vL)}, 63, v0
v_and_b32 {v(vI)}, 15, v0
v_readfirstlane_b32 s{sW}, {v(T)}
v_lshrrev_b32 {v(vG)}, 4, {v(vL)}
''')
if ROLE=='xcd':
    a(f's_and_b32 s{sC}, s2, 7\ns_lshr_b32 s{sR}, s2, 3')
else:
    a(f's_lshr_b32 s{sC}, s2, 3\ns_and_b32 s{sC}, s{sC}, 7\ns_and_b32 s{sR}, s2, 7\ns_lshr_b32 s{sT0}, s2, 6\ns_lshl_b32 s{sT0}, s{sT0}, 3\ns_or_b32 s{sR}, s{sR}, s{sT0}')
a(f'''
s_lshr_b32 s{sB}, s{sR}, 4
s_and_b32 s{sS}, s{sR}, 15
s_lshl_b32 s{sGRP}, s{sB}, 3
s_add_u32 s{sGRP}, s{sGRP}, s{sC}       ; grp = b*8+c
s_mov_b32 s{s4096}, 4096
s_mov_b32 s{sL}, 0
; weight staging voffsets: row = l/4, chunk = (l%4) ^ (2*(l/32))
v_lshrrev_b32 {v(T)}, 2, {v(vL)}
v_and_b32 {v(T+1)}, 3, {v(vL)}
v_lshrrev_b32 {v(T+2)}, 5, {v(vL)}
v_lshlrev_b32 {v(T+2)}, 1, {v(T+2)}
v_xor_b32 {v(T+1)}, {v(T+1)}, {v(T+2)}
v_lshlrev_b32 {v(T+1)}, 4, {v(T+1)}          ; chunk*16
s_lshl_b32 s{sT0}, s{sW}, 6
v_add_u32 {v(T+2)}, s{sT0}, {v(T)}           ; row = 64w + l/4
v_lshl_add_u32 {v(vWqo)}, {v(T+2)}, 13, {v(T+1)}
v_lshl_add_u32 {v(vWoo)}, {v(T+2)}, 10, {v(T+1)}
s_mov_b32 s{sT1}, 3584
v_mul_lo_u32 {v(T+3)}, {v(T+2)}, s{sT1}
v_add_u32 {v(vWguo)}, {v(T+3)}, {v(T+1)}
s_lshl_b32 s{sT0}, s{sW}, 5
v_add_u32 {v(T+2)}, s{sT0}, {v(T)}           ; row = 32w + l/4
v_lshl_add_u32 {v(vWdo)}, {v(T+2)}, 10, {v(T+1)}
v_lshlrev_b32 {v(T+4)}, 1, v0
''')
if STAMPS:
    a(f's_waitcnt lgkmcnt(0)\nv_mov_b32 {v(vSTAMP)}, 0\nv_writelane_b32 {v(vSTAMP)}, s{sT4}, 0\nv_writelane_b32 {v(vSTAMP)}, s{sSTP}, 1')
a('s_waitcnt lgkmcnt(0)')
a(f'''
s_lshl_b32 s{sT0}, s{sB}, 10
s_add_u32 s{SRD_X}, s8, s{sT0}
s_addc_u32 s{SRD_X+1}, s9, 0
s_mov_b32 s{SRD_X+2}, 1024
s_mov_b32 s{SRD_X+3}, 0x20000
s_lshl_b32 s{sT0}, s{sC}, 10
s_lshl_b32 s{sT1}, s{sS}, 6
s_add_u32 s{sT0}, s{sT0}, s{sT1}
s_add_u32 s{SRD_WQ}, s14, s{sT0}
s_addc_u32 s{SRD_WQ+1}, s15, 0
s_sub_u32 s{SRD_WQ+2}, 4194304, s{sT0}
s_mov_b32 s{SRD_WQ+3}, 0x20000
buffer_load_ushort {v(vX)}, {v(T+4)}, {srd(SRD_X)}, 0 offen
{XROW}
''')
def w_dma(srd_, voff, slot, nins, rowstride, nt, n0=0):
    base={2:LWD,3:LV}.get(slot, LW+slot*4096); sh=11 if slot==2 else 13
    if ROTW and n0==0 and nins in (2,4):
        a(f's_lshl_b32 s{sT2}, s{sB}, 1\ns_and_b32 s{sT3}, s{sS}, 1\ns_add_u32 s{sT2}, s{sT2}, s{sT3}\ns_lshl_b32 s{sT3}, s{sW}, {sh}\ns_add_u32 s{sT3}, s{sT3}, {base}')
        for n in range(nins):
            a(f's_add_u32 s{sT0}, s{sT2}, {n}\ns_and_b32 s{sT0}, s{sT0}, {nins-1}\ns_mul_i32 s{sT1}, s{sT0}, {16*rowstride}\ns_lshl_b32 s{sT0}, s{sT0}, 10\ns_add_u32 m0, s{sT3}, s{sT0}\ns_nop 0')
            a(f'buffer_load_dwordx4 {v(voff)}, {srd(srd_)}, s{sT1} offen {nt} lds')
        return
    a(f's_lshl_b32 s{sT0}, s{sW}, {sh}\ns_add_u32 m0, s{sT0}, {base}')
    for n in range(n0,nins):
        if n==0:
            a('s_nop 0'); so='0'
        else:
            a(f's_mov_b32 s{sT1}, {n*(16*rowstride-1024)}'); so=f's{sT1}'
        a(f'buffer_load_dwordx4 {v(voff)}, {srd(srd_)}, {so} offen offset:{n*1024} {nt} lds')
SRD_PF=SRD_X
def pf_setup(ptr_lo, size):
    a(f's_mov_b32 s{SRD_PF}, s{ptr_lo}\ns_mov_b32 s{SRD_PF+1}, s{ptr_lo+1}\ns_mov_b32 s{SRD_PF+2}, {size}\ns_mov_b32 s{SRD_PF+3}, 0x20000')
def pf_m0():
    a(f's_lshl_b32 s{sT0}, s{sW}, 10\ns_add_u32 m0, s{sT0}, {LDUM}')
def pf_load(voff, soff):
    a(f'buffer_load_dwordx4 {v(voff)}, {srd(SRD_PF)}, {soff} offen {NTP} lds')
def pf_wq():
    if 'q' not in PFX: return 0
    pf_setup(14, 4194304); pf_m0()
    a(f's_lshl_b32 s{sT0}, s{sR}, 4\ns_lshl_b32 s{sT1}, s{sW}, 1\ns_add_u32 s{sT0}, s{sT0}, s{sT1}\ns_lshl_b32 s{sT0}, s{sT0}, 13\ns_lshl_b32 s{sT1}, s{sC}, 10\ns_add_u32 s{sT0}, s{sT0}, s{sT1}')
    a(f'v_lshlrev_b32 {v(T+10)}, 4, {v(vL)}')
    pf_load(T+10, f's{sT0}')
    a(f's_add_u32 s{sT0}, s{sT0}, 8192'); pf_load(T+10, f's{sT0}')
    return 2
def pf_wo():
    if 'o' not in PFX: return 0
    pf_setup(16, 4194304); pf_m0()
    a(f's_lshl_b32 s{sT0}, s{sC}, 19\ns_lshl_b32 s{sT1}, s{sR}, 14\ns_add_u32 s{sT0}, s{sT0}, s{sT1}\ns_lshl_b32 s{sT1}, s{sW}, 11\ns_add_u32 s{sT0}, s{sT0}, s{sT1}')
    a(f'v_lshlrev_b32 {v(T+62)}, 4, {v(vL)}')
    pf_load(T+62, f's{sT0}')
    a(f's_add_u32 s{sT0}, s{sT0}, 1024'); pf_load(T+62, f's{sT0}')
    return 2
def pf_wgu():
    if 'g' not in PFX: return 0
    pf_m0()
    a(f's_lshl_b32 s{sT0}, s{sR}, 4\ns_lshl_b32 s{sT1}, s{sW}, 1\ns_add_u32 s{sT0}, s{sT0}, s{sT1}\ns_mul_i32 s{sT0}, s{sT0}, 3584\ns_mul_i32 s{sT1}, s{sC}, 448\ns_add_u32 s{sT2}, s{sT0}, s{sT1}')
    a(f'v_lshrrev_b32 {v(T+62)}, 5, {v(vL)}\nv_mul_u32_u24 {v(T+62)}, 3584, {v(T+62)}\nv_and_b32 {v(T+63)}, 31, {v(vL)}\nv_lshl_add_u32 {v(T+62)}, {v(T+63)}, 4, {v(T+62)}')
    pf_setup(20, 1835008); pf_load(T+62, f's{sT2}')
    pf_setup(22, 1835008); pf_load(T+62, f's{sT2}')
    return 2
def pf_wd():
    if 'd' not in PFX: return 0
    pf_setup(24, 1835008); pf_m0()
    a(f's_mul_i32 s{sT0}, s{sC}, 229376\ns_mul_i32 s{sT1}, s{sR}, 7168\ns_add_u32 s{sT0}, s{sT0}, s{sT1}\ns_lshl_b32 s{sT1}, s{sW}, 10\ns_add_u32 s{sT0}, s{sT0}, s{sT1}')
    a(f'v_lshlrev_b32 {v(T+62)}, 4, {v(vL)}')
    pf_load(T+62, f's{sT0}')
    return 1
def pf3(which, wave, dst):
    if which not in PF3: return
    l=lbl('pf3')
    a(f's_cmp_lg_u32 s{sW}, {wave}\ns_cbranch_scc1 {l}')
    t0,t1=T+60,T+61
    if which=='q':
        pf_setup(14, 4194304)
        a(f'v_and_b32 {v(t0)}, 15, {v(vL)}\ns_lshl_b32 s{sT0}, s{sR}, 4\nv_add_u32 {v(t0)}, s{sT0}, {v(t0)}\nv_lshlrev_b32 {v(t0)}, 13, {v(t0)}\ns_lshl_b32 s{sT0}, s{sC}, 10\ns_add_u32 s{sT0}, s{sT0}, 384')
    elif which=='o':
        pf_setup(16, 4194304)
        a(f'v_and_b32 {v(t0)}, 15, {v(vL)}\ns_lshl_b32 s{sT0}, s{sR}, 4\nv_add_u32 {v(t0)}, s{sT0}, {v(t0)}\nv_lshlrev_b32 {v(t0)}, 10, {v(t0)}\ns_lshl_b32 s{sT0}, s{sC}, 19\ns_add_u32 s{sT0}, s{sT0}, 384')
    elif which=='d':
        pf_setup(24, 1835008)
        a(f'v_and_b32 {v(t0)}, 15, {v(vL)}\nv_min_u32 {v(t0)}, 6, {v(t0)}\ns_mul_i32 s{sT0}, s{sR}, 7\nv_add_u32 {v(t0)}, s{sT0}, {v(t0)}\nv_lshlrev_b32 {v(t0)}, 10, {v(t0)}\ns_mul_i32 s{sT0}, s{sC}, 229376\ns_add_u32 s{sT0}, s{sT0}, 384')
    if which in 'qod':
        a(f'v_lshrrev_b32 {v(t1)}, 4, {v(vL)}\nv_and_b32 {v(t1)}, 1, {v(t1)}\nv_lshl_add_u32 {v(t0)}, {v(t1)}, 6, {v(t0)}')
        a(f's_mov_b32 exec_hi, 0\nbuffer_load_dword {v(dst)}, {v(t0)}, {srd(SRD_PF)}, s{sT0} offen\ns_mov_b32 exec_hi, -1')
    else:
        a(f'''v_and_b32 {v(t0)}, 15, {v(vL)}
s_lshl_b32 s{sT0}, s{sR}, 4
v_add_u32 {v(t0)}, s{sT0}, {v(t0)}
v_mul_u32_u24 {v(t0)}, 28, {v(t0)}
s_mul_i32 s{sT0}, s{sC}, 7
s_lshr_b32 s{sT0}, s{sT0}, 1
v_add_u32 {v(t0)}, s{sT0}, {v(t0)}
v_sub_u32 {v(t1)}, 3, {v(t0)}
v_and_b32 {v(t1)}, 7, {v(t1)}
v_min_u32 {v(t1)}, 4, {v(t1)}
v_add_u32 {v(t0)}, {v(t0)}, {v(t1)}
v_lshlrev_b32 {v(t0)}, 7, {v(t0)}
v_lshrrev_b32 {v(t1)}, 4, {v(vL)}
v_and_b32 {v(t1)}, 1, {v(t1)}
v_lshl_add_u32 {v(t0)}, {v(t1)}, 6, {v(t0)}
s_mov_b32 exec_hi, 0''')
        pf_setup(20, 1835008); a(f'buffer_load_dword {v(dst)}, {v(t0)}, {srd(SRD_PF)}, 0 offen')
        pf_setup(22, 1835008); a(f'buffer_load_dword {v(dst+1)}, {v(t0)}, {srd(SRD_PF)}, 0 offen')
        a('s_mov_b32 exec_hi, -1')
    a(f'{l}:')
def w_tr(dst, slot, nkk):
    if slot==3:
        a(f'v_add_u32 {v(T+60)}, {(LV-LW)&0xffffffff}, {v(vWN0)}\nv_xor_b32 {v(T+61)}, 32, {v(T+60)}')
        for kk in range(nkk):
            for nt_ in range(2):
                for hh in range(2):
                    r=dst+(kk*2+nt_)*4+hh*2
                    a(f'ds_read_b64_tr_b16 {vr(r,2)}, {v(T+60 if nt_==0 else T+61)} offset:{kk*2048+hh*256}')
        return
    if slot==2:
        a(f's_mul_i32 s{sT0}, s{sW}, {(2048-8192)&0xffffffff}\ns_add_u32 s{sT0}, s{sT0}, {(LWD-LW)&0xffffffff}\nv_add_u32 {v(T+60)}, s{sT0}, {v(vWN0)}\nv_xor_b32 {v(T+61)}, 32, {v(T+60)}')
        for nt_ in range(2):
            for hh in range(2):
                r=dst+nt_*4+hh*2
                a(f'ds_read_b64_tr_b16 {vr(r,2)}, {v(T+60 if nt_==0 else T+61)} offset:{hh*256}')
        return
    for kk in range(nkk):
        for nt_ in range(2):
            for hh in range(2):
                r=dst+(kk*2+nt_)*4+hh*2
                a(f'ds_read_b64_tr_b16 {vr(r,2)}, {v(vWN0 if nt_==0 else vWN1)} offset:{slot*4096+kk*2048+hh*256}')
if KE:
    a(f'''s_mov_b32 s{SRD_WS}, s30
s_mov_b32 s{SRD_WS+1}, s31
s_mov_b32 s{SRD_WS+2}, 0x20000000
s_mov_b32 s{SRD_WS+3}, 0x20000
s_cmp_eq_u32 s{sW}, 0
s_cbranch_scc1 L_proto
L_proto_ret:''')
pf3('q',1,T+41)
NPQ=pf_wq()
if not PFW and not ILV: w_dma(SRD_WQ, vWqo, 3 if KF else 0, 4, 8192, NTW)
a(f'''
s_lshl_b32 s{sT0}, s{sGRP}, 23
s_lshl_b32 s{sT1}, s{sS}, 16
s_add_u32 s{sT0}, s{sT0}, s{sT1}
s_add_u32 s{sT0}, s{sT0}, 7340032
s_add_u32 s{SRD_V}, s12, s{sT0}
s_addc_u32 s{SRD_V+1}, s13, 0
s_mov_b32 s{SRD_V+2}, 65536
s_mov_b32 s{SRD_V+3}, 0x20000
s_add_u32 s{SRD_K}, s10, s{sT0}
s_addc_u32 s{SRD_K+1}, s11, 0
s_mov_b32 s{SRD_K+2}, 65536
s_mov_b32 s{SRD_K+3}, 0x20000
s_mov_b32 s{SRD_WS}, s30
s_mov_b32 s{SRD_WS+1}, s31
s_mov_b32 s{SRD_WS+2}, 0x20000000
s_mov_b32 s{SRD_WS+3}, 0x20000
; K voffset = w*8192 + i*256 + g*16
s_lshl_b32 s{sT0}, s{sW}, 13
v_lshlrev_b32 {v(T)}, 8, {v(vI)}
v_lshl_add_u32 {v(T)}, {v(vG)}, 4, {v(T)}
v_add_u32 {v(vKo)}, s{sT0}, {v(T)}
v_lshlrev_b32 {v(T)}, 1, {v(vG)}
v_xor_b32 {v(T)}, {v(T)}, {v(vI)}
v_lshlrev_b32 {v(T)}, 4, {v(T)}
v_lshl_add_u32 {v(vVoE)}, {v(vG)}, 8, {v(T)}
v_xor_b32 {v(vVoO)}, 128, {v(vVoE)}
''')
def k_tile(t):
    for kk in range(4):
        r=RK+(t*4+kk)*4
        so='0' if t==0 else f's{s4096}'
        a(f'buffer_load_dwordx4 {vr(r,4)}, {v(vKo)}, {srd(SRD_K)}, {so} offen offset:{kk*64} {NT}')
def k_first():
    l1=lbl('kf'); l2=lbl('kfd')
    a(f's_add_u32 s{sT0}, s{sW}, s{sS}\ns_bitcmp1_b32 s{sT0}, 0\ns_cbranch_scc1 {l1}')
    k_tile(0); a(f's_branch {l2}\n{l1}:'); k_tile(1); a(f'{l2}:')
def k_second():
    l1=lbl('ks'); l2=lbl('ksd')
    a(f's_add_u32 s{sT0}, s{sW}, s{sS}\ns_bitcmp1_b32 s{sT0}, 0\ns_cbranch_scc1 {l1}')
    k_tile(1); a(f's_branch {l2}\n{l1}:'); k_tile(0); a(f'{l2}:')
def k_dma():
    a(f'''v_xor_b32 {v(T+62)}, {v(vI)}, {v(vG)}
v_lshlrev_b32 {v(T+62)}, 4, {v(T+62)}
v_lshl_add_u32 {v(T+62)}, {v(vG)}, 8, {v(T+62)}
s_add_u32 s{sT2}, s{sW}, s{sS}
s_lshl_b32 s{sT3}, s{sW}, 13''')
    for n in range(8):
        a(f'''s_add_u32 s{sT0}, s{sT2}, {n}
s_and_b32 s{sT0}, s{sT0}, 7
s_and_b32 s{sT1}, s{sT0}, 3
s_lshl_b32 s{sT1}, s{sT1}, 6
v_xor_b32 {v(T+63)}, s{sT1}, {v(T+62)}
s_lshl_b32 s{sT0}, s{sT0}, 10
s_add_u32 s{sT0}, s{sT0}, s{sT3}
s_add_u32 m0, s{sT0}, {LW}
s_nop 0
buffer_load_dwordx4 {v(T+63)}, {srd(SRD_K)}, s{sT0} offen {NT} lds''')
def k_frags():
    a(f'''v_xor_b32 {v(T+62)}, {v(vI)}, {v(vG)}
v_lshlrev_b32 {v(T+62)}, 4, {v(T+62)}
v_lshl_add_u32 {v(T+62)}, {v(vI)}, 8, {v(T+62)}
s_lshl_b32 s{sT0}, s{sW}, 13
s_add_u32 s{sT0}, s{sT0}, {LW}
v_add_u32 {v(T+62)}, s{sT0}, {v(T+62)}''')
    for kk in range(4):
        if kk: a(f'v_xor_b32 {v(T+63)}, {64*kk}, {v(T+62)}')
        r=T+62 if kk==0 else T+63
        for t in range(2): a(f'ds_read_b128 {vr(RK+(t*4+kk)*4,4)}, {v(r)} offset:{t*4096}')
def e_load(dst):
    a(f's_lshl_b32 s{sT0}, s{sB}, 7\ns_add_u32 s{sT0}, s{sT0}, {EB}\nv_mov_b32 {v(dst)}, s{sT0}\nbuffer_load_dword {v(dst)}, {v(dst)}, {srd(SRD_WS)}, 0 offen sc1')
vE=T+30
def v_dma(n0,n1,owner=None):
    if owner is not None:
        a(f's_add_u32 s{sT2}, s{sS}, {owner}\ns_and_b32 s{sT2}, s{sT2}, 3\ns_lshl_b32 s{sT2}, s{sT2}, 1\ns_mov_b32 s{sT3}, {owner<<13}')
    else:
        a(f's_add_u32 s{sT2}, s{sW}, s{sS}\ns_and_b32 s{sT2}, s{sT2}, 3\ns_lshl_b32 s{sT2}, s{sT2}, 1\ns_lshl_b32 s{sT3}, s{sW}, 13')
    for n in range(n0,n1):
        a(f's_add_u32 s{sT0}, s{sT2}, {n}\ns_and_b32 s{sT0}, s{sT0}, 7\ns_lshl_b32 s{sT0}, s{sT0}, 10\ns_add_u32 s{sT0}, s{sT0}, s{sT3}')
        a(f's_add_u32 m0, s{sT0}, {LV}\ns_nop 0')
        a(f'buffer_load_dwordx4 {v(vVoE if n%2==0 else vVoO)}, {srd(SRD_V)}, s{sT0} offen {NT} lds')
def v_pos(hi, n0, n1):
    if n1<=n0: return
    a(f's_add_u32 s{sT2}, s{sW}, s{sS}\ns_lshl_b32 s{sT2}, s{sT2}, 1\ns_lshl_b32 s{sT3}, s{sW}, 13')
    for n in range(n0,n1):
        a(f's_add_u32 s{sT0}, s{sT2}, {n}\ns_and_b32 s{sT0}, s{sT0}, 3\ns_add_u32 s{sT0}, s{sT0}, {4 if hi else 0}\ns_lshl_b32 s{sT0}, s{sT0}, 10\ns_add_u32 s{sT0}, s{sT0}, s{sT3}')
        a(f's_add_u32 m0, s{sT0}, {LV}\ns_nop 0')
        a(f'buffer_load_dwordx4 {v(vVoE if n%2==0 else vVoO)}, {srd(SRD_V)}, s{sT0} offen {NT} lds')
def v_rest():
    if KF:
        v_pos(True,NVE,4); v_pos(False,0,4)
    else: v_dma(NVA,8)
def wq_one(n):
    a(f's_lshl_b32 s{sT0}, s{sW}, 13\ns_add_u32 m0, s{sT0}, {LW}\ns_mov_b32 s{sT1}, {n*(16*8192-1024)}')
    a(f'buffer_load_dwordx4 {v(vWqo)}, {srd(SRD_WQ)}, s{sT1} offen offset:{n*1024} {NTW} lds')
def ilv_issue():
    nv=0
    for n in range(4):
        wq_one(n)
        k=min(ILV, NVA-nv) if n<3 else NVA-nv
        v_dma(nv,nv+k); nv+=k
    return k
if ILV:
    a(f's_cmp_eq_u32 s{sW}, 0\ns_cbranch_scc1 L_proto')
    a(f's_cmp_lg_u32 s{sW}, 7\ns_cbranch_scc1 L_va')
    e_load(vE)
    a('L_va:')
    NTAIL=ilv_issue()
    a('s_branch L_pre_p1')
elif PFW:
    v_dma(0,NV1)
    a(f's_waitcnt vmcnt({NV1})')
    w_dma(SRD_WQ, vWqo, 0, 4, 8192, NTW)
else:
    v_dma(0,NV1)
if KE:
    if QBAR: a('s_barrier')
    a(f's_cmp_lg_u32 s{sW}, 7\ns_cbranch_scc1 L_va')
    e_load(vE)
    a('L_va:')
    if KF:
        k_dma(); v_pos(True,0,NVE); NTAIL=8+NVE
    else:
        v_dma(0,NVA)
        k_first(); k_second()
        NTAIL=NVA+8
    a('s_branch L_pre_p1')
elif not ILV:
    if QBAR: a('s_barrier')
    a(f's_cmp_eq_u32 s{sW}, 0\ns_cbranch_scc1 L_proto')
    a(f's_cmp_lg_u32 s{sW}, 7\ns_cbranch_scc1 L_va')
    e_load(vE)
    a('L_va:')
    v_dma(NV1,NVA)
    a('s_branch L_pre_p1')
    NTAIL=NVA-NV1
OLDCPF='' if CPF else '''; code prefetch into L2: (r&7)*2KB + lane*128 (16 lanes), clamped to the code size
s_getpc_b64 s[74:75]
L_pc:
s_sub_u32 s74, s74, L_pc-'''+NAME+'''
s_subb_u32 s75, s75, 0
s_and_b32 s84, s5, 7
s_lshl_b32 s84, s84, 11
v_and_b32 v45, 15, v1
v_lshl_add_u32 v45, v45, 7, s84
v_min_u32 v45, L_end-'''+NAME+''', v45
global_load_dword v84, v45, s[74:75]
'''
a('L_proto:')
e_load(vE)
a(f'''
s_mul_i32 s{sT0}, s{sGRP}, {GRPSZ}
s_mul_i32 s{sT1}, s{sS}, 3072
s_add_u32 s{sT0}, s{sT0}, s{sT1}
v_lshl_add_u32 {v(T)}, {v(vL)}, 4, s{sT0}
v_mov_b32 {v(T+4)}, -1
v_mov_b32 {v(T+5)}, -1
v_mov_b32 {v(T+6)}, -1
v_mov_b32 {v(T+7)}, -1
buffer_store_dwordx4 {vr(T+4,4)}, {v(T)}, {srd(SRD_WS)}, 0 offen sc1
buffer_store_dwordx4 {vr(T+4,4)}, {v(T)}, {srd(SRD_WS)}, 0 offen offset:1024 sc1
buffer_store_dwordx4 {vr(T+4,4)}, {v(T)}, {srd(SRD_WS)}, 0 offen offset:2048 sc1
; my four 64-byte partial-sum pieces: D1B + b*0x2000 + (s/2)*1024 + c*128 + (s%2)*64 + (l>>2)*0x4000 + (l&3)*16
s_lshl_b32 s{sT0}, s{sB}, 13
s_lshr_b32 s{sT1}, s{sS}, 1
s_lshl_b32 s{sT1}, s{sT1}, 10
s_add_u32 s{sT0}, s{sT0}, s{sT1}
s_lshl_b32 s{sT1}, s{sC}, 7
s_add_u32 s{sT0}, s{sT0}, s{sT1}
s_and_b32 s{sT1}, s{sS}, 1
s_lshl_b32 s{sT1}, s{sT1}, 6
s_add_u32 s{sT0}, s{sT0}, s{sT1}
s_add_u32 s{sT0}, s{sT0}, {D1B}
v_lshrrev_b32 {v(T+1)}, 2, {v(vL)}
v_lshlrev_b32 {v(T+1)}, 14, {v(T+1)}
v_and_b32 {v(T+2)}, 3, {v(vL)}
v_lshl_add_u32 {v(T+1)}, {v(T+2)}, 4, {v(T+1)}
v_add_u32 {v(T+1)}, s{sT0}, {v(T+1)}
s_mov_b64 exec, 0xffff
buffer_store_dwordx4 {vr(T+4,4)}, {v(T+1)}, {srd(SRD_WS)}, 0 offen sc1
s_mov_b64 exec, -1
{OLDCPF}
''')
if ILV: ilv_issue()
if KE: a('s_branch L_proto_ret')
a('L_pre_p1:')
stamp('issued0')
a(f's_getreg_b32 s{sXCC}, hwreg(HW_REG_XCC_ID, 0, 4)')
MLFIX=f'''v_and_b32 {v(T)}, 7, {v(vI)}
v_lshl_add_u32 {v(vMLr)}, {v(T)}, 3, {v(vMLr)}''' if P2O else ''
if MO:
    MLFIX=f'''s_lshl_b32 s{sT2}, s{sW}, 5
s_add_u32 s{sT2}, s{sT2}, {LDUM}
v_lshlrev_b32 {v(T)}, 8, {v(vI)}
v_add_u32 {v(T)}, s{sT2}, {v(T)}
v_lshl_add_u32 {v(vMLw)}, {v(vG)}, 2, {v(T)}
v_and_b32 {v(T)}, 7, {v(vI)}
v_lshlrev_b32 {v(T)}, 5, {v(T)}
v_lshl_add_u32 {v(T)}, {v(vG)}, 8, {v(T)}
v_add_u32 {v(vMLr)}, {LDUM}, {v(T)}'''
QS=320 if QPAD else 256
a(f'''
v_lshlrev_b32 {v(vXw)}, 1, v0
v_add_u32 {v(vXw)}, {LX}, {v(vXw)}
s_lshl_b32 s{sT0}, s{sW}, 7
v_lshl_add_u32 {v(vXr)}, {v(vG)}, 4, s{sT0}
v_add_u32 {v(vXr)}, {LX}, {v(vXr)}
v_cmp_eq_u32 vcc, 0, {v(vI)}
v_mov_b32 {v(T)}, {LZ}
s_lshl_b32 s{sT1}, s{sW}, 3
v_cndmask_b32 {v(vXr)}, {v(T)}, {v(vXr)}, vcc
s_lshl_b32 s{sT2}, s{sW}, 2
s_add_u32 s{sT2}, s{sT2}, {LPART+32*48}
v_mov_b32 {v(vPw)}, s{sT2}
v_min_u32 {v(T)}, 33, {v(vL)}
v_mul_u32_u24 {v(T)}, 48, {v(T)}
v_add_u32 {v(vPr)}, {LPART}, {v(T)}
s_lshl_b32 s{sT0}, s{sW}, 8
v_lshlrev_b32 {v(T)}, 6, {v(vI)}
v_lshl_add_u32 {v(T)}, {v(vG)}, 4, {v(T)}
v_add_u32 {v(T)}, s{sT0}, {v(T)}
v_add_u32 {v(vPLw)}, {LPL}, {v(T)}
v_lshrrev_b32 {v(T)}, 2, {v(vI)}
v_lshlrev_b32 {v(T)}, 6, {v(T)}
v_lshl_add_u32 {v(T)}, {v(vG)}, 4, {v(T)}
v_add_u32 {v(vPLr)}, {LPL}, {v(T)}
v_lshlrev_b32 {v(T)}, 6, {v(vI)}
v_add_u32 {v(T)}, s{sT1}, {v(T)}
v_add_u32 {v(vMLw)}, {LML}, {v(T)}
v_lshlrev_b32 {v(T)}, 6, {v(vG)}
v_add_u32 {v(vMLr)}, {LML}, {v(T)}
{MLFIX}
v_lshrrev_b32 {v(T)}, 5, {v(vL)}
v_lshl_add_u32 {v(T)}, {v(T)}, 4, {v(vI)}
v_mul_u32_u24 {v(T)}, 48, {v(T)}
s_lshl_b32 s{sT0}, s{sW}, 2
v_add_u32 {v(T)}, s{sT0}, {v(T)}
v_add_u32 {v(vP3w)}, {LP3}, {v(T)}
v_and_b32 {v(T+1)}, 31, {v(vL)}
v_mul_u32_u24 {v(T)}, 48, {v(T+1)}
v_add_u32 {v(vP3r)}, {LP3}, {v(T)}
v_add_u32 {v(vP5r)}, {LP5}, {v(T)}
v_mul_u32_u24 {v(T)}, 48, {v(vI)}
v_add_u32 {v(T)}, s{sT0}, {v(T)}
v_add_u32 {v(vP5w)}, {LP5}, {v(T)}
; H bounce: write LHB + w*64 + (l%32)*2 ; read LHB + w*64 + g*16
s_lshl_b32 s{sT0}, s{sW}, 6
v_lshl_add_u32 {v(T)}, {v(T+1)}, 1, s{sT0}
v_add_u32 {v(vHw)}, {LHB}, {v(T)}
v_lshl_add_u32 {v(T)}, {v(vG)}, 4, s{sT0}
v_add_u32 {v(vHr)}, {LHB}, {v(T)}
v_and_b32 {v(T)}, 1, {v(vL)}
v_lshlrev_b32 {v(T)}, 4, {v(T)}
v_sub_u32 {v(vSh)}, 16, {v(T)}
v_lshrrev_b32 {v(T)}, 2, {v(vI)}
v_lshl_add_u32 {v(T)}, {v(vG)}, 3, {v(T)}
v_lshlrev_b32 {v(T)}, 6, {v(T)}
v_and_b32 {v(T+2)}, 3, {v(vI)}
v_lshrrev_b32 {v(T+3)}, 1, {v(T+2)}
v_and_b32 {v(T+4)}, 1, {v(vG)}
v_lshlrev_b32 {v(T+4)}, 1, {v(T+4)}
v_xor_b32 {v(T+3)}, {v(T+3)}, {v(T+4)}
v_lshl_add_u32 {v(T)}, {v(T+3)}, 4, {v(T)}
v_and_b32 {v(T+3)}, 1, {v(T+2)}
v_lshl_add_u32 {v(T)}, {v(T+3)}, 3, {v(T)}
s_lshl_b32 s{sT0}, s{sW}, 13
s_add_u32 s{sT0}, s{sT0}, {LW}
v_add_u32 {v(vWN0)}, s{sT0}, {v(T)}
v_xor_b32 {v(vWN1)}, 32, {v(vWN0)}
v_lshrrev_b32 {v(T)}, 2, {v(vI)}                 ; r
v_lshl_add_u32 {v(T+3)}, {v(vG)}, 2, {v(T)}      ; 4g+r
v_lshlrev_b32 {v(T+3)}, 8, {v(T+3)}
v_and_b32 {v(T+4)}, 1, {v(vG)}
v_lshlrev_b32 {v(T+4)}, 2, {v(T+4)}
v_add_u32 {v(T+4)}, {v(T+4)}, {v(T)}
v_lshlrev_b32 {v(T+4)}, 1, {v(T+4)}              ; 8*(g&1)+2r
v_lshrrev_b32 {v(T+5)}, 1, {v(T+2)}
s_lshl_b32 s{sT0}, s{sW}, 1
v_add_u32 {v(T+5)}, s{sT0}, {v(T+5)}
v_xor_b32 {v(T+5)}, {v(T+5)}, {v(T+4)}
v_lshl_add_u32 {v(T+3)}, {v(T+5)}, 4, {v(T+3)}
v_and_b32 {v(T+5)}, 1, {v(T+2)}
v_lshl_add_u32 {v(vVr)}, {v(T+5)}, 3, {v(T+3)}
s_lshl_b32 s{sT0}, s{sW}, 11
v_and_b32 {v(T)}, 7, {v(vI)}
v_xor_b32 {v(T)}, {v(T)}, {v(vG)}
v_lshlrev_b32 {v(T)}, 4, {v(T)}
v_lshl_add_u32 {v(T)}, {v(vI)}, 7, {v(T)}
v_add_u32 {v(T)}, s{sT0}, {v(T)}
v_add_u32 {v(vOst0)}, {LV}, {v(T)}
v_xor_b32 {v(vOst1)}, 64, {v(vOst0)}
v_and_b32 {v(T)}, 3, {v(vI)}
v_mul_u32_u24 {v(T)}, {QS}, {v(T)}
v_lshl_add_u32 {v(T)}, {v(vG)}, 4, {v(T)}
v_add_u32 {v(vQl)}, {LQ}, {v(T)}
; D read: D1B + b*0x2000 + w*1024 + (i&7)*128 + (i>>3)*64 + g*16
s_lshl_b32 s{sT0}, s{sB}, 13
s_lshl_b32 s{sT1}, s{sW}, 10
s_add_u32 s{sT1}, s{sT1}, s{sT0}
s_add_u32 s{sT1}, s{sT1}, {D1B}
v_and_b32 {v(T)}, 7, {v(vI)}
v_lshlrev_b32 {v(T)}, 7, {v(T)}
v_lshrrev_b32 {v(T+1)}, 3, {v(vI)}
v_lshl_add_u32 {v(T)}, {v(T+1)}, 6, {v(T)}
v_lshl_add_u32 {v(T)}, {v(vG)}, 4, {v(T)}
v_add_u32 {v(vDrd)}, s{sT1}, {v(T)}
; D write: D1B + b*0x2000 + (s/2)*1024 + c*128 + (s%2)*64 + l*2
s_lshr_b32 s{sT1}, s{sS}, 1
s_lshl_b32 s{sT1}, s{sT1}, 10
s_add_u32 s{sT0}, s{sT0}, s{sT1}
s_lshl_b32 s{sT1}, s{sC}, 7
s_add_u32 s{sT0}, s{sT0}, s{sT1}
s_and_b32 s{sT1}, s{sS}, 1
s_lshl_b32 s{sT1}, s{sT1}, 6
s_add_u32 s{sT0}, s{sT0}, s{sT1}
s_add_u32 s{sT0}, s{sT0}, {D1B}
v_lshl_add_u32 {v(vDwr)}, {v(vL)}, 1, s{sT0}
s_mul_i32 s{sT0}, s{sGRP}, {GRPSZ}
s_add_u32 s{sT1}, s{sT0}, {QB}
v_lshl_add_u32 {v(vQrd)}, {v(vL)}, 4, s{sT1}
s_lshl_b32 s{sT2}, s{sS}, 6
s_add_u32 s{sT1}, s{sT1}, s{sT2}
v_lshl_add_u32 {v(vQwr)}, {v(vL)}, 1, s{sT1}
s_lshl_b32 s{sT1}, s{sS}, 6
s_add_u32 s{sT2}, s{sT1}, 64
s_cmp_lt_u32 s{sS}, 7
s_cselect_b32 s{sT1}, s{sT1}, s{sT2}
s_add_u32 s{sT1}, s{sT1}, s{sT0}
s_add_u32 s{sT1}, s{sT1}, {GUB}
v_lshl_add_u32 {v(vGUwr)}, {v(vL)}, 1, s{sT1}
v_and_b32 {v(T)}, 30, {v(vL)}
v_lshlrev_b32 {v(T)}, 1, {v(T)}
s_lshl_b32 s{sT1}, s{sW}, 6
s_add_u32 s{sT1}, s{sT1}, s{sT0}
s_add_u32 s{sT1}, s{sT1}, {GUB}
v_add_u32 {v(vGUrd)}, s{sT1}, {v(T)}
; O write: OB + s*1024 + (g*128 + 16w + i)*2 ; DMA read: OB + (l/8)*1024 + w*128 + ((l%8)^(l/8))*16
s_add_u32 s{sT0}, s{sT0}, {OB}
s_lshl_b32 s{sT1}, s{sS}, 10
s_add_u32 s{sT1}, s{sT1}, s{sT0}
s_lshl_b32 s{sT2}, s{sW}, 5
s_add_u32 s{sT1}, s{sT1}, s{sT2}
v_lshlrev_b32 {v(T)}, 8, {v(vG)}
v_lshl_add_u32 {v(T)}, {v(vI)}, 1, {v(T)}
v_add_u32 {v(vOwr)}, s{sT1}, {v(T)}
s_lshl_b32 s{sT2}, s{sW}, 7
s_add_u32 s{sT1}, s{sT0}, s{sT2}
v_lshrrev_b32 {v(T)}, 3, {v(vL)}
v_and_b32 {v(T+1)}, 7, {v(vL)}
v_xor_b32 {v(T+1)}, {v(T+1)}, {v(T)}
v_lshlrev_b32 {v(T)}, 10, {v(T)}
v_lshl_add_u32 {v(T)}, {v(T+1)}, 4, {v(T)}
v_add_u32 {v(vOrd)}, s{sT1}, {v(T)}
s_mul_i32 s{sT0}, s{sGRP}, {GRPSZ}
s_add_u32 s{sT0}, s{sT0}, {MLB}
s_lshl_b32 s{sT1}, s{sS}, 3
s_add_u32 s{sT1}, s{sT1}, s{sT0}
v_lshl_add_u32 {v(vMLwr)}, {v(vG)}, 7, s{sT1}
s_lshr_b32 s{sT1}, s{sW}, 1
s_lshl_b32 s{sT1}, s{sT1}, 7
s_add_u32 s{sT1}, s{sT1}, s{sT0}
v_lshl_add_u32 {v(vMLrd)}, {v(vG)}, 5, s{sT1}
s_mov_b32 s{mI4}, 0x000f000f
s_mov_b32 s{mI4+1}, 0x000f000f
s_mov_b32 s{mEVEN}, 0x55555555
s_mov_b32 s{mEVEN+1}, 0x55555555
s_mov_b32 s{mI0}, 0x00010001
s_mov_b32 s{mI0+1}, 0x00010001
s_mov_b32 s{sCS}, 0x3e0293ee          ; 128^-0.5 * log2(e)
s_mov_b32 s{sNL2E}, 0xbfb8aa3b        ; -log2(e)
s_mov_b32 s{sOGU}, 0
s_mov_b32 s{sOML}, 0
s_mov_b32 s{sOD1}, 0
s_mov_b32 s{sOD2}, 0x8000
s_mov_b32 s{sOD2P}, 0x8000
s_mov_b32 s{mLO}, -1
s_mov_b32 s{mLO+1}, 0
s_mov_b32 s{sOO}, 0
s_mov_b32 s{sOO2}, 7168
s_mov_b32 s{sSPIN}, 0
s_mov_b32 s{sFAST}, 0
s_lshl_b32 s{sT0}, s{sC}, 19
s_lshl_b32 s{sT1}, s{sS}, 6
s_add_u32 s{sT0}, s{sT0}, s{sT1}
s_add_u32 s{SRD_WO}, s16, s{sT0}
s_addc_u32 s{SRD_WO+1}, s17, 0
s_sub_u32 s{SRD_WO+2}, 4194304, s{sT0}
s_mov_b32 s{SRD_WO+3}, 0x20000
s_mul_i32 s{sT0}, s{sC}, 229376
s_add_u32 s{sT0}, s{sT0}, s{sT1}
s_add_u32 s{SRD_WD}, s24, s{sT0}
s_addc_u32 s{SRD_WD+1}, s25, 0
s_sub_u32 s{SRD_WD+2}, 1835008, s{sT0}
s_mov_b32 s{SRD_WD+3}, 0x20000
s_mul_i32 s{sT0}, s{sC}, 448
s_sub_u32 s{sT2}, s{sT1}, 448
s_cmp_lt_u32 s{sS}, 7
s_cselect_b32 s{sT1}, s{sT1}, s{sT2}
s_cselect_b32 s{sT2}, s20, s22
s_cselect_b32 s{sT3}, s21, s23
s_add_u32 s{sT0}, s{sT0}, s{sT1}
s_add_u32 s{SRD_WGU}, s{sT2}, s{sT0}
s_addc_u32 s{SRD_WGU+1}, s{sT3}, 0
s_sub_u32 s{SRD_WGU+2}, 1835008, s{sT0}
s_mov_b32 s{SRD_WGU+3}, 0x20000
s_mov_b32 s{SRD_OUT}, s26
s_mov_b32 s{SRD_OUT+1}, s27
s_mov_b32 s{SRD_OUT+2}, 2048
s_mov_b32 s{SRD_OUT+3}, 0x20000
v_mov_b32 {v(T)}, 0
v_and_b32 {v(T+1)}, 31, {v(vL)}
v_lshlrev_b32 {v(T+1)}, 2, {v(T+1)}
v_add_u32 {v(T+1)}, {LZ}, {v(T+1)}
ds_write_b32 {v(T+1)}, {v(T)}
v_mov_b32 {v(T)}, 0x3f80
v_lshlrev_b32 {v(T+1)}, 3, {v(vG)}
v_sub_u32 {v(T+1)}, {v(vI)}, {v(T+1)}
v_add_u32 {v(T+2)}, 16, {v(T+1)}
v_mov_b32 {v(T+3)}, 0x3f800000
''')
for blk,src in ((0,T+1),(1,T+2)):
    for r2 in range(4):
        d=RID+blk*4+r2
        a(f'''v_cmp_eq_u32 vcc, {2*r2}, {v(src)}
v_mov_b32 {v(d)}, 0
s_nop 0
v_cndmask_b32 {v(d)}, {v(d)}, {v(T)}, vcc
v_cmp_eq_u32 vcc, {2*r2+1}, {v(src)}
s_nop 1
v_cndmask_b32 {v(d)}, {v(d)}, {v(T+3)}, vcc''')
if FP1:
    XR=T+56; U=T+4; sa,sq=T+12,T+13
    a(f's_cmp_eq_u32 s{sW}, 0\ns_cbranch_scc1 L_fp1_w0\ns_waitcnt vmcnt({4+NVA})\ns_branch L_fp1_x\nL_fp1_w0:\ns_waitcnt vmcnt(9)\nL_fp1_x:')
    for j in range(4):
        a(f'v_lshlrev_b32 {v(U+2*j)}, 16, {v(XR+j)}\nv_and_b32 {v(U+1+2*j)}, 0xffff0000, {v(XR+j)}')
    a(f'v_add_f32 {v(sa)}, {v(U)}, {v(U+1)}\nv_mul_f32 {v(sq)}, {v(U)}, {v(U)}\nv_fmac_f32 {v(sq)}, {v(U+1)}, {v(U+1)}')
    for j in range(2,8):
        a(f'v_add_f32 {v(sa)}, {v(sa)}, {v(U+j)}\nv_fmac_f32 {v(sq)}, {v(U+j)}, {v(U+j)}')
    for m in ['quad_perm:[1,0,3,2] row_mask:0xf bank_mask:0xf','quad_perm:[2,3,0,1] row_mask:0xf bank_mask:0xf','row_half_mirror row_mask:0xf bank_mask:0xf','row_mirror row_mask:0xf bank_mask:0xf','row_bcast:15 row_mask:0xa bank_mask:0xf','row_bcast:31 row_mask:0xc bank_mask:0xf']:
        a(f'v_add_f32_dpp {v(sa)}, {v(sa)}, {v(sa)} {m}\nv_add_f32_dpp {v(sq)}, {v(sq)}, {v(sq)} {m}')
    a(f'''v_mul_f32 {v(sa)}, 0x3b000000, {v(sa)}
v_mul_f32 {v(sq)}, 0x3b000000, {v(sq)}
v_fma_f32 {v(sq)}, -{v(sa)}, {v(sa)}, {v(sq)}
v_max_f32 {v(sq)}, 0, {v(sq)}
v_add_f32 {v(sq)}, 0x3727c5ac, {v(sq)}
v_rsq_f32 {v(sq)}, {v(sq)}
s_nop 0
v_readlane_b32 s{sT4}, {v(sa)}, 63
v_readlane_b32 s{sT5}, {v(sq)}, 63
v_lshlrev_b32 {v(vX)}, 16, {v(vX)}
v_subrev_f32 {v(T+4)}, s{sT4}, {v(vX)}
v_mul_f32 {v(T+4)}, s{sT5}, {v(T+4)}
v_cvt_pk_bf16_f32 {v(T+4)}, {v(T+4)}, {v(T+4)}
ds_write_b16 {v(vXw)}, {v(T+4)}''')
a(f'''
s_cmp_eq_u32 s{sW}, 0
s_cbranch_scc1 L_wq_w0
s_waitcnt vmcnt({NTAIL})
v_add_u32 {v(vE)}, {EPC}, {v(vE)}
s_nop 0
v_readfirstlane_b32 s{sTAG}, {v(vE)}
s_branch L_wq_landed
L_wq_w0:
s_waitcnt vmcnt({NTAIL if (ILV or KE) else 0})
v_add_u32 {v(vE)}, {EPC}, {v(vE)}
s_nop 0
v_readfirstlane_b32 s{sTAG}, {v(vE)}
s_lshl_b32 s{sT0}, s{sGRP}, 7
s_lshl_b32 s{sT2}, s{sS}, 2
s_add_u32 s{sT0}, s{sT0}, s{sT2}
s_add_u32 s{sT0}, s{sT0}, {FB}
v_mov_b32 {v(T+8)}, s{sT0}
v_add_u32 {v(T+9)}, s{sXCC}, {v(vE)}
s_mov_b64 exec, 1
buffer_store_dword {v(T+9)}, {v(T+8)}, {srd(SRD_WS)}, 0 offen sc1
s_mov_b64 exec, -1
''')
if not ILV and not KE: v_dma(NV1,NVA)
a('L_wq_landed:')
stamp('wq_landed')
w_tr(RWQ,3 if KF else 0,2)
if KMID:
    a('s_waitcnt lgkmcnt(0)')
    k_dma()
if not FP1: a(f'v_lshlrev_b32 {v(vX)}, 16, {v(vX)}')
a(f'v_lshrrev_b32 {v(XB)}, 16, {v(vX)}')
def x_update(delta):
    if MO:
        a(f'''v_add_f32 {v(vX)}, {v(vX)}, {v(delta)}
v_cvt_pk_bf16_f32 {v(XB)}, {v(vX)}, {v(vX)}
v_and_b32 {v(vX)}, 0xffff0000, {v(XB)}''')
        return
    a(f'''v_cvt_pk_bf16_f32 {v(delta)}, {v(delta)}, {v(delta)}
v_and_b32 {v(delta)}, 0xffff0000, {v(delta)}
v_add_f32 {v(vX)}, {v(vX)}, {v(delta)}
v_cvt_pk_bf16_f32 {v(XB)}, {v(vX)}, {v(vX)}
v_and_b32 {v(vX)}, 0xffff0000, {v(XB)}''')
R=T+24
def d_issue(soff): a(f'buffer_load_dwordx4 {vr(R,4)}, {v(vDrd)}, {srd(SRD_WS)}, s{soff} offen sc1')
def d_check(soff, tag=None):
    r=lbl('pd_r'); ok=lbl('pd_ok'); c=lbl('pd_c')
    a(f'{c}:')
    check_valid(range(R,R+4), ok, T+40)
    spin_check(r)
    a(f'{r}:')
    if MRT: a('s_mov_b64 exec, vcc')
    d_issue(soff)
    if MRT: a('s_mov_b64 exec, -1')
    a(f's_waitcnt vmcnt(0)\ns_branch {c}')
    a(f'{ok}:')
    if tag: stamp(tag)
I1,I2=T+28,T+32
def ident_mfma():
    a(f'v_mfma_f32_16x16x32_bf16 {vr(I1,4)}, {vr(R,4)}, {vr(RID,4)}, 0\nv_mfma_f32_16x16x32_bf16 {vr(I2,4)}, {vr(R,4)}, {vr(RID+4,4)}, 0')
def d_sum():
    a(f'''v_add_f32 {v(I1)}, {v(I1)}, {v(I1+1)}
v_add_f32 {v(I1+2)}, {v(I1+2)}, {v(I1+3)}
v_add_f32 {v(I2)}, {v(I2)}, {v(I2+1)}
v_add_f32 {v(I2+2)}, {v(I2+2)}, {v(I2+3)}
v_add_f32 {v(I1)}, {v(I1)}, {v(I1+2)}
v_add_f32 {v(I2)}, {v(I2)}, {v(I2+2)}
v_permlane16_swap_b32 {v(I1)}, {v(I2)}
v_add_f32 {v(I1)}, {v(I1)}, {v(I2)}''')
    return I1
D00,D01,D10,D11=T+8,T+12,T+16,T+20
def ln_prev(W, colsum_if_l0, mid=None):
    a(f'ds_read_b128 {vr(T,4)}, {v(vXr)}\nds_read_b128 {vr(T+4,4)}, {v(vXr)} offset:64\ns_waitcnt lgkmcnt(0)')
    a(f'v_mfma_f32_16x16x32_bf16 {vr(D00,4)}, {vr(T,4)}, {vr(W,4)}, 0')
    a(f'v_mfma_f32_16x16x32_bf16 {vr(D01,4)}, {vr(T,4)}, {vr(W+4,4)}, 0')
    a(f'v_mfma_f32_16x16x32_bf16 {vr(D00,4)}, {vr(T+4,4)}, {vr(W+8,4)}, {vr(D00,4)}')
    a(f'v_mfma_f32_16x16x32_bf16 {vr(D01,4)}, {vr(T+4,4)}, {vr(W+12,4)}, {vr(D01,4)}')
    if mid: mid()
    l=lbl('cs')
    a(f's_cmp_lg_u32 s{sL}, 0\ns_cbranch_scc1 {l}')
    O1=T+40; C0,C1=T+44,T+48
    for j in range(4): a(f'v_mov_b32 {v(O1+j)}, 0x3f803f80')
    a(f'v_mfma_f32_16x16x32_bf16 {vr(C0,4)}, {vr(O1,4)}, {vr(W,4)}, 0')
    a(f'v_mfma_f32_16x16x32_bf16 {vr(C1,4)}, {vr(O1,4)}, {vr(W+4,4)}, 0')
    a(f'v_mfma_f32_16x16x32_bf16 {vr(C0,4)}, {vr(O1,4)}, {vr(W+8,4)}, {vr(C0,4)}')
    a(f'v_mfma_f32_16x16x32_bf16 {vr(C1,4)}, {vr(O1,4)}, {vr(W+12,4)}, {vr(C1,4)}')
    a(f's_nop 7\nv_cndmask_b32 {v(C0)}, {v(C1)}, {v(C0)}, s[{mLO}:{mLO+1}]')
    a('s_mov_b32 exec_lo, 0xffff\ns_mov_b32 exec_hi, 0xffff')
    a(f'ds_write_b32 {v(vP3w)}, {v(C0)} offset:{LPARTC-LP3 if LPARTC>=LP3 else 0}') if False else None
    a(f'v_add_u32 {v(C0+1)}, {(LPARTC-LP3)&0xffffffff}, {v(vP3w)}\nds_write_b32 {v(C0+1)}, {v(C0)}')
    a('s_mov_b64 exec, -1')
    a(f'{l}:')
def ln_post(W, pub, tag, cs):
    ident_mfma()
    a(f'v_mfma_f32_16x16x32_bf16 {vr(D00,4)}, {vr(R,4)}, {vr(W,4)}, {vr(D00,4)}')
    a(f'v_mfma_f32_16x16x32_bf16 {vr(D01,4)}, {vr(R,4)}, {vr(W+4,4)}, {vr(D01,4)}')
    a(f'v_mfma_f32_16x16x32_bf16 {vr(D10,4)}, {vr(R,4)}, {vr(W+8,4)}, 0')
    a(f'v_mfma_f32_16x16x32_bf16 {vr(D11,4)}, {vr(R,4)}, {vr(W+12,4)}, 0')
    x_update(d_sum())
    a(f'ds_write_b16 {v(vXw)}, {v(XB)}')
    sa,sq=T+38,T+39
    a(f'v_mov_b32 {v(sa)}, {v(vX)}\nv_mul_f32 {v(sq)}, {v(vX)}, {v(vX)}')
    steps=['quad_perm:[1,0,3,2] row_mask:0xf bank_mask:0xf','quad_perm:[2,3,0,1] row_mask:0xf bank_mask:0xf','row_half_mirror row_mask:0xf bank_mask:0xf','row_mirror row_mask:0xf bank_mask:0xf','row_bcast:15 row_mask:0xa bank_mask:0xf','row_bcast:31 row_mask:0xc bank_mask:0xf']
    fill=[f'v_add_f32 {v(D00)}, {v(D00)}, {v(D00+1)}', f'v_add_f32 {v(D00+2)}, {v(D00+2)}, {v(D00+3)}',
          f'v_add_f32 {v(D10)}, {v(D10)}, {v(D10+1)}', f'v_add_f32 {v(D10+2)}, {v(D10+2)}, {v(D10+3)}',
          f'v_add_f32 {v(D01)}, {v(D01)}, {v(D01+1)}', f'v_add_f32 {v(D01+2)}, {v(D01+2)}, {v(D01+3)}',
          f'v_add_f32 {v(D11)}, {v(D11)}, {v(D11+1)}', f'v_add_f32 {v(D11+2)}, {v(D11+2)}, {v(D11+3)}',
          f'v_add_f32 {v(D00)}, {v(D00)}, {v(D00+2)}', f'v_add_f32 {v(D10)}, {v(D10)}, {v(D10+2)}',
          f'v_add_f32 {v(D01)}, {v(D01)}, {v(D01+2)}', f'v_add_f32 {v(D11)}, {v(D11)}, {v(D11+2)}']
    for k,m in enumerate(steps):
        a(fill[2*k]); a(fill[2*k+1])
        a(f'v_add_f32_dpp {v(sa)}, {v(sa)}, {v(sa)} {m}\nv_add_f32_dpp {v(sq)}, {v(sq)}, {v(sq)} {m}')
    a(f'''v_cndmask_b32 {v(D00)}, {v(D10)}, {v(D00)}, s[{mLO}:{mLO+1}]
v_cndmask_b32 {v(D01)}, {v(D11)}, {v(D01)}, s[{mLO}:{mLO+1}]
s_mov_b32 exec_lo, 0
s_mov_b32 exec_hi, 0x80000000
ds_write2_b32 {v(vPw)}, {v(sa)}, {v(sq)} offset0:0 offset1:12
s_mov_b64 exec, -1
v_permlane32_swap_b32 {v(D00)}, {v(D01)}
v_add_f32 {v(D00)}, {v(D00)}, {v(D01)}
v_mov_b32 {v(D01)}, {v(D00)}
v_permlane16_swap_b32 {v(D00)}, {v(D01)}
v_add_f32 {v(D00)}, {v(D00)}, {v(D01)}
v_add_u32 {v(D01)}, {(LPART-LP3)&0xffffffff}, {v(vP3w)}
s_mov_b32 exec_lo, 0xffff
s_mov_b32 exec_hi, 0xffff
ds_write_b32 {v(D01)}, {v(D00)}
s_mov_b64 exec, -1
s_waitcnt lgkmcnt(0)
s_barrier''')
    stamp(tag+'_b2')
    done=lbl('lng_done'); nocs=lbl('nocs')
    a(f's_cmp_lg_u32 s{sW}, 0\ns_cbranch_scc1 {done}')
    a(f'ds_read_b128 {vr(T,4)}, {v(vPr)}\nds_read_b128 {vr(T+4,4)}, {v(vPr)} offset:16')
    a(f's_cmp_lg_u32 s{sL}, 0\ns_cbranch_scc1 {nocs}')
    a(f'''v_add_u32 {v(T+16)}, {(LPARTC-LPART)&0xffffffff}, {v(vPr)}
ds_read_b128 {vr(T+8,4)}, {v(T+16)}
ds_read_b128 {vr(T+12,4)}, {v(T+16)} offset:16
s_waitcnt lgkmcnt(0)
v_add_f32 {v(T+8)}, {v(T+8)}, {v(T+9)}
v_add_f32 {v(T+10)}, {v(T+10)}, {v(T+11)}
v_add_f32 {v(T+12)}, {v(T+12)}, {v(T+13)}
v_add_f32 {v(T+14)}, {v(T+14)}, {v(T+15)}
v_add_f32 {v(T+8)}, {v(T+8)}, {v(T+10)}
v_add_f32 {v(T+12)}, {v(T+12)}, {v(T+14)}
v_add_f32 {v(cs)}, {v(T+8)}, {v(T+12)}
{nocs}:
s_waitcnt lgkmcnt(0)
v_add_f32 {v(T)}, {v(T)}, {v(T+1)}
v_add_f32 {v(T+2)}, {v(T+2)}, {v(T+3)}
v_add_f32 {v(T+4)}, {v(T+4)}, {v(T+5)}
v_add_f32 {v(T+6)}, {v(T+6)}, {v(T+7)}
v_add_f32 {v(T)}, {v(T)}, {v(T+2)}
v_add_f32 {v(T+4)}, {v(T+4)}, {v(T+6)}
v_add_f32 {v(T)}, {v(T)}, {v(T+4)}
s_nop 0
v_readlane_b32 s{sT0}, {v(T)}, 32
v_readlane_b32 s{sT1}, {v(T)}, 33
s_nop 0
v_mov_b32 {v(T+2)}, s{sT0}
v_mov_b32 {v(T+3)}, s{sT1}
v_mul_f32 {v(T+2)}, 0x3b000000, {v(T+2)}          ; mean
v_mul_f32 {v(T+3)}, 0x3b000000, {v(T+3)}          ; E[x^2]
v_fma_f32 {v(T+3)}, -{v(T+2)}, {v(T+2)}, {v(T+3)}
v_fma_f32 {v(T+4)}, -{v(cs)}, {v(T+2)}, {v(T)}
v_max_f32 {v(T+3)}, 0, {v(T+3)}
v_add_f32 {v(T+3)}, 0x3727c5ac, {v(T+3)}          ; + 1e-5
v_rsq_f32 {v(T+3)}, {v(T+3)}
v_mul_f32 {v(T+4)}, {v(T+4)}, {v(T+3)}
v_mov_b32_dpp {v(T+5)}, {v(T+4)} quad_perm:[1,1,3,3] row_mask:0xf bank_mask:0xf
v_cvt_pk_bf16_f32 {v(T+12)}, {v(T+4)}, {v(T+5)}
v_min_u32 {v(T+12)}, -2, {v(T+12)}
s_mov_b32 exec_lo, 0x55555555
s_mov_b32 exec_hi, 0''')
    pub()
    exec_all()
    a(f'{done}:')
if not FP1:
    a(f'ds_write_b16 {v(vXw)}, {v(XB)}')
    for j in range(4): a(f'v_mov_b32 {v(R+j)}, 0')
    a('s_waitcnt lgkmcnt(0)')
    ln_prev(RWQ, True)
    a('s_branch L_p1_post')
else:
    a(f'ds_read_b128 {vr(T,4)}, {v(vXr)}\nds_read_b128 {vr(T+4,4)}, {v(vXr)} offset:64\ns_waitcnt lgkmcnt(0)')
    a(f'ds_write_b16 {v(vXw)}, {v(XB)}')
    a(f'v_mfma_f32_16x16x32_bf16 {vr(D00,4)}, {vr(T,4)}, {vr(RWQ,4)}, 0')
    a(f'v_mfma_f32_16x16x32_bf16 {vr(D01,4)}, {vr(T,4)}, {vr(RWQ+4,4)}, 0')
    a(f'v_mfma_f32_16x16x32_bf16 {vr(D00,4)}, {vr(T+4,4)}, {vr(RWQ+8,4)}, {vr(D00,4)}')
    a(f'v_mfma_f32_16x16x32_bf16 {vr(D01,4)}, {vr(T+4,4)}, {vr(RWQ+12,4)}, {vr(D01,4)}')
    a(f'''v_add_u32 {v(T+16)}, {(LPART-LP3)&0xffffffff}, {v(vP3w)}
v_permlane32_swap_b32 {v(D00)}, {v(D01)}
s_mov_b32 exec_lo, 0xffff
s_mov_b32 exec_hi, 0xffff
ds_write_b32 {v(T+16)}, {v(D00)}
s_mov_b64 exec, -1
s_waitcnt lgkmcnt(0)
s_barrier
s_cmp_lg_u32 s{sW}, 0
s_cbranch_scc1 L_fp1_done
ds_read_b128 {vr(T,4)}, {v(vPr)}
ds_read_b128 {vr(T+4,4)}, {v(vPr)} offset:16
s_waitcnt lgkmcnt(0)
v_add_f32 {v(T)}, {v(T)}, {v(T+1)}
v_add_f32 {v(T+2)}, {v(T+2)}, {v(T+3)}
v_add_f32 {v(T+4)}, {v(T+4)}, {v(T+5)}
v_add_f32 {v(T+6)}, {v(T+6)}, {v(T+7)}
v_add_f32 {v(T)}, {v(T)}, {v(T+2)}
v_add_f32 {v(T+4)}, {v(T+4)}, {v(T+6)}
v_add_f32 {v(T+4)}, {v(T)}, {v(T+4)}
v_mov_b32_dpp {v(T+5)}, {v(T+4)} quad_perm:[1,1,3,3] row_mask:0xf bank_mask:0xf
v_cvt_pk_bf16_f32 {v(T+12)}, {v(T+4)}, {v(T+5)}
v_min_u32 {v(T+12)}, -2, {v(T+12)}
s_lshl_b32 s{sT0}, s{sGRP}, 11
s_lshl_b32 s{sT1}, s{sS}, 7
s_add_u32 s{sT0}, s{sT0}, s{sT1}
s_add_u32 s{sT0}, s{sT0}, {Q0T}
v_lshl_add_u32 {v(T+14)}, {v(vL)}, 2, s{sT0}
s_add_u32 s{sT1}, s{sTAG}, s{sXCC}
v_mov_b32 {v(T+13)}, s{sT1}
s_mov_b32 exec_lo, 0x55555555
s_mov_b32 exec_hi, 0
buffer_store_dwordx2 {vr(T+12,2)}, {v(T+14)}, {srd(SRD_WS)}, 0 offen sc1
s_mov_b64 exec, -1
L_fp1_done:''')
    stamp('p1_done0')
    a('s_branch L_l0_after_p1')
a('L_layer:')
if LNF&1:
    ln_prev(RWQ, False)
    d_issue(sOD2P)
else:
    d_issue(sOD2P)
    ln_prev(RWQ, False)
a('s_waitcnt vmcnt(0)')
spinstamp(56)
d_check(sOD2P,'d2_ok')
spinstamp(57)
a('L_p1_post:')
def q_pub():
    l1=lbl('qp1'); l2=lbl('qpd')
    a(f's_cmp_lg_u32 s{sL}, 0\ns_cbranch_scc1 {l1}')
    a(f'''s_lshl_b32 s{sT0}, s{sGRP}, 11
s_lshl_b32 s{sT1}, s{sS}, 7
s_add_u32 s{sT0}, s{sT0}, s{sT1}
s_add_u32 s{sT0}, s{sT0}, {Q0T}
v_lshl_add_u32 {v(T+14)}, {v(vL)}, 2, s{sT0}
s_add_u32 s{sT1}, s{sTAG}, s{sXCC}
v_mov_b32 {v(T+13)}, s{sT1}
buffer_store_dwordx2 {vr(T+12,2)}, {v(T+14)}, {srd(SRD_WS)}, 0 offen sc1
s_branch {l2}
{l1}:''')
    pub_store(f'buffer_store_dword {v(T+12)}, {v(vQwr)}, {srd(SRD_WS)}, 0 offen')
    a(f'{l2}:')
ln_post(RWQ, q_pub, 'p1', vCSQ)
stamp('p1_done')
a(f's_cmp_lg_u32 s{sL}, 0\ns_cbranch_scc1 L_h1_l1')
if FP1: a('L_l0_after_p1:')
if not KE:
    if KDMA:
        if not KMID: k_dma()
    else:
        k_first(); k_second()
    if FP1:
        O1=T+40; C0,C1=T+44,T+48
        for j in range(4): a(f'v_mov_b32 {v(O1+j)}, 0x3f803f80')
        a(f'v_mfma_f32_16x16x32_bf16 {vr(C0,4)}, {vr(O1,4)}, {vr(RWQ,4)}, 0')
        a(f'v_mfma_f32_16x16x32_bf16 {vr(C1,4)}, {vr(O1,4)}, {vr(RWQ+4,4)}, 0')
        a(f'v_mfma_f32_16x16x32_bf16 {vr(C0,4)}, {vr(O1,4)}, {vr(RWQ+8,4)}, {vr(C0,4)}')
        a(f'v_mfma_f32_16x16x32_bf16 {vr(C1,4)}, {vr(O1,4)}, {vr(RWQ+12,4)}, {vr(C1,4)}')
        a(f'''v_add_u32 {v(T+52)}, {(LPARTC-LP3)&0xffffffff}, {v(vP3w)}
s_nop 7
v_cndmask_b32 {v(C0)}, {v(C1)}, {v(C0)}, s[{mLO}:{mLO+1}]
s_mov_b32 exec_lo, 0xffff
s_mov_b32 exec_hi, 0xffff
ds_write_b32 {v(T+52)}, {v(C0)}
s_mov_b64 exec, -1
s_waitcnt lgkmcnt(0)''')
    if KBAR: a('s_barrier')
    if FP1:
        a(f'''s_cmp_lg_u32 s{sW}, 0
s_cbranch_scc1 L_fp1_nocs
v_add_u32 {v(T+16)}, {(LPARTC-LPART)&0xffffffff}, {v(vPr)}
ds_read_b128 {vr(T+8,4)}, {v(T+16)}
ds_read_b128 {vr(T+12,4)}, {v(T+16)} offset:16
s_waitcnt lgkmcnt(0)
v_add_f32 {v(T+8)}, {v(T+8)}, {v(T+9)}
v_add_f32 {v(T+10)}, {v(T+10)}, {v(T+11)}
v_add_f32 {v(T+12)}, {v(T+12)}, {v(T+13)}
v_add_f32 {v(T+14)}, {v(T+14)}, {v(T+15)}
v_add_f32 {v(T+8)}, {v(T+8)}, {v(T+10)}
v_add_f32 {v(T+12)}, {v(T+12)}, {v(T+14)}
v_add_f32 {v(vCSQ)}, {v(T+8)}, {v(T+12)}
L_fp1_nocs:''')
stamp('k_issued')
pf3('o',1,T+41); pf3('g',2,T+41); pf3('d',3,T+41)
a(f's_cmp_eq_u32 s{sW}, 0\ns_cbranch_scc1 L_h1_w0\ns_cmp_eq_u32 s{sW}, 7\ns_cbranch_scc1 L_h1_w7')
v_rest()
NVH=0
if VHELP:
    NVH=8-NVA
    a(f's_cmp_lg_u32 s{sW}, 1\ns_cbranch_scc1 L_vh1')
    v_dma(NVA,8,0)
    a(f's_waitcnt vmcnt({2*(8-NVA)})\ns_branch L_vh_k')
    a(f'L_vh1:\ns_cmp_lg_u32 s{sW}, 6\ns_cbranch_scc1 L_vh2')
    v_dma(NVA,8,7)
    a(f's_waitcnt vmcnt({2*(8-NVA)})\ns_branch L_vh_k')
    a('L_vh2:')
def late_w():
    if VBAR: a('s_barrier')
    w_dma(SRD_WO, vWoo, 1, 4, 1024, NTW)
    l1=lbl('lw1'); l2=lbl('lw2')
    a(f's_cmp_ge_u32 s{sS}, 14\ns_cbranch_scc1 {l1}')
    w_dma(SRD_WGU, vWguo, 0, 4, 3584, NTW)
    a(f'{l1}:\ns_cmp_eq_u32 s{sW}, 7\ns_cbranch_scc1 {l2}')
    w_dma(SRD_WD, vWdo, 2, 2, 1024, NTW)
    a(f'{l2}:')
NPO=0
if ALLW:
    NWO=4
    late_w()
else:
    NPO=pf_wo()
    NWO=0 if WOLATE else 4
    if not WOLATE: w_dma(SRD_WO, vWoo, 1, 4, 1024, NTW)
stamp('vw_issued')
if ALLW:
    l1=lbl('kw1'); l2=lbl('kw2')
    a(f's_cmp_ge_u32 s{sS}, 14\ns_cbranch_scc1 {l1}\ns_waitcnt vmcnt({8-NVA+10})\ns_branch {l2}\n{l1}:\ns_waitcnt vmcnt({8-NVA+6})\n{l2}:')
else:
    a(f's_waitcnt vmcnt({(8 if KF else 8-NVA)+NPO+NWO})')
if VHELP: a('L_vh_k:')
stamp('k_landed')
if KDMA: k_frags()
a('s_branch L_h1_bar')
a(f'''L_h1_w7:
s_lshl_b32 s{sT0}, s{sB}, 10
s_add_u32 s{sT0}, s{sT0}, {FB}
v_lshrrev_b32 {v(T+28)}, 3, {v(vL)}
v_lshlrev_b32 {v(T+28)}, 7, {v(T+28)}
v_and_b32 {v(T+29)}, 7, {v(vL)}
v_lshl_add_u32 {v(T+28)}, {v(T+29)}, 3, {v(T+28)}
v_add_u32 {v(T+28)}, s{sT0}, {v(T+28)}
L_f1_retry:
buffer_load_dwordx2 {vr(T+30,2)}, {v(T+28)}, {srd(SRD_WS)}, 0 offen sc1
s_waitcnt vmcnt(0)
v_subrev_u32 {v(T+30)}, s{sTAG}, {v(T+30)}
v_subrev_u32 {v(T+31)}, s{sTAG}, {v(T+31)}
v_max_u32 {v(T+30)}, {v(T+30)}, {v(T+31)}
v_cmp_lt_u32 vcc, 15, {v(T+30)}
s_cbranch_vccz L_h1_rest
''')
spin_check('L_f1_retry')
a(f'''L_h1_w0:
s_lshl_b32 s{sT0}, s{sGRP}, 11
s_add_u32 s{sT0}, s{sT0}, {Q0T}
v_lshl_add_u32 {v(T+16)}, {v(vL)}, 5, s{sT0}
L_q0_retry:
buffer_load_dwordx4 {vr(T,4)}, {v(T+16)}, {srd(SRD_WS)}, 0 offen sc1
buffer_load_dwordx4 {vr(T+4,4)}, {v(T+16)}, {srd(SRD_WS)}, 0 offen offset:16 sc1
s_waitcnt vmcnt(0)
v_subrev_u32 {v(T+1)}, s{sTAG}, {v(T+1)}
v_subrev_u32 {v(T+3)}, s{sTAG}, {v(T+3)}
v_subrev_u32 {v(T+5)}, s{sTAG}, {v(T+5)}
v_subrev_u32 {v(T+7)}, s{sTAG}, {v(T+7)}
v_max3_u32 {v(T+8)}, {v(T+1)}, {v(T+3)}, {v(T+5)}
v_max_u32 {v(T+8)}, {v(T+8)}, {v(T+7)}
v_cmp_lt_u32 vcc, 15, {v(T+8)}
s_cbranch_vccz L_q0_ok''')
spin_check('L_q0_retry')
a(f'''L_q0_ok:
v_min3_u32 {v(T+9)}, {v(T+1)}, {v(T+3)}, {v(T+5)}
v_min_u32 {v(T+9)}, {v(T+9)}, {v(T+7)}
v_cmp_ne_u32 vcc, s{sXCC}, {v(T+8)}
v_cmp_ne_u32 s[{sT2}:{sT3}], s{sXCC}, {v(T+9)}
s_or_b64 vcc, vcc, s[{sT2}:{sT3}]
s_cmp_eq_u64 vcc, 0
s_cselect_b32 s{sT0}, 1, 0
''')
if FORCESLOW: a(f's_mov_b32 s{sT0}, 0')
a(f'''v_mul_u32_u24 {v(T+10)}, {QS}, {v(vG)}
v_lshl_add_u32 {v(T+10)}, {v(vI)}, 4, {v(T+10)}
v_add_u32 {v(T+10)}, {LQ}, {v(T+10)}
ds_write2_b32 {v(T+10)}, {v(T)}, {v(T+2)} offset0:0 offset1:1
ds_write2_b32 {v(T+10)}, {v(T+4)}, {v(T+6)} offset0:2 offset1:3
v_mov_b32 {v(T+11)}, s{sT0}
v_mov_b32 {v(T+12)}, {LFAST}
ds_write_b32 {v(T+12)}, {v(T+11)}
L_h1_rest:''')
if KDMA: k_frags()
if not VHELP: v_rest()
if ALLW: late_w()
else:
    pf_wo()
    if not WOLATE: w_dma(SRD_WO, vWoo, 1, 4, 1024, NTW)
a('s_branch L_h1_bar')
a('L_h1_l1:')
a(f's_cmp_lg_u32 s{sW}, {H1W}\ns_cbranch_scc1 L_h1_bar')
if H1W==0: ack()
a(f'''L_q1_retry:
buffer_load_dwordx4 {vr(T,4)}, {v(vQrd)}, {srd(SRD_WS)}, 0 offen sc1
s_waitcnt vmcnt(0)''')
check_valid(range(T,T+4),'L_q1_ok',T+4)
spin_check('L_q1_retry')
a(f'''L_q1_ok:
v_mul_u32_u24 {v(T+10)}, {QS}, {v(vG)}
v_lshl_add_u32 {v(T+10)}, {v(vI)}, 4, {v(T+10)}
v_add_u32 {v(T+10)}, {LQ}, {v(T+10)}
ds_write_b128 {v(T+10)}, {vr(T,4)}
L_h1_bar:
s_waitcnt lgkmcnt(0)
s_barrier''')
spinstamp(58) if False else None
stamp('q_ok')
if PT:
    a(f'''s_cmp_lg_u32 s{sL}, 0
s_cbranch_scc1 L_nopt
s_cmp_lg_u32 s{sW}, 6
s_cbranch_scc1 L_nopt
s_mul_i32 s{sT0}, s{sGRP}, {GRPSZ}
s_lshl_b32 s{sT1}, s{sS}, 10
s_add_u32 s{sT1}, s{sT1}, {OB}
v_and_b32 {v(T+70)}, 7, {v(vL)}
v_lshlrev_b32 {v(T+70)}, 7, {v(T+70)}
v_lshrrev_b32 {v(T+71)}, 3, {v(vL)}
v_and_b32 {v(T+71)}, 1, {v(T+71)}
v_lshl_add_u32 {v(T+70)}, {v(T+71)}, 14, {v(T+70)}
v_add_u32 {v(T+70)}, s{sT1}, {v(T+70)}
v_subrev_u32 {v(T+71)}, 16, {v(vL)}
s_lshl_b32 s{sT1}, s{sS}, 2
v_add_u32 {v(T+71)}, s{sT1}, {v(T+71)}
v_min_u32 {v(T+71)}, 39, {v(T+71)}
v_lshlrev_b32 {v(T+71)}, 7, {v(T+71)}
v_cmp_gt_u32 vcc, 16, {v(vL)}
s_nop 1
v_cndmask_b32 {v(T+70)}, {v(T+71)}, {v(T+70)}, vcc
s_mov_b32 exec_lo, 0xfffff
s_mov_b32 exec_hi, 0
buffer_load_dword {v(43 if False else T+83)}, {v(T+70)}, {srd(SRD_WS)}, s{sT0} offen sc1
s_mov_b64 exec, -1
L_nopt:''')
Q=T
for kk in range(4): a(f'ds_read_b128 {vr(Q+4*kk,4)}, {v(vQl)} offset:{kk*64}')
if not MO: a(f'v_mov_b32 {v(T+26)}, {LFAST}\nds_read_b32 {v(T+27)}, {v(T+26)}')
S0,S1=T+16,T+20
for kk in range(4):
    a(f's_waitcnt lgkmcnt({(3 if MO else 4)-kk})')
    for t,S in ((0,S0),(1,S1)):
        c='0' if kk==0 else vr(S,4)
        a(f'v_mfma_f32_16x16x32_bf16 {vr(S,4)}, {vr(RK+(t*4+kk)*4,4)}, {vr(Q+4*kk,4)}, {c}')
if WOS or MO:
    a(f's_cmp_lg_u32 s{sL}, 0\ns_cbranch_scc1 L_wos')
    if MO: a(f'v_mov_b32 {v(T+26)}, {LFAST}\nds_read_b32 {v(T+27)}, {v(T+26)}')
    if WOS: w_dma(SRD_WO, vWoo, 1, WOS, 1024, NTW)
    if MO: a(f's_waitcnt lgkmcnt(0)\nv_readfirstlane_b32 s{sFAST}, {v(T+27)}')
    a('L_wos:')
if not MO: a(f's_waitcnt lgkmcnt(0)\nv_readfirstlane_b32 s{sFAST}, {v(T+27)}')
m,m2,tt=T+24,T+25,T+26
MC,LS=T+28,T+29
a(f'''
v_max3_f32 {v(m)}, {v(S0)}, {v(S0+1)}, {v(S0+2)}
v_max3_f32 {v(m2)}, {v(S1)}, {v(S1+1)}, {v(S1+2)}
v_max3_f32 {v(m)}, {v(m)}, {v(S0+3)}, {v(S1+3)}
v_max_f32 {v(m)}, {v(m)}, {v(m2)}
v_mov_b32 {v(tt)}, {v(m)}
v_permlane16_swap_b32 {v(m)}, {v(tt)}
v_max_f32 {v(m)}, {v(m)}, {v(tt)}
v_mov_b32 {v(tt)}, {v(m)}
v_permlane32_swap_b32 {v(m)}, {v(tt)}
v_max_f32 {v(m)}, {v(m)}, {v(tt)}
v_mul_f32 {v(MC)}, s{sCS}, {v(m)}
''')
P=T+32
for t,S in ((0,S0),(1,S1)):
    for r in range(4): a(f'v_fma_f32 {v(P+4*t+r)}, {v(S+r)}, s{sCS}, -{v(MC)}')
for r in range(8): a(f'v_exp_f32 {v(P+r)}, {v(P+r)}')
PK=T+40
for r in range(4): a(f'v_cvt_pk_bf16_f32 {v(PK+r)}, {v(P+2*r)}, {v(P+2*r+1)}')
if ALLW:
    VWAIT=f'''s_cmp_ge_u32 s{sS}, 14
s_cbranch_scc1 L_vw_a
s_cmp_eq_u32 s{sW}, 7
s_cbranch_scc1 L_vw_b
s_waitcnt vmcnt(10)
s_branch L_p2_nov
L_vw_b:
s_waitcnt vmcnt(8)
s_branch L_p2_nov
L_vw_a:
s_cmp_eq_u32 s{sW}, 7
s_cbranch_scc1 L_vw_c
s_waitcnt vmcnt(6)
s_branch L_p2_nov
L_vw_c:
s_waitcnt vmcnt(4)'''
else:
    VWAIT=f's_waitcnt vmcnt({NPO+NWO+WOS})'
LML2=LDUM
if MO:
    LTAIL=f'''s_mov_b64 exec, s[{mI4}:{mI4+1}]
ds_write_b32 {v(vMLw)}, {v(LS)}
s_mov_b64 exec, 15
ds_write_b32 {v(vMLw)}, {v(MC)} offset:16
s_mov_b64 exec, -1'''
else:
    LTAIL=f'''v_mov_b32 {v(tt)}, {v(LS)}
v_permlane16_swap_b32 {v(LS)}, {v(tt)}
v_add_f32 {v(LS)}, {v(LS)}, {v(tt)}
v_mov_b32 {v(tt)}, {v(LS)}
v_permlane32_swap_b32 {v(LS)}, {v(tt)}
v_add_f32 {v(LS)}, {v(LS)}, {v(tt)}
s_mov_b64 exec, 15
ds_write_b64 {v(vMLw)}, {vr(MC,2)}
s_mov_b64 exec, -1'''
exec_mask(mI4)
a(f'ds_write_b128 {v(vPLw)}, {vr(PK,4)}')
exec_all()
a(f'''
v_add_f32 {v(P)}, {v(P)}, {v(P+1)}
v_add_f32 {v(P+2)}, {v(P+2)}, {v(P+3)}
v_add_f32 {v(P+4)}, {v(P+4)}, {v(P+5)}
v_add_f32 {v(P+6)}, {v(P+6)}, {v(P+7)}
v_add_f32 {v(P)}, {v(P)}, {v(P+2)}
v_add_f32 {v(P+4)}, {v(P+4)}, {v(P+6)}
v_add_f32 {v(LS)}, {v(P)}, {v(P+4)}
{LTAIL}
s_cmp_lg_u32 s{sL}, 0
s_cbranch_scc1 L_p2_nov
{VWAIT}
L_p2_nov:
s_waitcnt lgkmcnt(0)
s_barrier
''')
stamp('p2_bar')
a(f's_cmp_lg_u32 s{sL}, 0\ns_cbranch_scc1 L_p2_novt')
if WOLATE and not ALLW and WOS<4: w_dma(SRD_WO, vWoo, 1, 4, 1024, NTW, WOS)
pf_wgu()
if WGS:
    a(f's_cmp_ge_u32 s{sS}, 14\ns_cbranch_scc1 L_p2_nowgs')
    w_dma(SRD_WGU, vWguo, 0, WGS, 3584, NTW)
    a('L_p2_nowgs:')
if WGP2:
    a(f's_cmp_ge_u32 s{sS}, 14\ns_cbranch_scc1 L_p2_nowg')
    w_dma(SRD_WGU, vWguo, 0, 4, 3584, NTW)
    a('L_p2_nowg:')
for kk in range(8):
    for hh in range(2):
        a(f'ds_read_b64_tr_b16 {vr(RV+kk*4+hh*2,2)}, {v(vVr)} offset:{LV+kk*8192+hh*4096}')
a('s_waitcnt lgkmcnt(0)\ns_barrier')
a('L_p2_novt:')
PA=T; MLr=T+32; DO=T+48
OO=T+82
if not P2O:
    for k in range(4): a(f'ds_read_b128 {vr(MLr+4*k,4)}, {v(vMLr)} offset:{16*k}')
    for kk in range(8): a(f'ds_read_b128 {vr(PA+4*kk,4)}, {v(vPLr)} offset:{kk*256}')
    for kk in range(8):
        a(f's_waitcnt lgkmcnt({7-kk})')
        a(f'v_mfma_f32_16x16x32_bf16 {vr(DO+4*kk,4)}, {vr(PA+4*kk,4)}, {vr(RV+4*kk,4)}, 0')
        if kk==0:
            mc=[MLr+2*k for k in range(8)]
            a(f'''v_max3_f32 {v(T+80)}, {v(mc[0])}, {v(mc[1])}, {v(mc[2])}
    v_max3_f32 {v(T+81)}, {v(mc[3])}, {v(mc[4])}, {v(mc[5])}
    v_max3_f32 {v(T+80)}, {v(T+80)}, {v(mc[6])}, {v(mc[7])}
    v_max_f32 {v(T+80)}, {v(T+80)}, {v(T+81)}''')
        if kk==1:
            for k in range(8): a(f'v_sub_f32 {v(MLr+2*k)}, {v(MLr+2*k)}, {v(T+80)}')
        if kk==3:
            for k in range(8): a(f'v_exp_f32 {v(MLr+2*k)}, {v(MLr+2*k)}')
        if kk==6:
            a(f'v_mul_f32 {v(T+81)}, {v(MLr)}, {v(MLr+1)}')
            for k in range(1,8): a(f'v_fmac_f32 {v(T+81)}, {v(MLr+2*k)}, {v(MLr+2*k+1)}')
    OO=T+82
    a(f'v_mul_f32 {v(OO)}, {v(MLr)}, {v(DO)}\nv_mul_f32 {v(OO+1)}, {v(MLr+2)}, {v(DO+4)}')
    for k in range(2,8,2):
        a(f'v_fmac_f32 {v(OO)}, {v(MLr+2*k)}, {v(DO+4*k)}\nv_fmac_f32 {v(OO+1)}, {v(MLr+2*k+2)}, {v(DO+4*k+4)}')
else:
    mc,ll,FM,FL=MLr,MLr+1,T+80,T+81
    DP='row_mask:0xf bank_mask:0xf'
    if MO:
        mc,ll=MLr+4,MLr
        a(f'ds_read_b32 {v(mc)}, {v(vMLr)} offset:16\nds_read_b128 {vr(ll,4)}, {v(vMLr)}')
    else:
        a(f'ds_read_b64 {vr(mc,2)}, {v(vMLr)}')
    for kk in range(8): a(f'ds_read_b128 {vr(PA+4*kk,4)}, {v(vPLr)} offset:{kk*256}')
    for kk in range(8):
        a(f's_waitcnt lgkmcnt({7-kk})')
        a(f'v_mfma_f32_16x16x32_bf16 {vr(DO+4*kk,4)}, {vr(PA+4*kk,4)}, {vr(RV+4*kk,4)}, 0')
        if kk==0: a(f'v_max_f32_dpp {v(FM)}, {v(mc)}, {v(mc)} quad_perm:[1,0,3,2] {DP}')
        if kk==0 and MO: a(f'v_add_f32 {v(ll)}, {v(ll)}, {v(ll+1)}\nv_add_f32 {v(ll+2)}, {v(ll+2)}, {v(ll+3)}')
        if kk==1: a(f'v_max_f32_dpp {v(FM)}, {v(FM)}, {v(FM)} quad_perm:[2,3,0,1] {DP}')
        if kk==1 and MO: a(f'v_add_f32 {v(ll)}, {v(ll)}, {v(ll+2)}')
        if kk==2: a(f'v_max_f32_dpp {v(FM)}, {v(FM)}, {v(FM)} row_half_mirror {DP}\nv_sub_f32 {v(mc)}, {v(mc)}, {v(FM)}\nv_exp_f32 {v(mc)}, {v(mc)}')
        if kk==3: a(f'v_mul_f32 {v(FL)}, {v(mc)}, {v(ll)}')
        if kk==4: a(f'v_add_f32_dpp {v(FL)}, {v(FL)}, {v(FL)} quad_perm:[1,0,3,2] {DP}')
        if kk==5: a(f'v_add_f32_dpp {v(FL)}, {v(FL)}, {v(FL)} quad_perm:[2,3,0,1] {DP}\nv_mul_f32_dpp {v(OO)}, {v(mc)}, {v(DO)} row_newbcast:0 {DP}\nv_mul_f32_dpp {v(OO+1)}, {v(mc)}, {v(DO+4)} row_newbcast:1 {DP}')
        if kk==6: a(f'v_add_f32_dpp {v(FL)}, {v(FL)}, {v(FL)} row_half_mirror {DP}\nv_fmac_f32_dpp {v(OO)}, {v(mc)}, {v(DO+8)} row_newbcast:2 {DP}\nv_fmac_f32_dpp {v(OO+1)}, {v(mc)}, {v(DO+12)} row_newbcast:3 {DP}')
    for k in range(4,8):
        a(f'v_fmac_f32_dpp {v(OO+(k%2))}, {v(mc)}, {v(DO+4*k)} row_newbcast:{k} {DP}')
a(f'''
v_add_f32 {v(OO)}, {v(OO)}, {v(OO+1)}
v_mov_b32_dpp {v(OO+1)}, {v(OO)} quad_perm:[1,1,3,3] row_mask:0xf bank_mask:0xf
v_cvt_pk_bf16_f32 {v(OO)}, {v(OO)}, {v(OO+1)}
v_min_u32 {v(OO)}, -2, {v(OO)}
''')
exec_mask(mEVEN)
pub_store(f'buffer_store_dword {v(OO)}, {v(vOwr)}, {srd(SRD_WS)}, s{sOO} offen')
a(f's_cmp_lg_u32 s{sW}, 0\ns_cbranch_scc1 L_p2_noml')
a(f'v_min_u32 {v(T+80)}, -2, {v(T+80)}\nv_min_u32 {v(T+81)}, -2, {v(T+81)}')
exec_mask(mI0)
pub_store(f'buffer_store_dwordx2 {vr(T+80,2)}, {v(vMLwr)}, {srd(SRD_WS)}, s{sOML} offen')
a('L_p2_noml:')
exec_all()
stamp('p2_done')
A0,A1,ML0=T,T+4,T+8
def o_issue():
    a(f's_lshl_b32 s{sT0}, s{sW}, 11\ns_add_u32 m0, s{sT0}, {LV}\ns_nop 0')
    a(f'buffer_load_dwordx4 {v(vOrd)}, {srd(SRD_WS)}, s{sOO} offen sc1 lds')
    a(f'buffer_load_dwordx4 {v(vOrd)}, {srd(SRD_WS)}, s{sOO2} offen offset:1024 sc1 lds')
    a(f'buffer_load_dwordx4 {vr(ML0,4)}, {v(vMLrd)}, {srd(SRD_WS)}, s{sOML} offen sc1')
    a(f'buffer_load_dwordx4 {vr(ML0+4,4)}, {v(vMLrd)}, {srd(SRD_WS)}, s{sOML} offen offset:16 sc1')
if H2A: a('s_waitcnt vmcnt(0)')
else: a(f's_cmp_lg_u32 s{sL}, 0\ns_cbranch_scc1 L_o_noack\ns_waitcnt vmcnt(0)\nL_o_noack:')
if BG:
    MLX=LV+32768
    a(f's_cmp_lg_u32 s{sL}, 0\ns_cbranch_scc1 L_o_retry')
    w_tr(RWO,1,2)
    a(f's_cmp_ge_u32 s{sW}, 4\ns_cbranch_scc1 L_bg_b')
    a(f'''L_bg_retry:
s_lshl_b32 s{sT0}, s{sW}, 11
s_add_u32 m0, s{sT0}, {LV}
s_mov_b32 s{sT1}, 7168
buffer_load_dwordx4 {v(vOrd)}, {srd(SRD_WS)}, 0 offen sc1 lds
buffer_load_dwordx4 {v(vOrd)}, {srd(SRD_WS)}, s{sT1} offen offset:1024 sc1 lds
s_add_u32 m0, s{sT0}, {LV+8192}
s_mov_b32 s{sT1}, 512
s_mov_b32 s{sT2}, 7680
buffer_load_dwordx4 {v(vOrd)}, {srd(SRD_WS)}, s{sT1} offen sc1 lds
buffer_load_dwordx4 {v(vOrd)}, {srd(SRD_WS)}, s{sT2} offen offset:1024 sc1 lds
buffer_load_dwordx4 {vr(ML0,4)}, {v(vMLrd)}, {srd(SRD_WS)}, 0 offen sc1
buffer_load_dwordx4 {vr(ML0+4,4)}, {v(vMLrd)}, {srd(SRD_WS)}, 0 offen offset:16 sc1
buffer_load_dwordx4 {vr(T+32,4)}, {v(vMLrd)}, {srd(SRD_WS)}, 0 offen offset:256 sc1
buffer_load_dwordx4 {vr(T+36,4)}, {v(vMLrd)}, {srd(SRD_WS)}, 0 offen offset:272 sc1
s_waitcnt vmcnt(0)
ds_read_b128 {vr(A0,4)}, {v(vOst0)}
ds_read_b128 {vr(A1,4)}, {v(vOst1)}
ds_read_b128 {vr(T+16,4)}, {v(vOst0)} offset:8192
ds_read_b128 {vr(T+20,4)}, {v(vOst1)} offset:8192
s_waitcnt lgkmcnt(0)''')
    check_valid(list(range(T,T+24))+list(range(T+32,T+40)),'L_bg_ok',T+40)
    spin_check('L_bg_retry')
    a(f'''L_bg_ok:
s_lshl_b32 s{sT0}, s{sW}, 11
s_add_u32 s{sT0}, s{sT0}, {MLX}
v_lshl_add_u32 {v(T+40)}, {v(vL)}, 5, s{sT0}
ds_write_b128 {v(T+40)}, {vr(T+32,4)}
ds_write_b128 {v(T+40)}, {vr(T+36,4)} offset:16
s_waitcnt lgkmcnt(0)
s_barrier
s_branch L_o_ok
L_bg_b:''')
    for dt in (4,0):
        lg=lbl('bgg'); ld=lbl('bgd')
        a(f's_cmp_ge_u32 s{sS}, 14\ns_cbranch_scc1 {lg}')
        a(f'v_subrev_u32 {v(T+62)}, {dt*64*3584}, {v(vWguo)}\ns_sub_u32 s{sT0}, s{sW}, {dt}\ns_lshl_b32 s{sT0}, s{sT0}, 13\ns_add_u32 m0, s{sT0}, {LW}')
        for n in range(4):
            a(f's_mov_b32 s{sT1}, {n*(16*3584-1024)}\nbuffer_load_dwordx4 {v(T+62)}, {srd(SRD_WGU)}, s{sT1} offen offset:{n*1024} {NTW} lds')
        a(f'{lg}:')
        if dt==0: a(f's_cmp_eq_u32 s{sW}, 7\ns_cbranch_scc1 {ld}')
        a(f'v_subrev_u32 {v(T+63)}, {dt*32*1024}, {v(vWdo)}\ns_sub_u32 s{sT0}, s{sW}, {dt}\ns_lshl_b32 s{sT0}, s{sT0}, 11\ns_add_u32 m0, s{sT0}, {LWD}')
        for n in range(2):
            a(f's_mov_b32 s{sT1}, {n*(16*1024-1024)}\nbuffer_load_dwordx4 {v(T+63)}, {srd(SRD_WD)}, s{sT1} offen offset:{n*1024} {NTW} lds')
        a(f'{ld}:')
    a(f'''s_waitcnt lgkmcnt(0)
s_barrier
s_sub_u32 s{sT0}, s{sW}, 4
s_lshl_b32 s{sT0}, s{sT0}, 11
s_add_u32 s{sT0}, s{sT0}, {MLX}
v_lshl_add_u32 {v(T+40)}, {v(vL)}, 5, s{sT0}
ds_read_b128 {vr(A0,4)}, {v(vOst0)}
ds_read_b128 {vr(A1,4)}, {v(vOst1)}
ds_read_b128 {vr(ML0,4)}, {v(T+40)}
ds_read_b128 {vr(ML0+4,4)}, {v(T+40)} offset:16
s_waitcnt lgkmcnt(0)
s_branch L_o_ok''')
else:
    o_issue()
    a(f's_cmp_lg_u32 s{sL}, 0\ns_cbranch_scc1 L_o_wait')
    w_tr(RWO,1,2)
if WGP2:
    a('s_waitcnt lgkmcnt(4)')
    w_tr(RWG,0,2)
    a('s_branch L_o_wait')
elif ALLW:
    a('s_waitcnt lgkmcnt(4)')
    w_tr(RWG,0,2)
    a('s_waitcnt lgkmcnt(4)')
    w_tr(RWD,2,1)
    a('s_branch L_o_wait')
elif WGE:
    a(f's_cmp_ge_u32 s{sS}, 14\ns_cbranch_scc1 L_o_wait')
    w_dma(SRD_WGU, vWguo, 0, 4, 3584, NTW)
    a('s_waitcnt vmcnt(4)\ns_branch L_o_chk')
elif not BG:
    a('s_branch L_o_wait')
a('L_o_retry:')
o_issue()
a('L_o_wait:\ns_waitcnt vmcnt(0)')
a('L_o_chk:')
a(f'ds_read_b128 {vr(A0,4)}, {v(vOst0)}\nds_read_b128 {vr(A1,4)}, {v(vOst1)}\ns_waitcnt lgkmcnt(0)')
check_valid(range(T,T+16),'L_o_ok',T+16)
spin_check('L_o_retry')
a('L_o_ok:')
spinstamp(59)
stamp('o_ok')
if WGP2 and WDO:
    a(f's_cmp_lg_u32 s{sL}, 0\ns_cbranch_scc1 L_p3_go\ns_cmp_eq_u32 s{sW}, 7\ns_cbranch_scc1 L_p3_go')
    w_dma(SRD_WD, vWdo, 2, 2, 1024, NTW)
    a('L_p3_go:')
elif not WGE and not ALLW and not WGP2 and not BG:
    if WDOK:
        a(f's_cmp_lg_u32 s{sL}, 0\ns_cbranch_scc1 L_p3_go\ns_cmp_ge_u32 s{sS}, 14\ns_cbranch_scc1 L_p3_nog')
        w_dma(SRD_WGU, vWguo, 0, 4, 3584, NTW, WGS)
        a(f'L_p3_nog:\ns_cmp_eq_u32 s{sW}, 7\ns_cbranch_scc1 L_p3_go')
        w_dma(SRD_WD, vWdo, 1, 2, 1024, NTW)
    else:
        a(f's_cmp_lg_u32 s{sL}, 0\ns_cbranch_scc1 L_p3_go\ns_cmp_ge_u32 s{sS}, 14\ns_cbranch_scc1 L_p3_go')
        w_dma(SRD_WGU, vWguo, 0, 4, 3584, NTW, WGS)
    if 'd' in PFX:
        a(f's_cmp_eq_u32 s{sW}, 7\ns_cbranch_scc1 L_p3_go')
        pf_wd()
    a('L_p3_go:')
E0,E1=T+16,T+20
a(f'v_mfma_f32_16x16x32_bf16 {vr(E0,4)}, {vr(A0,4)}, {vr(RWO,4)}, 0')
a(f'v_mfma_f32_16x16x32_bf16 {vr(E1,4)}, {vr(A0,4)}, {vr(RWO+4,4)}, 0')
a(f'v_mfma_f32_16x16x32_bf16 {vr(E0,4)}, {vr(A1,4)}, {vr(RWO+8,4)}, {vr(E0,4)}')
a(f'v_mfma_f32_16x16x32_bf16 {vr(E1,4)}, {vr(A1,4)}, {vr(RWO+12,4)}, {vr(E1,4)}')
Mx,tt,Lt=T+24,T+25,T+26
M=[ML0,ML0+2,ML0+4,ML0+6]; Lr=[x+1 for x in M]
a(f'''
v_max3_f32 {v(Mx)}, {v(M[0])}, {v(M[1])}, {v(M[2])}
v_max_f32 {v(Mx)}, {v(Mx)}, {v(M[3])}
v_mov_b32 {v(tt)}, {v(Mx)}
v_permlane16_swap_b32 {v(Mx)}, {v(tt)}
v_max_f32 {v(Mx)}, {v(Mx)}, {v(tt)}
v_mov_b32 {v(tt)}, {v(Mx)}
v_permlane32_swap_b32 {v(Mx)}, {v(tt)}
v_max_f32 {v(Mx)}, {v(Mx)}, {v(tt)}
''')
for r in range(4): a(f'v_sub_f32 {v(M[r])}, {v(M[r])}, {v(Mx)}')
for r in range(4): a(f'v_exp_f32 {v(M[r])}, {v(M[r])}')
a(f'v_mul_f32 {v(Lt)}, {v(M[0])}, {v(Lr[0])}')
for r in range(1,4): a(f'v_fmac_f32 {v(Lt)}, {v(M[r])}, {v(Lr[r])}')
Y0,Y1=T+27,T+28
a(f'''
v_mov_b32 {v(tt)}, {v(Lt)}
v_mul_f32 {v(Y0)}, {v(M[0])}, {v(E0)}
v_mul_f32 {v(Y1)}, {v(M[0])}, {v(E1)}
v_permlane16_swap_b32 {v(Lt)}, {v(tt)}
v_add_f32 {v(Lt)}, {v(Lt)}, {v(tt)}
v_fmac_f32 {v(Y0)}, {v(M[1])}, {v(E0+1)}
v_fmac_f32 {v(Y1)}, {v(M[1])}, {v(E1+1)}
v_mov_b32 {v(tt)}, {v(Lt)}
v_fmac_f32 {v(Y0)}, {v(M[2])}, {v(E0+2)}
v_fmac_f32 {v(Y1)}, {v(M[2])}, {v(E1+2)}
v_permlane32_swap_b32 {v(Lt)}, {v(tt)}
v_add_f32 {v(Lt)}, {v(Lt)}, {v(tt)}
v_fmac_f32 {v(Y0)}, {v(M[3])}, {v(E0+3)}
v_fmac_f32 {v(Y1)}, {v(M[3])}, {v(E1+3)}
v_rcp_f32 {v(Lt)}, {v(Lt)}
v_permlane32_swap_b32 {v(Y0)}, {v(Y1)}
v_add_f32 {v(Y0)}, {v(Y0)}, {v(Y1)}
v_mov_b32 {v(tt)}, {v(Y0)}
v_permlane16_swap_b32 {v(Y0)}, {v(tt)}
v_add_f32 {v(Y0)}, {v(Y0)}, {v(tt)}
v_mul_f32 {v(Y0)}, {v(Y0)}, {v(Lt)}
s_mov_b32 exec_lo, 0xffff
s_mov_b32 exec_hi, 0xffff
ds_write_b32 {v(vP3w)}, {v(Y0)}
s_mov_b64 exec, -1
s_waitcnt lgkmcnt(0)
s_barrier
''')
stamp('p3_bar')
def final8(rd, n, soff, lab, extra=None, ep=None):
    if ep:
        l0=lbl('f8e')
        a(f's_cmp_eq_u32 s{sW}, 0\ns_cbranch_scc1 {l0}\ns_cmp_lg_u32 s{sL}, 0\ns_cbranch_scc1 {lab}\ns_branch {ep}\n{l0}:')
    elif extra:
        l0=lbl('f8x')
        a(f's_cmp_eq_u32 s{sW}, 0\ns_cbranch_scc1 {l0}')
        extra(); a(f's_branch {lab}\n{l0}:')
    else:
        a(f's_cmp_lg_u32 s{sW}, 0\ns_cbranch_scc1 {lab}')
    a(f'ds_read_b128 {vr(T,4)}, {v(rd)}\nds_read_b128 {vr(T+4,4)}, {v(rd)} offset:16\ns_waitcnt lgkmcnt(0)')
    a(f'''v_add_f32 {v(T)}, {v(T)}, {v(T+1)}
v_add_f32 {v(T+2)}, {v(T+2)}, {v(T+3)}
v_add_f32 {v(T+4)}, {v(T+4)}, {v(T+5)}''')
    if n==8: a(f'v_add_f32 {v(T+6)}, {v(T+6)}, {v(T+7)}')
    a(f'''v_add_f32 {v(T)}, {v(T)}, {v(T+2)}
v_add_f32 {v(T+4)}, {v(T+4)}, {v(T+6)}
v_add_f32 {v(T)}, {v(T)}, {v(T+4)}
v_mov_b32_dpp {v(T+1)}, {v(T)} quad_perm:[1,1,3,3] row_mask:0xf bank_mask:0xf
v_cvt_pk_bf16_f32 {v(T)}, {v(T)}, {v(T+1)}
v_min_u32 {v(T)}, -2, {v(T)}
s_mov_b32 exec_lo, 0x55555555
s_mov_b32 exec_hi, 0
buffer_store_dword {v(T)}, {v(vDwr)}, {srd(SRD_WS)}, s{soff} offen sc1
s_mov_b64 exec, -1''')
    if ep: a(f's_cmp_eq_u32 s{sL}, 0\ns_cbranch_scc1 {ep}')
    elif extra: extra()
    ack()
    a(f'{lab}:')
    if ACK: a('s_barrier')
def wgu_pretr():
    l=lbl('ptr')
    if BG:
        a(f's_waitcnt vmcnt(0)\n{l}:'); return
    if WDOK:
        a(f's_cmp_lg_u32 s{sL}, 0\ns_cbranch_scc1 {l}')
        a('s_waitcnt vmcnt(0)')
        w_tr(RWG,0,2)
        a('s_waitcnt lgkmcnt(4)')
        w_tr(RWD,1,1)
    else:
        a(f's_cmp_lg_u32 s{sL}, 0\ns_cbranch_scc1 {l}\ns_cmp_ge_u32 s{sS}, 14\ns_cbranch_scc1 {l}')
        a('s_waitcnt vmcnt(0)')
        w_tr(RWG,0,2)
    a(f's_waitcnt lgkmcnt(0)\n{l}:')
final8(vP3r, 8, sOD1, 'L_p3_done', wgu_pretr if PRETR else None, 'L_p3_ep' if EP else None)
stamp('p3_done')
if not (LNF&2): d_issue(sOD1)
if EP:
    a('s_branch L_p4_w\nL_p3_ep:')
    d_issue(sOD1)
    a(f's_cmp_ge_u32 s{sS}, 14\ns_cbranch_scc1 L_p4_idle0\ns_waitcnt vmcnt(1)')
    w_tr(RWG,0,2)
    a('s_waitcnt lgkmcnt(0)')
if BG:
    a(f's_cmp_lg_u32 s{sL}, 0\ns_cbranch_scc1 L_bg_notr')
    w_tr(RWG,0,2)
    a('s_waitcnt lgkmcnt(4)')
    w_tr(RWD,2,1)
    a('s_waitcnt lgkmcnt(0)\nL_bg_notr:')
if not PRETR:
    a(f's_cmp_lg_u32 s{sL}, 0\ns_cbranch_scc1 L_p4_w')
    if WDE and not ALLW and not WGP2:
        a(f's_cmp_eq_u32 s{sW}, 7\ns_cbranch_scc1 L_p4_w7')
        w_dma(SRD_WD, vWdo, 1, 2, 1024, NTW)
        a('s_waitcnt vmcnt(2)\ns_branch L_p4_tr\nL_p4_w7:')
    if ALLW or WGP2:
        a(f's_cmp_ge_u32 s{sS}, 14\ns_cbranch_scc1 L_p4_idle0')
        ln_prev(RWG, True)
        a('s_waitcnt vmcnt(0)')
    else:
        a('s_waitcnt vmcnt(0)\nL_p4_tr:')
        a(f's_cmp_ge_u32 s{sS}, 14\ns_cbranch_scc1 L_p4_idle')
        w_tr(RWG,0,2)
        a('s_waitcnt lgkmcnt(0)')
        ln_prev(RWG, True)
    a('s_branch L_p4_chk')
elif not EP:
    a('s_branch L_p4_w\nL_p4_idle:\ns_branch L_p4_idle9')
a('L_p4_w:')
if LNF&2:
    a(f's_cmp_ge_u32 s{sS}, 14\ns_cbranch_scc1 L_p4_idle1')
    if CSL: ln_prev(RWG, False, lambda: d_issue(sOD1))
    else:
        ln_prev(RWG, False)
        d_issue(sOD1)
else:
    a(f's_cmp_ge_u32 s{sS}, 14\ns_cbranch_scc1 L_p4_idle0')
    ln_prev(RWG, False)
a('s_waitcnt vmcnt(0)')
if not PRETR: a('L_p4_chk:')
spinstamp(60)
d_check(sOD1,'d1_ok')
spinstamp(61)
if not BG and not WDOK and ((not WDE and not ALLW and not WGP2) or (WGP2 and not WDO)):
    a(f's_cmp_lg_u32 s{sL}, 0\ns_cbranch_scc1 L_p4_nowd\ns_cmp_eq_u32 s{sW}, 7\ns_cbranch_scc1 L_p4_nowd')
    w_dma(SRD_WD, vWdo, 2 if WGP2 else 1, 2, 1024, NTW)
    a('L_p4_nowd:')
def gu_pub():
    pub_store(f'buffer_store_dword {v(T+12)}, {v(vGUwr)}, {srd(SRD_WS)}, s{sOGU} offen')
    if ACK and H4A:
        l=lbl('gua')
        a(f's_cmp_eq_u32 s{sL}, 0\ns_cbranch_scc1 {l}\ns_waitcnt vmcnt(0)\n{l}:')
ln_post(RWG, gu_pub, 'p4', vCSG)
if ACK and H4A: a('s_barrier')
a('s_branch L_p4_done')
if LNF&2:
    a('L_p4_idle1:'); d_issue(sOD1)
a('L_p4_idle0:\ns_waitcnt vmcnt(0)\n'+('L_p4_idle9:' if PRETR else 'L_p4_idle:'))
d_check(sOD1)
if not BG and not WDOK and ((not WDE and not ALLW and not WGP2) or (WGP2 and not WDO)):
    a(f's_cmp_lg_u32 s{sL}, 0\ns_cbranch_scc1 L_p4_nowd2\ns_cmp_eq_u32 s{sW}, 7\ns_cbranch_scc1 L_p4_nowd2')
    w_dma(SRD_WD, vWdo, 2 if WGP2 else 1, 2, 1024, NTW)
    a('L_p4_nowd2:')
ident_mfma()
x_update(d_sum())
a(f'ds_write_b16 {v(vXw)}, {v(XB)}')
a('L_p4_done:')
stamp('p4_done')
a(f's_cmp_eq_u32 s{sW}, 7\ns_cbranch_scc1 L_p5_bar')
def gu_issue():
    a(f'buffer_load_dword {v(T)}, {v(vGUrd)}, {srd(SRD_WS)}, s{sOGU} offen sc1')
    a(f'buffer_load_dword {v(T+1)}, {v(vGUrd)}, {srd(SRD_WS)}, s{sOGU} offen offset:512 sc1')
a('L_gu_retry:')
gu_issue()
a('L_gu_wait:\ns_waitcnt vmcnt(0)')
check_valid([T,T+1],'L_gu_ok',T+2)
spin_check('L_gu_retry')
a('L_gu_ok:')
if not ALLW and not WDOK and not BG:
    a(f's_cmp_lg_u32 s{sL}, 0\ns_cbranch_scc1 L_gu_nowd')
    w_tr(RWD,2 if WGP2 else 1,1)
    a('L_gu_nowd:')
stamp('gu_ok')
a(f'''
v_lshlrev_b32 {v(T)}, {v(vSh)}, {v(T)}
v_lshlrev_b32 {v(T+1)}, {v(vSh)}, {v(T+1)}
v_and_b32 {v(T)}, 0xffff0000, {v(T)}
v_and_b32 {v(T+1)}, 0xffff0000, {v(T+1)}
v_mul_f32 {v(T)}, s{sNL2E}, {v(T)}
v_exp_f32 {v(T)}, {v(T)}
v_add_f32 {v(T)}, 1.0, {v(T)}
v_rcp_f32 {v(T)}, {v(T)}
v_mul_f32 {v(T)}, {v(T)}, {v(T+1)}
v_cvt_pk_bf16_f32 {v(T)}, {v(T)}, {v(T)}
ds_write_b16 {v(vHw)}, {v(T)}
s_waitcnt lgkmcnt(0)
ds_read_b128 {vr(T+4,4)}, {v(vHr)}
s_waitcnt lgkmcnt(0)
v_mfma_f32_16x16x32_bf16 {vr(T+8,4)}, {vr(T+4,4)}, {vr(RWD,4)}, 0
v_mfma_f32_16x16x32_bf16 {vr(T+12,4)}, {vr(T+4,4)}, {vr(RWD+4,4)}, 0
s_mov_b64 exec, 0xffff
ds_write_b32 {v(vP5w)}, {v(T+8)}
ds_write_b32 {v(vP5w)}, {v(T+12)} offset:{16*48}
s_mov_b64 exec, -1
L_p5_bar:
s_waitcnt lgkmcnt(0)
s_barrier
''')
stamp('p5_bar')
final8(vP5r, 7, sOD2, 'L_p5_done')
stamp('p5_done')
a(f's_cmp_lg_u32 s{sL}, 0\ns_cbranch_scc1 L_final')
a(f'''
s_mov_b32 s{sL}, 1
s_mov_b32 s{sOGU}, 0x400
s_mov_b32 s{sOML}, 0x200
s_mov_b32 s{sOD1}, 0x4000
s_mov_b32 s{sOD2}, 0xC000
s_mov_b32 s{sOO}, 0x4000
s_mov_b32 s{sOO2}, {0x4000+7168}
s_waitcnt lgkmcnt(0)
s_branch L_layer
''')
a('L_final:')
a(f'''
s_cmp_lg_u32 s{sC}, 0
s_cbranch_scc1 L_fin_stamps
s_lshr_b32 s{sT0}, s{sS}, 1
s_cmp_lg_u32 s{sW}, s{sT0}
s_cbranch_scc1 L_fin_stamps
''')
d_issue(sOD2)
a('s_waitcnt vmcnt(0)')
d_check(sOD2)
ident_mfma()
x_update(d_sum())
a(f'''
s_and_b32 s{sT0}, s{sS}, 1
s_cmp_eq_u32 s{sT0}, 0
s_cselect_b32 exec_lo, -1, 0
s_cselect_b32 exec_hi, 0, -1
s_lshl_b32 s{sT0}, s{sB}, 10
v_lshl_add_u32 {v(T)}, v0, 1, s{sT0}
buffer_store_short {v(XB)}, {v(T)}, {srd(SRD_OUT)}, 0 offen
s_mov_b64 exec, -1
s_cmp_lg_u32 s{sS}, 0
s_cbranch_scc1 L_fin_stamps
s_lshl_b32 s{sT0}, s{sB}, 7
s_add_u32 s{sT0}, s{sT0}, {EB}
v_mov_b32 {v(T+2)}, s{sT0}
v_mov_b32 {v(T+1)}, s{sTAG}
s_mov_b64 exec, 1
buffer_store_dword {v(T+1)}, {v(T+2)}, {srd(SRD_WS)}, 0 offen sc1
s_mov_b64 exec, -1
L_fin_stamps:
''')
if int(opt.get('dbgfast',0)):
    a(f'''s_cmp_lg_u32 s{sW}, 0
s_cbranch_scc1 L_nodbg
s_lshl_b32 s{sT0}, s2, 2
s_add_u32 s{sT0}, s{sT0}, 0xE2000
v_mov_b32 {v(T+2)}, s{sT0}
s_lshl_b32 s{sT1}, s{sXCC}, 4
s_or_b32 s{sT1}, s{sT1}, s{sFAST}
v_mov_b32 {v(T+1)}, s{sT1}
s_mov_b64 exec, 1
buffer_store_dword {v(T+1)}, {v(T+2)}, {srd(SRD_WS)}, 0 offen
s_mov_b64 exec, -1
L_nodbg:''')
if STAMPS:
    spinstamp(62)
    stamp('end')
    a(f'''
s_lshl_b32 s{sT0}, s2, 3
s_add_u32 s{sT0}, s{sT0}, s{sW}
s_lshl_b32 s{sT0}, s{sT0}, 8
s_add_u32 s{sT0}, s{sT0}, {STAMP_OFF}
v_lshl_add_u32 {v(T)}, {v(vL)}, 2, s{sT0}
buffer_store_dword {v(vSTAMP)}, {v(T)}, {srd(SRD_WS)}, 0 offen
''')
a('s_branch L_end')
a('L_bail:')
a('L_end:\ns_endpgm')
lines=a.text().split('\n')
lines,added=haz.fix(lines)
sys.stderr.write(f'auto nops: {added}; stamps: {stamp_names}\n')
open(sys.argv[1],'w').write(wrap('\n'.join(lines),256,512,LDS_BYTES,nvgpr=256,nsgpr=102))
if STAMPS: open(sys.argv[1]+'.stamps','w').write(','.join(stamp_names))
```
